```python
import torch

def _softmax(x, axis=-1):
    return torch.softmax(x, dim=axis)

def _gelu(x):
    return torch.nn.functional.gelu(x, approximate='tanh')

def _silu(x):
    return torch.nn.functional.silu(x)

def _sigmoid(x):
    return torch.sigmoid(x)

def _layernorm(x, axis=-1, eps=1e-05):
    m = x.mean(dim=axis, keepdim=True)
    v = x.var(dim=axis, keepdim=True, unbiased=False)
    return (x - m) / torch.sqrt(v + eps)

def _scatter_add(tgt, idx, src, axis=0):
    return tgt.clone().index_add_(axis, idx, src)

def _segment_sum(src, seg, n):
    out = torch.zeros((n,) + src.shape[1:], dtype=src.dtype)
    return out.index_add_(0, seg, src)

def _pad(x, pw):
    flat = tuple((v for pair in reversed(pw) for v in pair))
    return torch.nn.functional.pad(x, flat)
kernel_name = 'sequential_preLN__memory_aug_recurrent_mem_tr__dense_activation_mish__prompt'

def setup_inputs():

    _w = lambda a: (lambda t: t.to(torch.bfloat16) if t.is_floating_point() else t)(torch.as_tensor(a))

    def _A_setup():
        B, S, Dm = (1, 2048, 640)
        H, Dh = (32, 192)
        M, seg = (8, 32)
        seg = min(seg, S)
        S = S // seg * seg
        return {'x': _w((lambda *s: torch.randn(*s, dtype=torch.bfloat16) * 0.05)(B, S, Dm)), 'mem0': _w((lambda *s: torch.randn(*s, dtype=torch.bfloat16) * 0.2)(B, M, Dm)), 'Wq': _w((lambda *s: torch.randn(*s, dtype=torch.bfloat16) * 1.6)(Dm, H, Dh) * Dm ** (-0.5)), 'Wk': _w((lambda *s: torch.randn(*s, dtype=torch.bfloat16) * 1.6)(Dm, H, Dh) * Dm ** (-0.5)), 'Wv': _w((lambda *s: torch.randn(*s, dtype=torch.bfloat16) * 0.2)(Dm, H, Dh) * Dm ** (-0.5)), 'Wo': _w((lambda *s: torch.randn(*s, dtype=torch.bfloat16) * 0.2)(H, Dh, Dm) * (H * Dh) ** (-0.5)), 'seg_len': seg}
    _A_in = _A_setup()

    def _B_setup():
        B, S, D, F = (1, 2048, 640, 1536)
        return {'x': _w((lambda *s: torch.randn(*s, dtype=torch.bfloat16) * 0.05)(B, S, D)), 'w1': _w((lambda *s: torch.randn(*s, dtype=torch.bfloat16) * 0.8)(D, F) * D ** (-0.5)), 'b1': _w((lambda *s: torch.randn(*s, dtype=torch.bfloat16) * 0.2)(F)), 'w2': _w((lambda *s: torch.randn(*s, dtype=torch.bfloat16) * 0.1)(F, D) * F ** (-0.5))}
    _B_in = _B_setup()
    return {'A_x': _A_in['x'], 'A_mem0': _A_in['mem0'], 'A_Wq': _A_in['Wq'], 'A_Wk': _A_in['Wk'], 'A_Wv': _A_in['Wv'], 'A_Wo': _A_in['Wo'], 'A_seg_len': _A_in['seg_len'], 'B_x': _B_in['x'], 'B_w1': _B_in['w1'], 'B_b1': _B_in['b1'], 'B_w2': _B_in['w2']}

def reference(A_x, A_mem0, A_Wq, A_Wk, A_Wv, A_Wo, A_seg_len, B_x, B_w1, B_b1, B_w2):

    def _A_ref(x, mem0, Wq, Wk, Wv, Wo, seg_len):
        B, S, Dm = x.shape
        H, Dh = (Wq.shape[1], Wq.shape[2])
        M = mem0.shape[1]
        scale = Dh ** (-0.5)
        n_seg = S // seg_len
        L = M + seg_len
        idx = torch.arange(L)
        mask = (idx[:, None] < M) | (idx[:, None] >= idx[None, :])
        mem = mem0
        outs = []
        for s in range(n_seg):
            xs = x[:, s * seg_len:(s + 1) * seg_len, :].clone()
            h = torch.concatenate([mem, xs], axis=1)
            q = torch.einsum('btd,dhe->bhte', h, Wq)
            k = torch.einsum('btd,dhe->bhte', h, Wk)
            v = torch.einsum('btd,dhe->bhte', h, Wv)
            scores = torch.einsum('bhqe,bhke->bhqk', q, k) * scale
            scores = torch.where(mask[None, None], scores, -1000000000.0)
            p = _softmax(scores, axis=-1)
            o = torch.einsum('bhqk,bhke->bhqe', p, v)
            o = torch.einsum('bhte,hed->btd', o, Wo)
            mem = o[:, :M, :].clone()
            outs.append(o[:, M:, :])
        return torch.concatenate(outs, axis=1)

    def _B_ref(x, w1, b1, w2):
        h = torch.einsum('bsd,df->bsf', x, w1) + b1
        sp = torch.log1p(torch.exp(-torch.abs(h))) + torch.where(h > 0, h, torch.zeros_like(h))
        act = h * torch.tanh(sp)
        return torch.einsum('bsf,fd->bsd', act, w2)
    x = A_x
    h = x + _A_ref(_layernorm(x, axis=-1), A_mem0, A_Wq, A_Wk, A_Wv, A_Wo, A_seg_len)
    h2 = h + _B_ref(_layernorm(h, axis=-1), B_w1, B_b1, B_w2)
    return h2
```

```python
import re

REG_RE = re.compile(r'^(-?\|?|abs\()?([vas])(\d+)[\)\|]?$')
RNG_RE = re.compile(r'^(-?)([vas])\[(\d+):(\d+)\]$')

def regs_of(op):
    op = op.strip()
    m = RNG_RE.match(op)
    if m:
        return {(m.group(2), i) for i in range(int(m.group(3)), int(m.group(4)) + 1)}
    m = REG_RE.match(op)
    if m:
        return {(m.group(2), int(m.group(3)))}
    if op == 'vcc':
        return {('s', 106), ('s', 107)}
    if op == 'exec':
        return {('s', 126), ('s', 127)}
    if op == 'm0':
        return {('s', 124)}
    return set()

TRANS = ('v_exp_f32', 'v_log_f32', 'v_rcp_f32', 'v_rsq_f32', 'v_sqrt_f32')

class Ins:
    __slots__ = ('text', 'mn', 'kind', 'w', 'r', 'rc', 'rab', 'states', 'dpp', 'wide_store', 'sdata', 'lds_dma', 'passes')

def parse(text):
    t = text.split(';')[0].strip()
    ins = Ins()
    ins.text = text
    parts = t.split(None, 1)
    mn = parts[0]
    ins.mn = mn
    rest = parts[1] if len(parts) > 1 else ''
    rest = re.sub(r'quad_perm:\[(\d),(\d),(\d),(\d)\]', r'quad_perm:\1\2\3\4', rest)
    rest = re.sub(r'(op_sel_hi|op_sel|neg_lo|neg_hi):\[(\d),(\d)\]', r'\1:\2\3', rest)
    ops = [o.strip() for o in rest.split(',')] if rest else []
    mods = ''
    if ops:
        last = ops[-1].split(None, 1)
        ops[-1] = last[0]
        mods = last[1] if len(last) > 1 else ''
    ins.w = set(); ins.r = set(); ins.rc = set(); ins.rab = set()
    ins.states = 1; ins.dpp = False; ins.wide_store = False; ins.sdata = set(); ins.lds_dma = False; ins.passes = 0
    R = [regs_of(o) for o in ops]
    if mn == 's_nop':
        ins.kind = 'nop'; ins.states = int(ops[0], 0) + 1
    elif mn.startswith('v_mfma') or mn.startswith('v_smfmac'):
        ins.kind = 'mfma'
        ins.w = R[0]
        ins.rab = R[1] | R[2]
        if mn.startswith('v_smfmac'):
            ins.rc = R[0]; ins.rab |= R[3]
        else:
            ins.rc = R[3]
        ins.r = ins.rab | ins.rc
        ins.passes = 8 if '32x32' in mn else 4
    elif mn.startswith('v_'):
        ins.kind = 'valu'
        ins.dpp = ('_dpp' in mn) or ('row_' in mods) or ('quad_perm' in mods)
        if mn.startswith('v_cmp'):
            ins.w = R[0]
            for x in R[1:]: ins.r |= x
        elif 'swap' in mn:
            ins.w = R[0] | R[1]; ins.r = R[0] | R[1]
        elif mn.startswith('v_add_co') or mn.startswith('v_addc_co'):
            ins.w = R[0] | R[1]
            for x in R[2:]: ins.r |= x
        else:
            ins.w = R[0]
            for x in R[1:]: ins.r |= x
            if mn.startswith('v_fmac') or mn.startswith('v_dot2c') or ins.dpp or mn.startswith('v_writelane'):
                ins.r |= R[0]
            if mn.startswith('v_cndmask') and len(ops) == 3:
                ins.r |= regs_of('vcc')
    elif mn.startswith('ds_'):
        ins.kind = 'ds'
        if mn.startswith('ds_read') or mn.startswith('ds_bpermute') or mn.startswith('ds_swizzle'):
            ins.w = R[0]
            for x in R[1:]: ins.r |= x
        else:
            for x in R: ins.r |= x
    elif mn.startswith('buffer_') or mn.startswith('global_'):
        ins.kind = 'vmem'
        lds = ' lds' in (' ' + mods)
        if 'load' in mn and not lds:
            ins.w = R[0]
            for x in R[1:]: ins.r |= x
        elif 'atomic' in mn and 'sc0' in mods:
            ins.w = R[0]
            for x in R: ins.r |= x
        else:
            for x in R: ins.r |= x
            if lds:
                ins.lds_dma = True
            if 'store' in mn and ('x3' in mn or 'x4' in mn):
                ins.wide_store = True
                ins.sdata = R[0] if mn.startswith('buffer_') else R[1]
    elif mn.startswith('s_'):
        ins.kind = 'salu'
        if mn.startswith('s_cmp') or mn.startswith('s_bitcmp') or mn.startswith('s_cbranch') or mn in ('s_branch', 's_barrier', 's_waitcnt', 's_endpgm', 's_sleep', 's_setprio'):
            for x in R: ins.r |= x
        else:
            if R: ins.w = R[0]
            for x in R[1:]: ins.r |= x
            if 'saveexec' in mn: ins.w |= regs_of('exec')
    else:
        raise ValueError('unknown instruction: ' + text)
    return ins

def isvec(rs):
    return {r for r in rs if r[0] in 'va'}
def issc(rs):
    return {r for r in rs if r[0] == 's'}

def need(p, c):
    n = 0
    if p.kind == 'valu':
        vw = isvec(p.w); sw = issc(p.w)
        if c.kind == 'mfma' and vw & c.r: n = max(n, 2)
        if c.kind == 'valu':
            if c.dpp and vw & c.r: n = max(n, 2)
            if 'permlane' in c.mn and vw & c.r: n = max(n, 2)
            if (c.mn.startswith('v_readlane') or c.mn.startswith('v_readfirstlane')) and vw & c.r: n = max(n, 1)
            if p.mn.split('_e')[0] in TRANS or p.mn in TRANS:
                if vw & (c.r | c.w): n = max(n, 1)
            if sw & c.r:
                n = max(n, 4 if ('lane' in c.mn) else 2)
        if c.kind == 'vmem' and sw & c.r: n = max(n, 5)
        if c.kind == 'salu' and sw & c.r and not c.mn.startswith('s_cbranch'): n = max(n, 2)
    if p.kind == 'mfma':
        big = p.passes == 8
        if c.kind == 'mfma':
            if p.w & c.rab: n = max(n, 12 if big else 8)
            if p.w & c.rc and not (p.w == c.rc and p.passes == c.passes): n = max(n, 10 if big else 6)
            if p.w & c.w and not (p.w & c.rc): n = max(n, 10 if big else 6)
        elif c.kind in ('valu', 'vmem', 'ds'):
            if p.w & (c.r | c.w): n = max(n, 12 if big else 8)
            if c.kind == 'valu' and p.rc & c.w: n = max(n, 7 if big else 3)
    if p.kind == 'vmem' and p.wide_store and (p.sdata & c.w): n = max(n, 2)
    if p.kind == 'salu':
        if ('s', 124) in p.w and c.kind == 'vmem' and c.lds_dma: n = max(n, 1)
        if (regs_of('exec') & p.w) and c.kind == 'valu' and c.dpp: n = max(n, 1)
    return n

class Asm:
    def __init__(self):
        self.lines = []
        self.hist = []
        self.nlab = 0
        self.ninstr = 0
    def raw(self, s):
        self.lines.append(s)
    def c(self, s):
        self.lines.append('    ; ' + s)
    def label(self, name):
        self.lines.append(name + ':')
    def newlabel(self, base='L'):
        self.nlab += 1
        return '%s_%d' % (base, self.nlab)
    def flush(self):
        dist = 0; n = 0
        for p in reversed(self.hist):
            req = 0
            if p.kind == 'mfma': req = 12 if p.passes == 8 else 8
            elif p.kind == 'valu': req = 5 if issc(p.w) - regs_of('vcc') else 2
            elif p.kind == 'vmem' and p.wide_store: req = 2
            elif p.kind == 'salu' and ('s', 124) in p.w: req = 1
            n = max(n, req - dist)
            dist += p.states
            if dist >= 12: break
        n -= 1
        if n > 0: self._nop(n)
    def _nop(self, n):
        while n > 0:
            k = min(n, 16)
            ins = parse('s_nop %d' % (k - 1))
            self.lines.append('    s_nop %d' % (k - 1)); self.hist.append(ins); self.ninstr += 1
            n -= k
    def __call__(self, text, *args):
        if args: text = text % args
        for t in text.split('\n'):
            t = t.strip()
            if not t: continue
            self.i(t)
    def i(self, text):
        ins = parse(text)
        if ins.mn.startswith('s_cbranch') or ins.mn == 's_branch':
            self.flush()
        dist = 0; n = 0
        for p in reversed(self.hist):
            n = max(n, need(p, ins) - dist)
            dist += p.states
            if dist >= 12: break
        if n > 0: self._nop(n)
        self.lines.append('    ' + text)
        self.hist.append(ins); self.ninstr += 1
        if len(self.hist) > 32: self.hist = self.hist[-16:]
    def text(self):
        return '\n'.join(self.lines) + '\n'

def v(i, n=1):
    return 'v%d' % i if n == 1 else 'v[%d:%d]' % (i, i + n - 1)
def a(i, n=1):
    return 'a%d' % i if n == 1 else 'a[%d:%d]' % (i, i + n - 1)
def s(i, n=1):
    return 's%d' % i if n == 1 else 's[%d:%d]' % (i, i + n - 1)
```

```python
from asmlib import *
import gen as G
from gen import *

class Lg:
    def __init__(self, A): self.A = A; self.q = []
    def issue(self, text, tag=None):
        self.A(text); self.q.append(tag)
    def wait(self, tag):
        idx = max(i for i, t in enumerate(self.q) if t == tag) if tag in self.q else -1
        if idx < 0: return
        n = len(self.q) - 1 - idx
        self.A('s_waitcnt lgkmcnt(%d)' % min(n, 15))
        self.q = self.q[idx + 1:]
    def all(self):
        self.A('s_waitcnt lgkmcnt(0)'); self.q = []

def comm_base(A, dst, seg):
    A('s_lshr_b32 %s, %s, 5' % (s(ST0), s(seg)))
    A('s_lshr_b32 %s, %s, %s' % (s(ST0), s(SSEL), s(ST0)))
    A('s_and_b32 %s, %s, 1' % (s(ST0), s(ST0)))
    A('s_lshl_b32 %s, %s, 13' % (s(ST0), s(ST0)))
    A('s_lshl_b32 %s, %s, 16' % (s(dst), s(seg)))
    A('s_add_u32 %s, %s, %s' % (s(dst), s(dst), s(ST0)))

def vxp(A, r, t):
    A('v_lshrrev_b32 %s, 13, %s' % (v(t), v(r)))
    A('v_lshl_add_u32 %s, %s, 13, %s' % (v(r), v(t), v(r)))

def rec_common_setup(A, VP, VMW4, VMW2, VIDX, VT):
    A('s_mul_i32 %s, %s, 2560' % (s(ST0), s(SW)))
    A('v_add_u32 %s, %s, %s' % (v(VMW4), s(ST0), v(VL16)))
    A('v_lshlrev_b32 %s, 3, %s' % (v(VT), v(VLANE)))
    A('v_add_u32 %s, %s, %s' % (v(VMW2), s(ST0), v(VT)))
    A('v_add_u32 %s, %d, %s' % (v(VP), U_MEM, v(VMW4)))
    A('v_add_u32 %s, %d, %s' % (v(VP + 1), U_MEM + 1024, v(VMW4)))
    A('v_add_u32 %s, %d, %s' % (v(VP + 2), U_MEM + 2048, v(VMW2)))
    for i in range(3): vxp(A, VP + i, VT)
    A('v_and_b32 %s, 8, %s' % (v(VT), v(VLANE)))
    A('v_cmp_eq_u32 vcc, 0, %s' % v(VT))
    A('v_mov_b32 %s, 0xeeee' % v(VIDX))
    A('v_mov_b32 %s, 0x4444' % v(VT))
    A('v_cndmask_b32 %s, %s, %s, vcc' % (v(VIDX), v(VIDX), v(VT)))

def rec_w_taddr(A, VTA, VG, VR, VQ, VT, RB, wcol):
    A('v_lshrrev_b32 %s, 1, %s' % (v(VTA), v(VG)))
    A('v_lshlrev_b32 %s, 4, %s' % (v(VTA), v(VTA)))
    A('v_and_b32 %s, 1, %s' % (v(VT), v(VG)))
    A('v_lshl_add_u32 %s, %s, 2, %s' % (v(VTA), v(VT), v(VTA)))
    A('v_lshrrev_b32 %s, 1, %s' % (v(VT), v(VR)))
    A('v_lshl_add_u32 %s, %s, 3, %s' % (v(VTA), v(VT), v(VTA)))
    A('v_and_b32 %s, 1, %s' % (v(VT), v(VR)))
    A('v_add_u32 %s, %s, %s' % (v(VTA), v(VT), v(VTA)))
    A('v_mul_u32_u24 %s, %d, %s' % (v(VTA), RB, v(VTA)))
    A('v_lshl_add_u32 %s, %s, 3, %s' % (v(VTA), v(VQ), v(VTA)))
    A('s_mul_i32 %s, %s, %d' % (s(ST0), s(SW), wcol))
    A('v_add_u32 %s, %s, %s' % (v(VTA), s(ST0), v(VTA)))

def wreg(i, off=0, n=8):
    return a(i * 8 + off, n) if i < 32 else v(128 + (i - 32) * 8 + off, n)

def poll_mem(A, VP, MEM, VMW4, VMW2, SCOMM, VT):
    L = A.newlabel('Lm'); D = A.newlabel('Lmd')
    A('s_mov_b32 %s, 0x%x' % (s(SSPIN), SPIN))
    A.label(L)
    A('buffer_load_dwordx4 %s, %s, %s, %s offen sc1' % (v(MEM, 4), v(VP), s(S_WS, 4), s(SCOMM)))
    A('buffer_load_dwordx4 %s, %s, %s, %s offen sc1' % (v(MEM + 4, 4), v(VP + 1), s(S_WS, 4), s(SCOMM)))
    A('buffer_load_dwordx2 %s, %s, %s, %s offen sc1' % (v(MEM + 8, 2), v(VP + 2), s(S_WS, 4), s(SCOMM)))
    spin_dec(A)
    A('s_waitcnt vmcnt(2)')
    A('v_max3_u32 %s, %s, %s, %s' % (v(VT), v(MEM), v(MEM + 1), v(MEM + 2)))
    A('s_waitcnt vmcnt(1)')
    A('v_max3_u32 %s, %s, %s, %s' % (v(VT), v(VT), v(MEM + 3), v(MEM + 4)))
    A('v_max3_u32 %s, %s, %s, %s' % (v(VT), v(VT), v(MEM + 5), v(MEM + 6)))
    A('s_waitcnt vmcnt(0)')
    A('v_max3_u32 %s, %s, %s, %s' % (v(VT), v(VT), v(MEM + 7), v(MEM + 8)))
    A('v_max_u32 %s, %s, %s' % (v(VT), v(VT), v(MEM + 9)))
    A('v_cmp_eq_u32 vcc, -1, %s' % v(VT))
    A('s_cbranch_vccnz %s' % L)
    A('ds_write_b128 %s, %s' % (v(VMW4), v(MEM, 4)))
    A('ds_write_b128 %s, %s offset:1024' % (v(VMW4), v(MEM + 4, 4)))
    A('ds_write_b64 %s, %s offset:2048' % (v(VMW2), v(MEM + 8, 2)))
    A('s_waitcnt lgkmcnt(0)')
    A('s_barrier')

def canary(A, VZ, VT, SCAN, SVAL):
    L = A.newlabel('Lc')
    A('s_cmp_lg_u32 %s, 1' % s(SW))
    A('s_cbranch_scc1 %s' % L)
    A('s_mov_b64 exec, 1')
    A('v_mov_b32 %s, %s' % (v(VT), s(SVAL)))
    A('buffer_store_dword %s, %s, %s, %s offen sc1' % (v(VT), v(VZ), s(S_WS, 4), s(SCAN)))
    A('s_mov_b64 exec, -1')
    A.label(L)

CAN_POS_QK = int(os.environ.get('CANQK', '14'))
CAN_POS_VO = int(os.environ.get('CANVO', '4'))

def role_QK(A):
    VZ, VT = 3, 4
    VP = 6
    VMW4, VMW2 = 9, 10
    VIDX = 11
    VID = 12
    T = 14
    VWL = 20
    VSPX, VSPM = 21, 22
    VSR4, VSR1 = 23, 24
    VSX4, VSX1 = 25, 26
    VPX, VPM = 27, 28
    VL8 = 29
    MEM, STG, ACC, KX, SC = 32, 72, 88, 104, 116
    QX, XA = MEM, MEM + 12
    SM = 72
    MEML, SP, WL = 0, 10240, 40960
    ROW = 176
    SB, SCOMM, SKIN, SQIN, SFK, SPK, SPXO, SHX, SHM, SCAN, SNEXT = 62, 63, 64, 65, 66, 67, 68, 69, 70, 71, 72
    SMASK = 74
    A.label('L_role_QK')
    srd(A, S_WT, P_WQ, 640 * 6144 * 2)
    srd(A, S_MISC, P_WK, 640 * 6144 * 2)
    VDM, VTA, VTB, VG, VR, VQ = 6, 10, 11, 12, 13, 14
    A('s_mul_i32 %s, %s, 384' % (s(SB), s(SIDX)))
    A('s_mul_i32 %s, %s, %d' % (s(ST0), s(SW), 16 * 12288))
    A('s_add_u32 %s, %s, %s' % (s(SB), s(SB), s(ST0)))
    lane_parts(A, VG, VR, VQ)
    dma_voffs_384(A, VDM, 12288, VT, VT + 1)
    rec_w_taddr(A, VTA, VG, VR, VQ, VT, 384, 96)
    def fidx(t, m, ks): return (t * 2 + m) * 8 + ks
    def lidx(t, m, ks): return (t * 2 + (ks - 8)) * 2 + m
    chunks = []
    for ks in range(10):
        for m in range(2):
            reads = []
            for t in range(3):
                for P in range(4):
                    dst = wreg(fidx(t, m, ks), 2 * P, 2) if ks < 8 else v(32 + lidx(t, m, ks) * 8 + 2 * P, 2)
                    reads.append((dst, (32 * (P >> 1) + 2 * (P & 1)) * 384 + t * 32))
            chunks.append(dict(srd=(S_WT, S_MISC)[m], base=SB, dma=[(VDM + j % 3, (ks * 64 + 8 * (j // 3)) * 12288) for j in range(6)], taddr=VTA, reads=reads))
    load_weights(A, chunks, 24576, 6, VTB)
    A('s_mul_i32 %s, %s, 24576' % (s(ST0), s(SW)))
    A('s_add_u32 %s, %s, %d' % (s(ST0), s(ST0), WL))
    A('v_add_u32 %s, %s, %s' % (v(VWL), s(ST0), v(VL16)))
    for i in range(12):
        for h in range(2):
            A('ds_write_b128 %s, %s offset:%d' % (v(VWL), v(32 + i * 8 + 4 * h, 4), i * 2048 + h * 1024))
    A('s_waitcnt lgkmcnt(0)')
    prof(A, 0)
    G_, C_ = 30, 31
    A('v_lshrrev_b32 %s, 4, %s' % (v(G_), v(VLANE)))
    A('v_and_b32 %s, 15, %s' % (v(C_), v(VLANE)))
    rec_common_setup(A, VP, VMW4, VMW2, VIDX, VT)
    A('v_lshlrev_b32 %s, 2, %s' % (v(VT), v(G_)))
    A('v_sub_u32 %s, %s, %s' % (v(VT), v(C_), v(VT)))
    for h in range(2):
        A('v_mov_b32 %s, 0' % v(VID + h))
        A('v_mov_b32 %s, 0x3f80' % v(VT + 1))
        A('v_cmp_eq_u32 vcc, %d, %s' % (2 * h, v(VT)))
        A('v_cndmask_b32 %s, %s, %s, vcc' % (v(VID + h), v(VID + h), v(VT + 1)))
        A('v_mov_b32 %s, 0x3f800000' % v(VT + 1))
        A('v_cmp_eq_u32 vcc, %d, %s' % (2 * h + 1, v(VT)))
        A('v_cndmask_b32 %s, %s, %s, vcc' % (v(VID + h), v(VID + h), v(VT + 1)))
    A('s_mul_i32 %s, %s, %d' % (s(ST0), s(SW), 40 * ROW))
    A('s_add_u32 %s, %s, %d' % (s(ST0), s(ST0), SP))
    A('v_mul_u32_u24 %s, %d, %s' % (v(VT), ROW, v(C_)))
    A('v_add_u32 %s, %s, %s' % (v(VT), s(ST0), v(VT)))
    A('v_lshl_add_u32 %s, %s, 4, %s' % (v(VSPX), v(G_), v(VT)))
    A('v_add_u32 %s, 96, %s' % (v(VSPM), v(VSPX)))
    A('v_add_u32 %s, 160, %s' % (v(VT), v(VT)))
    A('v_cmp_gt_u32 vcc, 2, %s' % v(G_))
    A('v_cndmask_b32 %s, %s, %s, vcc' % (v(VSPM), v(VSPM), v(VT)))
    M_, K_ = 30, 31
    A('v_lshrrev_b32 %s, 3, %s' % (v(M_), v(VLANE)))
    A('v_and_b32 %s, 7, %s' % (v(K_), v(VLANE)))
    A('v_mul_u32_u24 %s, %d, %s' % (v(VT), ROW, v(M_)))
    A('v_add_u32 %s, %d, %s' % (v(VT), SP, v(VT)))
    A('v_lshl_add_u32 %s, %s, 4, %s' % (v(VSR4), v(K_), v(VT)))
    A('v_lshl_add_u32 %s, %s, 2, %s' % (v(VSR1), v(K_), v(VT)))
    A('s_add_u32 %s, %s, 1' % (s(ST0), s(SW)))
    A('s_mul_i32 %s, %s, %d' % (s(ST0), s(ST0), 8 * ROW))
    A('v_add_u32 %s, %s, %s' % (v(VSX4), s(ST0), v(VSR4)))
    A('v_add_u32 %s, %s, %s' % (v(VSX1), s(ST0), v(VSR1)))
    A('v_bfe_u32 %s, %s, 1, 1' % (v(VT), v(K_)))
    A('v_lshl_add_u32 %s, %s, 4, %s' % (v(VPX), v(VT), v(M_)))
    A('v_lshrrev_b32 %s, 2, %s' % (v(VT), v(K_)))
    A('v_lshl_add_u32 %s, %s, 3, %s' % (v(VPX), v(VT), v(VPX)))
    A('v_lshlrev_b32 %s, 4, %s' % (v(VPX), v(VPX)))
    A('v_and_b32 %s, 1, %s' % (v(VT), v(K_)))
    A('v_lshl_add_u32 %s, %s, 3, %s' % (v(VPX), v(VT), v(VPX)))
    A('v_bfe_u32 %s, %s, 1, 1' % (v(VT), v(K_)))
    A('v_lshl_add_u32 %s, %s, 3, %s' % (v(VPM), v(VT), v(M_)))
    A('v_lshlrev_b32 %s, 3, %s' % (v(VPM), v(VPM)))
    A('v_lshrrev_b32 %s, 2, %s' % (v(VT), v(K_)))
    A('v_lshl_add_u32 %s, %s, 2, %s' % (v(VPM), v(VT), v(VPM)))
    A('s_lshl_b32 %s, %s, 3' % (s(ST0), s(SW)))
    A('v_add_u32 %s, %s, %s' % (v(VT), s(ST0), v(M_)))
    A('v_lshlrev_b32 %s, 2, %s' % (v(VT + 1), v(K_)))
    A('v_sub_u32 %s, %s, %s' % (v(VT), v(VT), v(VT + 1)))
    for r in range(4):
        A('v_cmp_le_i32 %s, %d, %s' % (s(SMASK + 2 * r, 2), r, v(VT)))
    A('v_lshlrev_b32 %s, 3, %s' % (v(VL8), v(VLANE)))
    A('s_mul_i32 %s, %s, 12288' % (s(SQIN), s(SIDX)))
    A('s_mul_i32 %s, %s, 3072' % (s(ST0), s(SW)))
    A('s_add_u32 %s, %s, %s' % (s(SQIN), s(SQIN), s(ST0)))
    A('s_add_u32 %s, %s, 0x%x' % (s(SQIN), s(SQIN), QKV))
    A('s_add_u32 %s, %s, 0x%x' % (s(SKIN), s(SQIN), 24 * MB))
    A('s_lshl_b32 %s, %s, 7' % (s(SFK), s(SIDX)))
    A('s_add_u32 %s, %s, 0x%x' % (s(SFK), s(SFK), FLAGS))
    A('s_lshl_b32 %s, %s, 9' % (s(ST0), s(SIDX)))
    A('s_lshr_b32 %s, %s, 13' % (s(ST1), s(ST0)))
    A('s_lshl_b32 %s, %s, 13' % (s(ST1), s(ST1)))
    A('s_add_u32 %s, %s, %s' % (s(SHX), s(ST0), s(ST1)))
    A('s_lshl_b32 %s, %s, 7' % (s(SHM), s(SIDX)))
    A('s_add_u32 %s, %s, %d' % (s(SHM), s(SHM), xp(U_PM)))
    A('s_mul_i32 %s, %s, 20480' % (s(SPXO), s(SW)))
    A('s_add_u32 %s, %s, 0x%x' % (s(SPXO), s(SPXO), PX))
    VFL = 30
    A('v_and_b32 %s, 3, %s' % (v(VT), v(VLANE)))
    A('v_lshlrev_b32 %s, 2, %s' % (v(VT), v(VT)))
    A('v_bfe_u32 %s, %s, 2, 1' % (v(VFL), v(VLANE)))
    A('v_lshl_add_u32 %s, %s, 12, %s' % (v(VFL), v(VFL), v(VT)))
    VNEG = 31
    A('v_mov_b32 %s, 0xff800000' % v(VNEG))
    wait_init(A, VZ, VT)
    A('s_bfe_u32 %s, %s, 0x10002' % (s(ST0), s(SSEL)))
    A('s_lshl_b32 %s, %s, 13' % (s(ST0), s(ST0)))
    A('s_lshl_b32 %s, %s, 7' % (s(SCAN), s(SIDX)))
    A('s_add_u32 %s, %s, %s' % (s(SCAN), s(SCAN), s(ST0)))
    A('s_add_u32 %s, %s, 0x%x' % (s(SCAN), s(SCAN), CANB))

    def load_kq(dst, sin):
        for tt in range(2):
            A('buffer_load_dwordx4 %s, %s, %s, %s offen offset:%d sc1' % (v(dst + tt * 6, 4), v(VL16), s(S_WS, 4), s(sin), tt * 1536))
            A('buffer_load_dwordx2 %s, %s, %s, %s offen offset:%d sc1' % (v(dst + tt * 6 + 4, 2), v(VL8), s(S_WS, 4), s(sin), tt * 1536 + 1024))
        A('s_add_u32 %s, %s, %d' % (s(sin), s(sin), 32 * 12288))

    def softmax(r4, r1, masked, sx, sm):
        for w in range(4):
            A('ds_read_b128 %s, %s offset:%d' % (v(SM + 4 * w, 4), v(r4), w * 40 * ROW))
            A('ds_read_b32 %s, %s offset:%d' % (v(SM + 16 + w), v(r1), w * 40 * ROW + 128))
        X = [SM, SM + 1, SM + 2, SM + 3, SM + 16]
        A('s_waitcnt lgkmcnt(4)')
        for r in range(4): A('v_add_f32 %s, %s, %s' % (v(SM + r), v(SM + r), v(SM + 4 + r)))
        A('v_add_f32 %s, %s, %s' % (v(SM + 16), v(SM + 16), v(SM + 17)))
        A('s_waitcnt lgkmcnt(0)')
        for r in range(4): A('v_add_f32 %s, %s, %s' % (v(SM + 8 + r), v(SM + 8 + r), v(SM + 12 + r)))
        A('v_add_f32 %s, %s, %s' % (v(SM + 18), v(SM + 18), v(SM + 19)))
        for r in range(4): A('v_add_f32 %s, %s, %s' % (v(SM + r), v(SM + r), v(SM + 8 + r)))
        A('v_add_f32 %s, %s, %s' % (v(SM + 16), v(SM + 16), v(SM + 18)))
        if masked:
            for r in range(4): A('v_cndmask_b32 %s, %s, %s, %s' % (v(SM + r), v(VNEG), v(SM + r), s(SMASK + 2 * r, 2)))
        MX, SU = SM + 20, SM + 21
        A('v_max3_f32 %s, %s, %s, %s' % (v(MX), v(X[0]), v(X[1]), v(X[4])))
        A('v_max3_f32 %s, %s, %s, %s' % (v(MX), v(X[2]), v(X[3]), v(MX)))
        for mod in ('quad_perm:[1,0,3,2]', 'quad_perm:[2,3,0,1]', 'row_half_mirror'):
            A('v_max_f32_dpp %s, %s, %s %s row_mask:0xf bank_mask:0xf' % (v(MX), v(MX), v(MX), mod))
        import struct, math
        CS = struct.unpack('<I', struct.pack('<f', 192 ** -0.5 * math.log2(math.e)))[0]
        A('s_mov_b32 %s, 0x%x' % (s(ST1), CS))
        A('v_mul_f32 %s, %s, %s' % (v(MX), s(ST1), v(MX)))
        for x in X: A('v_fma_f32 %s, %s, %s, -%s' % (v(x), v(x), s(ST1), v(MX)))
        for x in X: A('v_exp_f32 %s, %s' % (v(x), v(x)))
        A('v_add_f32 %s, %s, %s' % (v(SU), v(X[0]), v(X[1])))
        A('v_add_f32 %s, %s, %s' % (v(MX), v(X[2]), v(X[3])))
        A('v_add_f32 %s, %s, %s' % (v(SU), v(SU), v(X[4])))
        A('v_add_f32 %s, %s, %s' % (v(SU), v(SU), v(MX)))
        for mod in ('quad_perm:[1,0,3,2]', 'quad_perm:[2,3,0,1]', 'row_half_mirror'):
            A('v_add_f32_dpp %s, %s, %s %s row_mask:0xf bank_mask:0xf' % (v(SU), v(SU), v(SU), mod))
        A('v_rcp_f32 %s, %s' % (v(SU), v(SU)))
        A('v_mul_f32 %s, %s, %s' % (v(X[4]), v(X[4]), v(SU)))
        for x in X[:4]: A('v_mul_f32 %s, %s, %s' % (v(x), v(x), v(SU)))
        O = SM + 22
        A('v_mov_b32_dpp %s, %s quad_perm:[1,0,3,2] row_mask:0xf bank_mask:0xf' % (v(MX), v(X[4])))
        A('v_cvt_pk_bf16_f32 %s, %s, %s' % (v(O), v(X[0]), v(X[1])))
        A('v_cvt_pk_bf16_f32 %s, %s, %s' % (v(O + 1), v(X[2]), v(X[3])))
        A('v_cvt_pk_bf16_f32 %s, %s, %s' % (v(O + 2), v(X[4]), v(MX)))
        for i in range(3): A('v_min_u32 %s, 0xfffffffe, %s' % (v(O + i), v(O + i)))
        A('buffer_store_dwordx2 %s, %s, %s, %s offen sc1' % (v(O, 2), v(VPX), s(S_WS, 4), s(sx)))
        A('s_mov_b32 exec_lo, 0x55555555')
        A('s_mov_b32 exec_hi, 0x55555555')
        A('buffer_store_dword %s, %s, %s, %s offen sc1' % (v(O + 2), v(VPM), s(S_WS, 4), s(sm)))
        A('s_mov_b64 exec, -1')

    def stg_load(lg, t, ks):
        for m in range(2):
            for h in range(2):
                lg.issue('ds_read_b128 %s, %s offset:%d' % (v(STG + m * 8 + 4 * h, 4), v(VWL), lidx(t, m, ks) * 2048 + h * 1024), ('stg', t, ks))

    poll_ge(A, S_WS, VFL, s(SFK), '1', VT)
    load_kq(KX, SKIN)
    A('s_mov_b32 %s, 0' % s(SSEG))
    prof(A, 1)
    A.label('L_loop_QK')
    lg = Lg(A)
    stg_load(lg, 0, 8)
    for i in range(16): A('v_mov_b32 %s, 0' % v(ACC + i))
    comm_base(A, SCOMM, SSEG)
    A('s_add_u32 %s, %s, 1' % (s(SNEXT), s(SSEG)))
    poll_mem(A, VP, MEM, VMW4, VMW2, SCOMM, VT)
    lg.q = []
    prof(A, 2)
    order = [0, 1, 2, 3, 8, 4, 5, 6, 7, 9]
    for ks in order:
        lg.issue('ds_read_b128 %s, %s offset:%d' % (v(MEM + 4 * ks, 4), v(VL16), MEML + ks * 1024), ('mem', ks))
    def post(t):
        q = ACC + (t & 1) * 8; k = q + 4
        ops = []
        for r in range(4): ops.append('v_permlane32_swap_b32 %s, %s' % (v(q + r), v(k + r)))
        for r in range(4): ops.append('v_add_f32 %s, %s, %s' % (v(q + r), v(q + r), v(k + r)))
        ops.append('v_cvt_pk_bf16_f32 %s, %s, %s' % (v(q), v(q), v(q + 1)))
        ops.append('v_cvt_pk_bf16_f32 %s, %s, %s' % (v(q + 1), v(q + 2), v(q + 3)))
        ops.append(None)
        ops.append('v_mfma_f32_16x16x16_bf16 %s, %s, %s, 0' % (v(k, 4), v(q, 2), v(VID, 2)))
        ops += [None] * 8
        ops.append('v_cvt_pk_bf16_f32 %s, %s, %s' % (v(T + 2 * t), v(k), v(k + 1)))
        ops.append('v_cvt_pk_bf16_f32 %s, %s, %s' % (v(T + 2 * t + 1), v(k + 2), v(k + 3)))
        if t == 0:
            for i in range(8): ops.append('v_mov_b32 %s, 0' % v(q + i))
        if t == 1:
            ops.append(None)
            ops.append('v_mfma_f32_16x16x32_bf16 %s, %s, %s, 0' % (v(SC, 4), v(KX, 4), v(T, 4)))
            ops.append('v_mfma_f32_16x16x32_bf16 %s, %s, %s, 0' % (v(SC + 4, 4), v(KX + 6, 4), v(T, 4)))
            ops.append('v_mfma_f32_16x16x32_bf16 %s, %s, %s, 0' % (v(SC + 8, 4), v(T, 4), v(T, 4)))
        return ops
    pend = []
    n = 0
    for t in range(3):
        cnt = 0
        for ks in order:
            if t == 0: lg.wait(('mem', ks))
            if ks >= 8: lg.wait(('stg', t, ks))
            for m in range(2):
                d = ACC + (t & 1) * 8 + 4 * m
                B = wreg(fidx(t, m, ks)) if ks < 8 else v(STG + m * 8, 8)
                A('v_smfmac_f32_16x16x64_bf16 %s, %s, %s, %s' % (v(d, 4), v(MEM + 4 * ks, 4), B, v(VIDX)))
                cnt += 1; n += 1
                if n == CAN_POS_QK: canary(A, VZ, VT, SCAN, SNEXT)
                if cnt >= 5:
                    for _ in range(2):
                        if pend:
                            x = pend.pop(0)
                            if x: A(x)
            if ks == 8: stg_load(lg, t, 9)
            if ks == 9 and t < 2: stg_load(lg, t + 1, 8)
        assert not pend, len(pend)
        pend = post(t)
    load_kq(QX, SQIN)
    for x in pend:
        if x: A(x)
    A('v_mfma_f32_16x16x16_bf16 %s, %s, %s, %s' % (v(SC, 4), v(KX + 4, 2), v(T + 4, 2), v(SC, 4)))
    A('v_mfma_f32_16x16x16_bf16 %s, %s, %s, %s' % (v(SC + 4, 4), v(KX + 10, 2), v(T + 4, 2), v(SC + 4, 4)))
    A('v_mfma_f32_16x16x16_bf16 %s, %s, %s, %s' % (v(SC + 8, 4), v(T + 4, 2), v(T + 4, 2), v(SC + 8, 4)))
    A('ds_write_b128 %s, %s' % (v(VSPX), v(SC, 4)))
    A('ds_write_b128 %s, %s offset:64' % (v(VSPX), v(SC + 4, 4)))
    A('ds_write_b128 %s, %s' % (v(VSPM), v(SC + 8, 4)))
    A('s_add_u32 %s, %s, %s' % (s(ST2), s(SCOMM), s(SHX)))
    A('s_add_u32 %s, %s, %s' % (s(ST3), s(SCOMM), s(SHM)))
    A('s_waitcnt lgkmcnt(0)')
    A('s_barrier')
    prof(A, 3)
    A('s_cmp_lg_u32 %s, 0' % s(SW))
    A('s_cbranch_scc1 L_QK_x')
    softmax(VSR4, VSR1, False, ST2, ST3)
    prof(A, 4)
    A('s_waitcnt vmcnt(2)')
    A('s_branch L_QK_x2')
    A.label('L_QK_x')
    A('s_waitcnt vmcnt(0)')
    A.label('L_QK_x2')
    kt = [(KX, KX + 4), (KX + 6, KX + 10), (T, T + 4)]
    for qt in range(2):
        for j in range(3):
            A('v_mfma_f32_16x16x32_bf16 %s, %s, %s, 0' % (v(XA + (qt * 3 + j) * 4, 4), v(kt[j][0], 4), v(QX + qt * 6, 4)))
    for qt in range(2):
        for j in range(3):
            d = v(XA + (qt * 3 + j) * 4, 4)
            A('v_mfma_f32_16x16x16_bf16 %s, %s, %s, %s' % (d, v(kt[j][1], 2), v(QX + qt * 6 + 4, 2), d))
    for qt in range(2):
        o = (8 + 16 * qt) * ROW
        A('ds_write_b128 %s, %s offset:%d' % (v(VSPX), v(XA + qt * 12, 4), o))
        A('ds_write_b128 %s, %s offset:%d' % (v(VSPX), v(XA + qt * 12 + 4, 4), o + 64))
        A('ds_write_b128 %s, %s offset:%d' % (v(VSPM), v(XA + qt * 12 + 8, 4), o))
    A('s_lshl_b32 %s, %s, 9' % (s(ST2), s(SIDX)))
    A('s_add_u32 %s, %s, %s' % (s(ST2), s(ST2), s(SPXO)))
    A('s_lshl_b32 %s, %s, 7' % (s(ST3), s(SIDX)))
    A('s_add_u32 %s, %s, %s' % (s(ST3), s(ST3), s(SPXO)))
    A('s_add_u32 %s, %s, %d' % (s(ST3), s(ST3), U_PM))
    A('s_waitcnt lgkmcnt(0)')
    A('s_barrier')
    softmax(VSX4, VSX1, True, ST2, ST3)
    A('s_add_u32 %s, %s, 81920' % (s(SPXO), s(SPXO)))
    A('s_mov_b32 %s, %s' % (s(SSEG), s(SNEXT)))
    prof(A, 5)
    A('s_cmp_ge_u32 %s, %d' % (s(SSEG), Cfg.nseg))
    A('s_cbranch_scc1 L_exit')
    A('s_add_u32 %s, %s, 1' % (s(ST2), s(SSEG)))
    poll_ge(A, S_WS, VFL, s(SFK), s(ST2), VT)
    load_kq(KX, SKIN)
    prof(A, 6)
    A('s_branch L_loop_QK')

def role_VO(A):
    VZ, VT = 3, 4
    VP = 6
    VMW4, VMW2 = 9, 10
    VIDX = 11
    VWL = 12
    VVW = 13
    VVR = 14
    VUS = 15
    VA = 16
    MEM, STG, ACC = 32, 72, 88
    MEML, VL, WL = 0, 10240, 40960
    SB, SB2, SCOMM, SU, SCAN, SNEXT, SUB = 62, 63, 64, 65, 66, 67, 68
    A.label('L_role_VO')
    srd(A, S_WT, P_WV, 640 * 6144 * 2)
    srd(A, S_MISC, P_WO, 640 * 6144 * 2)
    VDM, VTA, VTB, VG, VR, VQ, VTA2 = 6, 10, 11, 12, 13, 14, 15
    SB, SB2 = 71, 72
    A('s_mul_i32 %s, %s, 384' % (s(SB), s(SIDX)))
    A('s_mul_i32 %s, %s, %d' % (s(ST0), s(SW), 16 * 12288))
    A('s_add_u32 %s, %s, %s' % (s(SB), s(SB), s(ST0)))
    A('s_mul_i32 %s, %s, %d' % (s(SB2), s(SIDX), 192 * 1280))
    A('s_mul_i32 %s, %s, 5120' % (s(ST0), s(SW)))
    A('s_add_u32 %s, %s, %s' % (s(SB2), s(SB2), s(ST0)))
    lane_parts(A, VG, VR, VQ)
    dma_voffs_384(A, VDM, 12288, VT, VT + 1)
    rec_w_taddr(A, VTA, VG, VR, VQ, VT, 384, 96)
    A('v_lshl_add_u32 %s, %s, 2, %s' % (v(VTA2), v(VG), v(VR)))
    A('v_mul_u32_u24 %s, 1280, %s' % (v(VTA2), v(VTA2)))
    A('v_lshl_add_u32 %s, %s, 3, %s' % (v(VTA2), v(VQ), v(VTA2)))
    A('s_mul_i32 %s, %s, 320' % (s(ST0), s(SW)))
    A('v_add_u32 %s, %s, %s' % (v(VTA2), s(ST0), v(VTA2)))
    use = [('v', ks, t) for ks in range(10) for t in range(3)] + [('o', ct, j) for cp in range(5) for j in range(3) for ct in (2 * cp, 2 * cp + 1)]
    ldsf = [('v', 3, 0), ('v', 3, 1), ('v', 6, 0), ('v', 6, 1), ('v', 9, 0), ('v', 9, 1),
            ('o', 2, 0), ('o', 3, 0), ('o', 4, 2), ('o', 5, 2), ('o', 8, 0), ('o', 9, 0)]
    regf = [u for u in use if u not in ldsf]
    assert len(regf) == 48
    def dstreg(key, P):
        return wreg(regf.index(key), 2 * P, 2) if key in regf else v(32 + ldsf.index(key) * 8 + 2 * P, 2)
    chunks = []
    for ks in range(10):
        reads = [(dstreg(('v', ks, t), P), (32 * (P >> 1) + 2 * (P & 1)) * 384 + t * 32) for t in range(3) for P in range(4)]
        chunks.append(dict(srd=S_WT, base=SB, dma=[(VDM + j % 3, (ks * 64 + 8 * (j // 3)) * 12288) for j in range(6)], taddr=VTA, reads=reads))
    for i in range(12):
        j, P = divmod(i, 4)
        reads = [(dstreg(('o', ct, j), P), ct * 32) for ct in range(10)]
        chunks.append(dict(srd=S_MISC, base=SB2, dma=[(VL16, i * 20480 + k * 1024) for k in range(5)], taddr=VTA2, reads=reads))
    load_weights(A, chunks, 24576, 6, VTB)
    G_, R_, Q_ = 28, 29, 30
    lane_parts(A, G_, R_, Q_)
    A('s_mul_i32 %s, %s, 24576' % (s(ST0), s(SW)))
    A('s_add_u32 %s, %s, %d' % (s(ST0), s(ST0), WL))
    A('v_add_u32 %s, %s, %s' % (v(VWL), s(ST0), v(VL16)))
    for i in range(12):
        for h in range(2):
            A('ds_write_b128 %s, %s offset:%d' % (v(VWL), v(32 + i * 8 + 4 * h, 4), i * 2048 + h * 1024))
    A('s_waitcnt lgkmcnt(0)')
    prof(A, 0)
    rec_common_setup(A, VP, VMW4, VMW2, VIDX, VT)
    A('v_and_b32 %s, 15, %s' % (v(VVW), v(VLANE)))
    A('v_lshlrev_b32 %s, 4, %s' % (v(VVW), v(VVW)))
    A('v_and_b32 %s, 1, %s' % (v(VT), v(G_)))
    A('v_lshl_add_u32 %s, %s, 3, %s' % (v(VVW), v(VT), v(VVW)))
    A('v_lshrrev_b32 %s, 1, %s' % (v(VT), v(G_)))
    A('v_lshl_add_u32 %s, %s, 2, %s' % (v(VVW), v(VT), v(VVW)))
    A('s_mul_i32 %s, %s, 768' % (s(ST0), s(SW)))
    A('s_add_u32 %s, %s, %d' % (s(ST0), s(ST0), VL))
    A('v_add_u32 %s, %s, %s' % (v(VVW), s(ST0), v(VVW)))
    A('v_lshrrev_b32 %s, 1, %s' % (v(VVR), v(G_)))
    A('v_lshlrev_b32 %s, 5, %s' % (v(VVR), v(VVR)))
    A('v_and_b32 %s, 1, %s' % (v(VT), v(G_)))
    A('v_lshl_add_u32 %s, %s, 3, %s' % (v(VVR), v(VT), v(VVR)))
    A('v_and_b32 %s, 2, %s' % (v(VT), v(Q_)))
    A('v_add_u32 %s, %s, %s' % (v(VVR), v(VT), v(VVR)))
    A('v_lshrrev_b32 %s, 1, %s' % (v(VT), v(R_)))
    A('v_lshl_add_u32 %s, %s, 4, %s' % (v(VVR), v(VT), v(VVR)))
    A('v_and_b32 %s, 1, %s' % (v(VT), v(R_)))
    A('v_add_u32 %s, %s, %s' % (v(VVR), v(VT), v(VVR)))
    A('v_lshlrev_b32 %s, 4, %s' % (v(VVR), v(VVR)))
    A('v_and_b32 %s, 1, %s' % (v(VT), v(Q_)))
    A('v_lshl_add_u32 %s, %s, 3, %s' % (v(VVR), v(VT), v(VVR)))
    A('v_add_u32 %s, %d, %s' % (v(VVR), VL, v(VVR)))
    A('v_and_b32 %s, 15, %s' % (v(VUS), v(VLANE)))
    A('v_lshlrev_b32 %s, 4, %s' % (v(VUS), v(VUS)))
    A('v_and_b32 %s, 1, %s' % (v(VT), v(G_)))
    A('v_lshl_add_u32 %s, %s, 3, %s' % (v(VUS), v(VT), v(VUS)))
    A('v_lshrrev_b32 %s, 1, %s' % (v(VT), v(G_)))
    A('v_lshl_add_u32 %s, %s, 14, %s' % (v(VUS), v(VT), v(VUS)))
    wait_init(A, VZ, VT)
    A('s_bfe_u32 %s, %s, 0x10002' % (s(ST0), s(SSEL)))
    A('s_lshl_b32 %s, %s, 13' % (s(ST0), s(ST0)))
    A('s_lshl_b32 %s, %s, 7' % (s(SCAN), s(SIDX)))
    A('s_add_u32 %s, %s, %s' % (s(SCAN), s(SCAN), s(ST0)))
    A('s_add_u32 %s, %s, 0x%x' % (s(SCAN), s(SCAN), CANB + 32 * 128))
    A('s_mul_i32 %s, %s, %d' % (s(SUB), s(SW), 10 * 16384))
    A('s_add_u32 %s, %s, %s' % (s(SUB), s(SUB), s(ST0)))
    A('s_lshl_b32 %s, %s, 8' % (s(ST0), s(SIDX)))
    A('s_add_u32 %s, %s, %s' % (s(SUB), s(SUB), s(ST0)))
    A('s_add_u32 %s, %s, 0x%x' % (s(SUB), s(SUB), URING))
    def stg_load(lg, pi):
        for m in range(2):
            for h in range(2):
                lg.issue('ds_read_b128 %s, %s offset:%d' % (v(STG + m * 8 + 4 * h, 4), v(VWL), (2 * pi + m) * 2048 + h * 1024), ('stg', pi))
    A('s_mov_b32 %s, 0' % s(SSEG))
    prof(A, 1)
    A.label('L_loop_VO')
    lg = Lg(A)
    stg_load(lg, 0)
    VACC = 20
    for i in range(40): A('v_mov_b32 %s, 0' % v(ACC + i))
    for i in range(12): A('v_mov_b32 %s, 0' % v(VA + i))
    comm_base(A, SCOMM, SSEG)
    A('s_add_u32 %s, %s, 1' % (s(SNEXT), s(SSEG)))
    A('s_and_b32 %s, %s, 1' % (s(SU), s(SSEG)))
    A('s_mul_i32 %s, %s, %d' % (s(SU), s(SU), 40 * 16384))
    A('s_add_u32 %s, %s, %s' % (s(SU), s(SU), s(SUB)))
    poll_mem(A, VP, MEM, VMW4, VMW2, SCOMM, VT)
    lg.q = []
    prof(A, 2)
    for ks in range(10):
        lg.issue('ds_read_b128 %s, %s offset:%d' % (v(MEM + 4 * ks, 4), v(VL16), MEML + ks * 1024), ('mem', ks))
    def bsrc(key):
        if key in regf: return wreg(regf.index(key))
        i = ldsf.index(key)
        if i % 2 == 0: lg.wait(('stg', i // 2))
        return v(STG + (i & 1) * 8, 8)
    def after(key):
        if key in ldsf:
            i = ldsf.index(key)
            if i % 2 == 1 and i // 2 + 1 < 6: stg_load(lg, i // 2 + 1)
    n = 0
    for ks in range(10):
        lg.wait(('mem', ks))
        for t in range(3):
            key = ('v', ks, t)
            A('v_smfmac_f32_16x16x64_bf16 %s, %s, %s, %s' % (v(VA + 4 * t, 4), v(MEM + 4 * ks, 4), bsrc(key), v(VIDX)))
            after(key)
            n += 1
            if n == CAN_POS_VO: canary(A, VZ, VT, SCAN, SNEXT)
    for t in range(3):
        d = VA + 4 * t
        A('v_permlane32_swap_b32 %s, %s' % (v(d), v(d + 2)))
        A('v_permlane32_swap_b32 %s, %s' % (v(d + 1), v(d + 3)))
        A('v_add_f32 %s, %s, %s' % (v(d), v(d), v(d + 2)))
        A('v_add_f32 %s, %s, %s' % (v(d + 1), v(d + 1), v(d + 3)))
        A('v_cvt_pk_bf16_f32 %s, %s, %s' % (v(d), v(d), v(d + 1)))
        lg.issue('ds_write_b32 %s, %s offset:%d' % (v(VVW), v(d), t * 256))
    lg.all()
    A('s_barrier')
    for j in range(3):
        for Q in range(2):
            lg.issue('ds_read_b64_tr_b16 %s, %s offset:%d' % (v(VA + 4 * j + 2 * Q, 2), v(VVR), (64 * j + 4 * Q) * 16), ('v', j))
    def post(cp):
        x = ACC + cp * 8; y = x + 4
        ops = []
        for r in range(4): ops.append('v_permlane32_swap_b32 %s, %s' % (v(x + r), v(y + r)))
        for r in range(4): ops.append('v_add_f32 %s, %s, %s' % (v(x + r), v(x + r), v(y + r)))
        ops.append('v_cvt_pk_bf16_f32 %s, %s, %s' % (v(x), v(x), v(x + 1)))
        ops.append('v_cvt_pk_bf16_f32 %s, %s, %s' % (v(x + 1), v(x + 2), v(x + 3)))
        ops.append('v_min_u32 %s, 0xfffffffe, %s' % (v(x), v(x)))
        ops.append('v_min_u32 %s, 0xfffffffe, %s' % (v(x + 1), v(x + 1)))
        ops.append('s_add_u32 s60, %s, %d' % (s(SU), cp * 32768))
        ops.append('buffer_store_dwordx2 %s, %s, %s, s60 offen sc1' % (v(x, 2), v(VUS), s(S_WS, 4)))
        return ops
    pend = []; ready = []
    for cp in range(5):
        c = 0
        for j in range(3):
            if cp == 0: lg.wait(('v', j))
            for ct in (2 * cp, 2 * cp + 1):
                key = ('o', ct, j)
                A('v_smfmac_f32_16x16x64_bf16 %s, %s, %s, %s' % (v(ACC + ct * 4, 4), v(VA + 4 * j, 4), bsrc(key), v(VIDX)))
                after(key)
                c += 1
                if c == 4: ready += pend; pend = []
                for _ in range(2 if len(ready) < 8 else 3):
                    if ready: A(ready.pop(0))
        pend = post(cp)
    for x in ready + pend: A(x)
    A('s_mov_b32 %s, %s' % (s(SSEG), s(SNEXT)))
    prof(A, 3)
    A('s_cmp_lt_u32 %s, %d' % (s(SSEG), Cfg.nseg))
    A('s_cbranch_scc1 L_loop_VO')
    A('s_branch L_exit')

def role_S2(A):
    VZ, VT = 3, 4
    VIDX = 6
    VPM = 7
    VMS = 8
    VHS = 9
    VXR = 10
    VCAN = 11
    VFI = 12
    XR = 13
    D = 16
    FT = 20
    SENT = 24
    PXR, PMR, UR = 32, 96, 112
    ULDS = 65536
    VUL = 14
    SCOMM, SU, SUB, SCAN, SNEXT, SVO, SFLIN, SFL, SPXO, SH, SXO, SMS, SWV = 62, 63, 64, 65, 66, 67, 68, 69, 70, 71, 72, 73, 61
    SEV, SOD = 74, 76
    A.label('L_role_S2')
    A('v_and_b32 %s, 8, %s' % (v(VT), v(VLANE)))
    A('v_cmp_eq_u32 vcc, 0, %s' % v(VT))
    A('v_mov_b32 %s, 0xeeee' % v(VIDX))
    A('v_mov_b32 %s, 0x4444' % v(VT))
    A('v_cndmask_b32 %s, %s, %s, vcc' % (v(VIDX), v(VIDX), v(VT)))
    A('v_lshrrev_b32 %s, 4, %s' % (v(VT), v(VLANE)))
    A('v_lshlrev_b32 %s, 8, %s' % (v(VPM), v(VT)))
    A('v_and_b32 %s, 15, %s' % (v(VT), v(VLANE)))
    A('v_lshl_add_u32 %s, %s, 3, %s' % (v(VPM), v(VT), v(VPM)))
    M_, CP = 28, 29
    A('v_bfe_u32 %s, %s, 4, 1' % (v(M_), v(VLANE)))
    A('v_lshlrev_b32 %s, 2, %s' % (v(M_), v(M_)))
    A('v_lshrrev_b32 %s, 5, %s' % (v(VT), v(VLANE)))
    A('v_lshl_add_u32 %s, %s, 1, %s' % (v(M_), v(VT), v(M_)))
    A('v_and_b32 %s, 1, %s' % (v(VT), v(VLANE)))
    A('v_add_u32 %s, %s, %s' % (v(M_), v(VT), v(M_)))
    A('v_bfe_u32 %s, %s, 1, 3' % (v(CP), v(VLANE)))
    A('v_and_b32 %s, 3, %s' % (v(VT), v(CP)))
    A('v_lshlrev_b32 %s, 2, %s' % (v(VT), v(VT)))
    A('v_lshl_add_u32 %s, %s, 4, %s' % (v(VT), v(M_), v(VT)))
    A('v_lshrrev_b32 %s, 2, %s' % (v(VT + 1), v(CP)))
    A('v_lshl_add_u32 %s, %s, 7, %s' % (v(VMS), v(VT + 1), v(VT)))
    A('v_lshl_add_u32 %s, %s, 8, %s' % (v(VHS), v(VT + 1), v(VT)))
    A('v_mul_u32_u24 %s, 1280, %s' % (v(VXR), v(M_)))
    A('v_lshl_add_u32 %s, %s, 2, %s' % (v(VXR), v(CP), v(VXR)))
    A('v_lshlrev_b32 %s, 7, %s' % (v(VCAN), v(VLANE)))
    flag_voff(A, VFI, 32)
    A('v_add_u32 %s, %d, %s' % (v(VUL), ULDS, v(VL16)))
    for i in range(4): A('v_mov_b32 %s, -1' % v(SENT + i))
    A('s_mov_b32 %s, 0x55555555' % s(SEV)); A('s_mov_b32 %s, 0x55555555' % s(SEV + 1))
    A('s_mov_b32 %s, 0xaaaaaaaa' % s(SOD)); A('s_mov_b32 %s, 0xaaaaaaaa' % s(SOD + 1))
    A('s_mov_b32 %s, 0x%x' % (s(SFLIN), FLAGS + (FL_W + 96) * 128))
    flag_addr(A, SFL, SIDX, FL_H)
    A('s_and_b32 %s, %s, 1' % (s(SWV), s(SW)))
    A('s_lshl_b32 %s, %s, 14' % (s(SWV), s(SWV)))
    A('s_lshl_b32 %s, %s, 15' % (s(SVO), s(SIDX)))
    A('s_add_u32 %s, %s, %s' % (s(SVO), s(SVO), s(SWV)))
    A('s_add_u32 %s, %s, 0x%x' % (s(SVO), s(SVO), VO))
    A('s_mul_i32 %s, %s, 20480' % (s(SPXO), s(SW)))
    A('s_add_u32 %s, %s, 0x%x' % (s(SPXO), s(SPXO), PX))
    A('s_lshr_b32 %s, %s, 1' % (s(ST0), s(SW)))
    A('s_mul_i32 %s, %s, 20480' % (s(SH), s(ST0)))
    A('s_lshl_b32 %s, %s, 9' % (s(ST0), s(SIDX)))
    A('s_add_u32 %s, %s, %s' % (s(SH), s(SH), s(ST0)))
    A('s_and_b32 %s, %s, 1' % (s(ST0), s(SW)))
    A('s_lshl_b32 %s, %s, 7' % (s(ST0), s(ST0)))
    A('s_add_u32 %s, %s, %s' % (s(SH), s(SH), s(ST0)))
    A('s_add_u32 %s, %s, 0x%x' % (s(SH), s(SH), HF))
    A('s_mul_i32 %s, %s, %d' % (s(SXO), s(SW), 8 * 1280))
    A('s_lshl_b32 %s, %s, 5' % (s(ST0), s(SIDX)))
    A('s_add_u32 %s, %s, %s' % (s(SXO), s(SXO), s(ST0)))
    A('s_lshl_b32 %s, %s, 8' % (s(SMS), s(SIDX)))
    A('s_add_u32 %s, %s, %d' % (s(SMS), s(SMS), U_MEM))
    A('s_lshr_b32 %s, %s, 13' % (s(ST0), s(SMS)))
    A('s_lshl_b32 %s, %s, 13' % (s(ST0), s(ST0)))
    A('s_add_u32 %s, %s, %s' % (s(SMS), s(SMS), s(ST0)))
    wait_init(A, VZ, VT)
    A('s_bfe_u32 %s, %s, 0x10002' % (s(ST0), s(SSEL)))
    A('s_lshl_b32 %s, %s, 13' % (s(ST0), s(ST0)))
    A('s_add_u32 %s, %s, 0x%x' % (s(SCAN), s(ST0), CANB))
    A('s_lshl_b32 %s, %s, 14' % (s(SUB), s(SIDX)))
    A('s_add_u32 %s, %s, %s' % (s(SUB), s(SUB), s(ST0)))
    A('s_add_u32 %s, %s, 0x%x' % (s(SUB), s(SUB), URING))

    def vo_dma(want_s, slot_s):
        L = A.newlabel('Lv')
        A('s_cmp_lt_u32 %s, 2' % s(SW))
        A('s_cbranch_scc1 %s' % L)
        poll4_ge(A, VFI, s(SFLIN), s(want_s), FT, sleep=2)
        A('s_add_u32 %s, %s, %s' % (s(ST0), s(slot_s), s(SWV)))
        for q in range(4):
            A('s_add_u32 m0, %s, %d' % (s(ST0), q * 4096))
            A('s_add_u32 s60, %s, %d' % (s(SVO), q * 4096))
            for j in range(4):
                A('buffer_load_dwordx4 %s, %s, s60 offen offset:%d sc1 lds' % (v(VL16), s(S_WS, 4), j * 1024))
        A.label(L)
        A('s_add_u32 %s, %s, %d' % (s(SVO), s(SVO), 40 * 32768))
    def vo_read(slot_s):
        A('v_add_u32 %s, %s, %s' % (v(VT), s(slot_s), v(VL16)))
        for h in range(32):
            A('ds_read_b128 %s, %s offset:%d' % (a(4 * h, 4), v(VT), h * 1024))
    def p_loads(base_s, mapped):
        f = xp if mapped else (lambda u: u)
        for q in range(4):
            A('s_add_u32 s60, %s, %d' % (s(base_s), f(q * 4096)))
            for j in range(4):
                A('buffer_load_dwordx4 %s, %s, %s, s60 offen offset:%d sc1' % (v(PXR + (q * 4 + j) * 4, 4), v(VL16), s(S_WS, 4), j * 1024))
        A('s_add_u32 s60, %s, %d' % (s(base_s), f(U_PM)))
        for j in range(4):
            for jj in range(2):
                A('buffer_load_dwordx2 %s, %s, %s, s60 offen offset:%d sc1' % (v(PMR + 4 * j + 2 * jj, 2), v(VPM), s(S_WS, 4), j * 1024 + jj * 128))
    def compute():
        for i in range(4): A('v_mov_b32 %s, 0' % v(D + i))
        for i in range(16):
            A('s_waitcnt vmcnt(%d)' % (15 - i + 8))
            A('v_smfmac_f32_16x16x64_bf16 %s, %s, %s, %s' % (v(D, 4), v(PXR + 4 * i, 4), a(8 * i, 8), v(VIDX)))
        for j in range(4):
            A('s_waitcnt vmcnt(%d) lgkmcnt(0)' % (6 - 2 * j))
            A('v_smfmac_f32_16x16x64_bf16 %s, %s, %s, %s' % (v(D, 4), v(PMR + 4 * j, 4), v(UR + 8 * j, 8), v(VIDX)))
        A('v_permlane32_swap_b32 %s, %s' % (v(D), v(D + 2)))
        A('v_permlane32_swap_b32 %s, %s' % (v(D + 1), v(D + 3)))
        A('v_add_f32 %s, %s, %s' % (v(D), v(D), v(D + 2)))
        A('v_add_f32 %s, %s, %s' % (v(D + 1), v(D + 1), v(D + 3)))
    def check(retry, lo, n):
        OK = A.newlabel('Lok')
        A('v_cmp_u_f32 vcc, %s, %s' % (v(D), v(D + 1)))
        A('s_cbranch_vccz %s' % OK)
        A('v_mov_b32 %s, 0' % v(VT))
        for i in range(0, n, 2):
            A('v_max3_u32 %s, %s, %s, %s' % (v(VT), v(VT), v(lo + i), v(lo + i + 1)))
        A('v_cmp_eq_u32 vcc, -1, %s' % v(VT))
        A('s_cbranch_vccz %s' % OK)
        spin_dec(A)
        if Cfg.prof: A('s_add_u32 s100, s100, 1')
        A('s_branch %s' % retry)
        A.label(OK)
    def pack():
        A('s_mov_b64 vcc, %s' % s(SEV, 2))
        A('v_cndmask_b32_dpp %s, %s, %s, vcc quad_perm:[1,0,3,2] row_mask:0xf bank_mask:0xf' % (v(D + 2), v(D + 1), v(D)))
        A('s_mov_b64 vcc, %s' % s(SOD, 2))
        A('v_cndmask_b32_dpp %s, %s, %s, vcc quad_perm:[1,0,3,2] row_mask:0xf bank_mask:0xf' % (v(D + 3), v(D), v(D + 1)))
        A('v_cvt_pk_bf16_f32 %s, %s, %s' % (v(D), v(D + 2), v(D + 3)))

    A('s_mov_b32 %s, 1' % s(ST2)); A('s_mov_b32 %s, 0' % s(ST3))
    vo_dma(ST2, ST3)
    A('s_waitcnt vmcnt(0)')
    A('s_barrier')
    vo_read(ST3)
    A('s_mov_b32 %s, 2' % s(ST2)); A('s_mov_b32 %s, 32768' % s(ST3))
    vo_dma(ST2, ST3)
    A('s_mov_b32 %s, 0' % s(SSEG))
    prof(A, 1)
    A.label('L_loop_S2')
    A('s_add_u32 %s, %s, 1' % (s(SNEXT), s(SSEG)))
    A('s_and_b32 %s, %s, 1' % (s(ST3), s(SSEG)))
    A('s_lshl_b32 %s, %s, 13' % (s(ST2), s(ST3)))
    A('v_add_u32 %s, %s, %s' % (v(VT + 1), s(ST2), v(VUL)))
    A('s_cmp_lg_u32 %s, 0' % s(SW))
    A('s_cbranch_scc1 L_S2_join')
    comm_base(A, SCOMM, SSEG)
    A('s_mul_i32 %s, %s, %d' % (s(SU), s(ST3), 40 * 16384))
    A('s_add_u32 %s, %s, %s' % (s(SU), s(SU), s(SUB)))
    comm_base(A, ST3, SNEXT)
    A('s_add_u32 %s, %s, %s' % (s(ST3), s(ST3), s(SMS)))
    A('s_add_u32 %s, %s, 4096' % (s(ST2), s(SU)))
    A('s_waitcnt lgkmcnt(0)')
    poll_ge(A, S_WS, VCAN, s(SCAN), s(SNEXT), VT, sleep=0)
    prof(A, 2)
    A.label('L_S2_retry')
    for j in range(8):
        A('buffer_load_dwordx4 %s, %s, %s, %s offen offset:%d sc1' % (v(UR + 4 * j, 4), v(VL16), s(S_WS, 4), s(SU if j < 4 else ST2), (j & 3) * 1024))
    p_loads(SCOMM, True)
    compute()
    check('L_S2_retry', PXR, 112)
    pack()
    A('v_min_u32 %s, 0xfffffffe, %s' % (v(D), v(D)))
    A('s_cmp_ge_u32 %s, %d' % (s(SNEXT), NSEG))
    A('s_cbranch_scc1 L_S2_nomem')
    A('buffer_store_dword %s, %s, %s, %s offen sc1' % (v(D), v(VMS), s(S_WS, 4), s(ST3)))
    A.label('L_S2_nomem')
    prof(A, 3)
    for j in range(8):
        A('ds_write_b128 %s, %s offset:%d' % (v(VT + 1), v(UR + 4 * j, 4), j * 1024))
    for j in range(8):
        A('buffer_store_dwordx4 %s, %s, %s, %s offen offset:%d sc1' % (v(SENT, 4), v(VL16), s(S_WS, 4), s(SU if j < 4 else ST2), (j & 3) * 1024))
    A('s_waitcnt lgkmcnt(0)')
    A('s_branch L_S2_join2')
    A.label('L_S2_join')
    A('s_waitcnt vmcnt(0) lgkmcnt(0)')
    A.label('L_S2_join2')
    A('s_barrier')
    prof(A, 4)
    A('s_mov_b32 %s, 0x%x' % (s(SSPIN), SPIN))
    A('buffer_load_dword %s, %s, %s, %s offen' % (v(XR), v(VXR), s(S_X, 4), s(SXO)))
    for j in range(8):
        A('ds_read_b128 %s, %s offset:%d' % (v(UR + 4 * j, 4), v(VT + 1), j * 1024))
    A.label('L_S2_retry2')
    p_loads(SPXO, False)
    compute()
    check('L_S2_retry2', PXR, 80)
    pack()
    A('v_lshlrev_b32 %s, 16, %s' % (v(D + 1), v(D)))
    A('v_and_b32 %s, 0xffff0000, %s' % (v(D), v(D)))
    A('v_lshlrev_b32 %s, 16, %s' % (v(D + 2), v(XR)))
    A('v_and_b32 %s, 0xffff0000, %s' % (v(D + 3), v(XR)))
    A('v_add_f32 %s, %s, %s' % (v(D + 1), v(D + 1), v(D + 2)))
    A('v_add_f32 %s, %s, %s' % (v(D), v(D), v(D + 3)))
    A('v_cvt_pk_bf16_f32 %s, %s, %s' % (v(D), v(D + 1), v(D)))
    A('buffer_store_dword %s, %s, %s, %s offen sc1' % (v(D), v(VHS), s(S_WS, 4), s(SH)))
    prof(A, 5)
    A('s_and_b32 %s, %s, 1' % (s(ST3), s(SNEXT)))
    A('s_lshl_b32 %s, %s, 15' % (s(ST3), s(ST3)))
    vo_read(ST3)
    A('s_add_u32 %s, %s, 81920' % (s(SPXO), s(SPXO)))
    A('s_add_u32 %s, %s, 40960' % (s(SH), s(SH)))
    A('s_add_u32 %s, %s, 40960' % (s(SXO), s(SXO)))
    A('s_waitcnt vmcnt(0)')
    post_wflag(A, VZ, VT, SFL, SNEXT)
    A('s_mov_b32 %s, %s' % (s(SSEG), s(SNEXT)))
    prof(A, 6)
    A('s_cmp_ge_u32 %s, %d' % (s(SSEG), Cfg.nseg))
    A('s_cbranch_scc1 L_exit')
    A('s_add_u32 %s, %s, 2' % (s(ST2), s(SSEG)))
    A('s_cmp_gt_u32 %s, %d' % (s(ST2), Cfg.nseg))
    A('s_cbranch_scc1 L_loop_S2')
    A('s_xor_b32 %s, %s, 32768' % (s(ST3), s(ST3)))
    vo_dma(ST2, ST3)
    prof(A, 7)
    A('s_branch L_loop_S2')

def role_F2(A):
    VZ, VT = 3, 4
    VDM, VTA, VTB, VG, VR, VQ = 6, 7, 8, 9, 10, 11
    VFI, VRW, VRR, VHL, VOS = 12, 13, 14, 15, 16
    FT = 20
    HR = 24
    ACC = 32
    AF = 64
    RD = 160
    RROW = 272
    RB_ = 4 * 32 * RROW
    SB, SIN, SH, SO, SFLIN = 71, 72, 73, 62, 63
    A.label('L_role_F2')
    srd(A, S_WT, P_W2, 1536 * 640 * 2)
    srd(A, S_MISC, P_OUT, 2048 * 640 * 2)
    lane_parts(A, VG, VR, VQ)
    A('s_lshl_b32 %s, %s, 7' % (s(SB), s(SIDX)))
    A('s_mul_i32 %s, %s, %d' % (s(ST0), s(SW), 384 * 1280))
    A('s_add_u32 %s, %s, %s' % (s(SB), s(SB), s(ST0)))
    A('v_lshrrev_b32 %s, 3, %s' % (v(VDM), v(VLANE)))
    A('v_mul_u32_u24 %s, 1280, %s' % (v(VDM), v(VDM)))
    A('v_and_b32 %s, 7, %s' % (v(VT), v(VLANE)))
    A('v_lshl_add_u32 %s, %s, 4, %s' % (v(VDM), v(VT), v(VDM)))
    A('v_lshl_add_u32 %s, %s, 2, %s' % (v(VTA), v(VG), v(VR)))
    A('v_lshlrev_b32 %s, 7, %s' % (v(VTA), v(VTA)))
    A('v_lshl_add_u32 %s, %s, 3, %s' % (v(VTA), v(VQ), v(VTA)))
    A('s_lshl_b32 %s, %s, 12' % (s(ST0), s(SW)))
    A('v_add_u32 %s, %s, %s' % (v(VTA), s(ST0), v(VTA)))
    chunks = []
    for i in range(12):
        reads = [(a((i * 4 + ct) * 4 + 2 * p, 2), p * 2048 + ct * 32) for ct in range(4) for p in range(2)]
        chunks.append(dict(srd=S_WT, base=SB, dma=[(VDM, (32 * i + 8 * j) * 1280) for j in range(4)], taddr=VTA, reads=reads))
    load_weights(A, chunks, 16384, 8, VTB)
    flag_voff(A, VFI, 12)
    A('s_mov_b32 %s, 0x%x' % (s(SFLIN), FLAGS + FL_A * 128))
    A('v_and_b32 %s, 15, %s' % (v(VT), v(VLANE)))
    A('v_mul_u32_u24 %s, %d, %s' % (v(VRW), RROW, v(VT)))
    A('v_lshl_add_u32 %s, %s, 4, %s' % (v(VRW), v(VG), v(VRW)))
    A('s_mul_i32 %s, %s, %d' % (s(ST0), s(SW), 32 * RROW))
    A('v_add_u32 %s, %s, %s' % (v(VRW), s(ST0), v(VRW)))
    TK, CG = 28, 29
    A('v_lshrrev_b32 %s, 3, v0' % v(TK))
    A('v_and_b32 %s, 7, v0' % v(CG))
    A('v_mul_u32_u24 %s, %d, %s' % (v(VRR), RROW, v(TK)))
    A('v_lshl_add_u32 %s, %s, 5, %s' % (v(VRR), v(CG), v(VRR)))
    A('v_mul_u32_u24 %s, 1280, %s' % (v(VOS), v(TK)))
    A('v_lshl_add_u32 %s, %s, 4, %s' % (v(VOS), v(CG), v(VOS)))
    A('v_lshrrev_b32 %s, 4, %s' % (v(VT), v(TK)))
    A('v_mul_u32_u24 %s, 20480, %s' % (v(VHL), v(VT)))
    A('v_lshl_add_u32 %s, %s, 8, %s' % (v(VHL), v(CG), v(VHL)))
    A('v_and_b32 %s, 15, %s' % (v(VT), v(TK)))
    A('v_lshl_add_u32 %s, %s, 4, %s' % (v(VHL), v(VT), v(VHL)))
    A('s_lshl_b32 %s, %s, 11' % (s(SH), s(SIDX)))
    A('s_add_u32 %s, %s, 0x%x' % (s(SH), s(SH), HF))
    A('s_lshl_b32 %s, %s, 7' % (s(SO), s(SIDX)))
    A('s_mul_i32 %s, %s, 12288' % (s(SIN), s(SW)))
    A('s_add_u32 %s, %s, 0x%x' % (s(SIN), s(SIN), ACT))
    prof(A, 0)
    wait_init(A, VZ, VT)
    A('s_mov_b32 %s, 0' % s(SSEG))
    prof(A, 1)
    A.label('L_loop_F2')
    for buf in range(2):
        A('s_add_u32 %s, %s, 1' % (s(SSEG), s(SSEG)))
        poll4_ge(A, VFI, s(SFLIN), s(SSEG), FT, sleep=2)
        prof(A, 2)
        A('buffer_load_dwordx4 %s, %s, %s, %s offen sc1' % (v(HR, 4), v(VHL), s(S_WS, 4), s(SH)))
        for q in range(3):
            A('s_add_u32 %s, %s, %d' % (s(ST0), s(SIN), q * 4096))
            A('s_add_u32 %s, %s, %d' % (s(ST1), s(SIN), q * 4096 + 49152))
            for j in range(4):
                for tt in range(2):
                    A('buffer_load_dwordx4 %s, %s, %s, %s offen offset:%d sc1' % (v(AF + ((q * 4 + j) * 2 + tt) * 4, 4), v(VL16), s(S_WS, 4), s((ST0, ST1)[tt]), j * 1024))
        for i in range(12):
            for tt in range(2):
                A('s_waitcnt vmcnt(%d)' % (23 - (2 * i + tt)))
                for ct in range(4):
                    d = v(ACC + (tt * 4 + ct) * 4, 4)
                    A('v_mfma_f32_16x16x32_bf16 %s, %s, %s, %s' % (d, a((i * 4 + ct) * 4, 4), v(AF + (2 * i + tt) * 4, 4), '0' if i == 0 else d))
        for tt in range(2):
            for ct in range(4):
                A('ds_write_b128 %s, %s offset:%d' % (v(VRW), v(ACC + (tt * 4 + ct) * 4, 4), tt * 16 * RROW + ct * 64))
        A('s_waitcnt lgkmcnt(0)')
        A('s_barrier')
        prof(A, 3)
        for w in range(4):
            for h in range(2):
                A('ds_read_b128 %s, %s offset:%d' % (v(RD + w * 8 + 4 * h, 4), v(VRR), w * 32 * RROW + h * 16))
        op = 'v_add_u32' if buf == 0 else 'v_subrev_u32'
        A('%s %s, %d, %s' % (op, v(VRW), RB_, v(VRW)))
        A('%s %s, %d, %s' % (op, v(VRR), RB_, v(VRR)))
        A('s_waitcnt lgkmcnt(0)')
        for i in range(8):
            A('v_add_f32 %s, %s, %s' % (v(RD + i), v(RD + i), v(RD + 8 + i)))
            A('v_add_f32 %s, %s, %s' % (v(RD + 16 + i), v(RD + 16 + i), v(RD + 24 + i)))
        for i in range(8):
            A('v_add_f32 %s, %s, %s' % (v(RD + i), v(RD + i), v(RD + 16 + i)))
        for i in range(4):
            p = RD + 8 + i; lo = RD + 12; hi = RD + 13; xl = RD + 14; xh = RD + 15
            A('v_cvt_pk_bf16_f32 %s, %s, %s' % (v(p), v(RD + 2 * i), v(RD + 2 * i + 1)))
            A('v_lshlrev_b32 %s, 16, %s' % (v(lo), v(p)))
            A('v_and_b32 %s, 0xffff0000, %s' % (v(hi), v(p)))
            A('v_lshlrev_b32 %s, 16, %s' % (v(xl), v(HR + i)))
            A('v_and_b32 %s, 0xffff0000, %s' % (v(xh), v(HR + i)))
            A('v_add_f32 %s, %s, %s' % (v(lo), v(lo), v(xl)))
            A('v_add_f32 %s, %s, %s' % (v(hi), v(hi), v(xh)))
            A('v_cvt_pk_bf16_f32 %s, %s, %s' % (v(p), v(lo), v(hi)))
        A('buffer_store_dwordx4 %s, %s, %s, %s offen' % (v(RD + 8, 4), v(VOS), s(S_MISC, 4), s(SO)))
        A('s_add_u32 %s, %s, 40960' % (s(SO), s(SO)))
        A('s_add_u32 %s, %s, 40960' % (s(SH), s(SH)))
        A('s_add_u32 %s, %s, 98304' % (s(SIN), s(SIN)))
        prof(A, 4)
    A('s_cmp_lt_u32 %s, %d' % (s(SSEG), Cfg.nseg))
    A('s_cbranch_scc1 L_loop_F2')
    A('s_branch L_exit')
```

```python
import sys, os
sys.path.insert(0, os.path.dirname(os.path.abspath(__file__)))
from asmlib import *

NAME = 'sequential_preLN__memory_aug_recurrent_mem_tr__dense_activation_mish__prompt'
MB = 1 << 20
COMM = 0
U_P = 0
U_PM = 16384
U_MEM = 20480
URING = 4 * MB
CANB = URING + 80 * 16384
PROBE2 = URING + 81 * 16384
FLAGS = 6 * MB
FL_W, FL_H, FL_A = 0, 128, 176
STAT1 = 6 * MB + 65536
PX = 7 * MB
HF = 13 * MB
ACT = 16 * MB
QKV = 24 * MB
VO = 96 * MB
WS_BYTES = 256 * MB
NSEG = 64
SPIN = 1 << 20
NPROBE = 5
def xp(u):
    return ((u >> 13) << 14) | (u & 8191)

SW = 3
S_WS, S_WT, S_X, S_DBG, S_MISC = 4, 8, 12, 16, 20
SIDX, SSEG, SSEL, SSPIN = 24, 25, 26, 27
ST0, ST1, ST2, ST3 = 28, 29, 30, 31
P_X, P_MEM0, P_WQ, P_WK, P_WV, P_WO = 32, 34, 36, 38, 40, 42
P_W1, P_B1, P_W2, P_OUT, P_DBG, P_WS = 48, 50, 52, 54, 56, 58
VLANE, VL16 = 1, 2

class Cfg:
    roles = {'G', 'O', 'QK', 'VO', 'S2', 'F1', 'F2'}
    nseg = NSEG
    prof = False
PROF = 23 * MB

def prof_init(A):
    if not Cfg.prof: return
    for i in range(86, 102): A('s_mov_b32 s%d, 0' % i)
    A('s_memtime s[82:83]'); A('s_waitcnt lgkmcnt(0)'); A('s_mov_b32 s84, s82')
def prof(A, i):
    if not Cfg.prof: return
    A('s_memtime s[82:83]'); A('s_waitcnt lgkmcnt(0)')
    A('s_sub_u32 s85, s82, s84'); A('s_add_u32 s%d, s%d, s85' % (86 + i, 86 + i)); A('s_mov_b32 s84, s82')
def prof_dump(A):
    if not Cfg.prof: return
    A('s_lshl_b32 s85, s2, 2'); A('s_add_u32 s85, s85, %s' % s(SW)); A('s_lshl_b32 s85, s85, 6'); A('s_add_u32 s85, s85, 0x%x' % PROF)
    A('s_mov_b64 exec, 1'); A('v_mov_b32 v3, 0')
    for i in range(16):
        A('v_mov_b32 v4, s%d' % (86 + i))
        A('buffer_store_dword v4, v3, %s, s85 offen offset:%d' % (s(S_WS, 4), 4 * i))
    A('s_waitcnt vmcnt(0)')

def srd(A, d, ptr, nbytes):
    A('s_mov_b32 %s, %s' % (s(d), s(ptr)))
    A('s_and_b32 %s, %s, 0xffff' % (s(d + 1), s(ptr + 1)))
    A('s_mov_b32 %s, 0x%x' % (s(d + 2), nbytes))
    A('s_mov_b32 %s, 0x20000' % s(d + 3))

def spin_dec(A):
    A('s_sub_u32 %s, %s, 1' % (s(SSPIN), s(SSPIN)))
    A('s_cbranch_scc1 L_abort')

def poll_ge(A, srdreg, voff, soff, want, vt, sleep=1, out_s=None):
    L = A.newlabel('Lp'); D = A.newlabel('Ld')
    A('s_mov_b32 %s, 0x%x' % (s(SSPIN), SPIN))
    A.label(L)
    A('buffer_load_dword %s, %s, %s, %s offen sc1' % (v(vt), v(voff), s(srdreg, 4), soff))
    A('s_waitcnt vmcnt(0)')
    A('v_cmp_gt_u32 vcc, %s, %s' % (want, v(vt)))
    A('s_cbranch_vccz %s' % D)
    spin_dec(A)
    if sleep: A('s_sleep %d' % sleep)
    A('s_branch %s' % L)
    A.label(D)
    if out_s is not None:
        A('v_readfirstlane_b32 %s, %s' % (s(out_s), v(vt)))

def wait_init(A, vz, vt):
    A('v_mov_b32 %s, 0' % v(vz))
    poll_ge(A, S_DBG, vz, '0', '64', vt, sleep=4)
    A('buffer_load_dword %s, %s, %s, 0 offen offset:4 sc1' % (v(vt), v(vz), s(S_DBG, 4)))
    A('s_waitcnt vmcnt(0)')
    A('v_readfirstlane_b32 %s, %s' % (s(SSEL), v(vt)))
    A('s_and_b32 %s, %s, 7' % (s(SSEL), s(SSEL)))

def post_flag(A, vz, vt, soff, val_s):
    L = A.newlabel('Lf')
    A('s_cmp_lg_u32 %s, 0' % s(SW))
    A('s_cbranch_scc1 %s' % L)
    A('v_mov_b32 %s, %s' % (v(vt), s(val_s)))
    A('s_mov_b64 exec, 1')
    A('buffer_store_dword %s, %s, %s, %s offen sc1' % (v(vt), v(vz), s(S_WS, 4), s(soff)))
    A('s_mov_b64 exec, -1')
    A.label(L)

def flag_addr(A, dst, idx, base_line):
    A('s_lshl_b32 %s, %s, 7' % (s(dst), s(idx)))
    A('s_lshl_b32 %s, %s, 2' % (s(ST0), s(SW)))
    A('s_add_u32 %s, %s, %s' % (s(dst), s(dst), s(ST0)))
    A('s_add_u32 %s, %s, 0x%x' % (s(dst), s(dst), FLAGS + base_line * 128))

def flag_voff(A, r, n):
    A('v_cmp_gt_u32 vcc, %d, %s' % (n, v(VLANE)))
    A('v_lshlrev_b32 %s, 7, %s' % (v(r), v(VLANE)))
    A('v_cndmask_b32 %s, 0, %s, vcc' % (v(r), v(r)))

def post_wflag(A, vz, vt, soff, val_s):
    A('v_mov_b32 %s, %s' % (v(vt), s(val_s)))
    A('s_mov_b64 exec, 1')
    A('buffer_store_dword %s, %s, %s, %s offen sc1' % (v(vt), v(vz), s(S_WS, 4), s(soff)))
    A('s_mov_b64 exec, -1')

def poll4_ge(A, voff, soff, want, vt4, sleep=1, out_s=None):
    L = A.newlabel('Lp'); D = A.newlabel('Ld')
    A('s_mov_b32 %s, 0x%x' % (s(SSPIN), SPIN))
    A.label(L)
    A('buffer_load_dwordx4 %s, %s, %s, %s offen sc1' % (v(vt4, 4), v(voff), s(S_WS, 4), soff))
    A('s_waitcnt vmcnt(0)')
    A('v_min3_u32 %s, %s, %s, %s' % (v(vt4), v(vt4), v(vt4 + 1), v(vt4 + 2)))
    A('v_min_u32 %s, %s, %s' % (v(vt4), v(vt4), v(vt4 + 3)))
    A('v_cmp_gt_u32 vcc, %s, %s' % (want, v(vt4)))
    A('s_cbranch_vccz %s' % D)
    spin_dec(A)
    if sleep: A('s_sleep %d' % sleep)
    A('s_branch %s' % L)
    A.label(D)
    if out_s is not None:
        A('v_readfirstlane_b32 %s, %s' % (s(out_s), v(vt4)))

def load_weights(A, chunks, slot_bytes, nslots, vaddr_tmp):
    ns = sorted({len(c['dma']) for c in chunks})
    wl = {}
    for i, n in enumerate(ns):
        wl[n] = 61 + i
        A('s_mul_i32 %s, %s, %d' % (s(61 + i), s(SW), n * 1024))
    def issue(ci):
        c = chunks[ci]; n = len(c['dma']); slot = ci % nslots
        for j, (vo, k) in enumerate(c['dma']):
            A('s_add_u32 m0, %s, %d' % (s(wl[n]), slot * slot_bytes + j * 1024))
            A('s_add_u32 s60, %s, 0x%x' % (s(c['base']), k))
            A('buffer_load_dwordx4 %s, %s, s60 offen lds' % (v(vo), s(c['srd'], 4)))
    N = len(chunks)
    for ci in range(min(nslots - 1, N)):
        issue(ci)
    for ci in range(N):
        out = sum(len(chunks[k]['dma']) for k in range(ci + 1, min(ci + nslots - 1, N)))
        assert out <= 63
        A('s_waitcnt vmcnt(%d)' % out)
        A('s_barrier')
        if ci + nslots - 1 < N:
            issue(ci + nslots - 1)
        c = chunks[ci]; slot = ci % nslots
        A('v_add_u32 %s, 0x%x, %s' % (v(vaddr_tmp), slot * slot_bytes, v(c['taddr'])))
        for dst, imm in c['reads']:
            A('ds_read_b64_tr_b16 %s, %s offset:%d' % (dst, v(vaddr_tmp), imm))
        A('s_waitcnt lgkmcnt(0)')
    A('s_barrier')

def lane_parts(A, vg, vr, vq):
    A('v_lshrrev_b32 %s, 4, %s' % (v(vg), v(VLANE)))
    A('v_bfe_u32 %s, %s, 2, 2' % (v(vr), v(VLANE)))
    A('v_and_b32 %s, 3, %s' % (v(vq), v(VLANE)))

def dma_voffs_384(A, d, RS, t0, t1):
    for j in range(3):
        A('v_add_u32 %s, %d, %s' % (v(t0), 64 * j, v(VLANE)))
        A('v_mul_u32_u24 %s, 2731, %s' % (v(t1), v(t0)))
        A('v_lshrrev_b32 %s, 16, %s' % (v(t1), v(t1)))
        A('v_mul_u32_u24 %s, 24, %s' % (v(d + j), v(t1)))
        A('v_sub_u32 %s, %s, %s' % (v(t0), v(t0), v(d + j)))
        A('v_lshlrev_b32 %s, 4, %s' % (v(t0), v(t0)))
        A('v_mul_u32_u24 %s, %d, %s' % (v(t1), RS, v(t1)))
        A('v_add_u32 %s, %s, %s' % (v(d + j), v(t0), v(t1)))

def bf16_round(A, r):
    A('v_cvt_pk_bf16_f32 %s, %s, %s' % (v(r), v(r), v(r)))
    A('v_and_b32 %s, 0xffff0000, %s' % (v(r), v(r)))

def ln_finalize(A, s1, s2, m, r):
    A('v_mul_f32 %s, 0x3acccccd, %s' % (v(m), v(s1)))
    A('v_mul_f32 %s, 0x3acccccd, %s' % (v(r), v(s2)))
    A('v_fma_f32 %s, -%s, %s, %s' % (v(r), v(m), v(m), v(r)))
    A('v_max_f32 %s, 0, %s' % (v(r), v(r)))
    bf16_round(A, m); bf16_round(A, r)
    A('v_add_f32 %s, 0x3727c5ac, %s' % (v(r), v(r)))
    bf16_round(A, r)
    A('v_sqrt_f32 %s, %s' % (v(r), v(r)))
    bf16_round(A, r)
    A('v_rcp_f32 %s, %s' % (v(r), v(r)))

def stats_masks(A, sm, vt):
    A('v_bfe_u32 %s, %s, 2, 2' % (v(vt), v(VLANE)))
    A('v_lshrrev_b32 %s, 4, %s' % (v(vt + 1), v(VLANE)))
    A('v_cmp_eq_u32 %s, %s, %s' % (s(sm, 2), v(vt), v(vt + 1)))
    A('v_and_b32 %s, 1, %s' % (v(vt), v(VLANE)))
    A('v_cmp_eq_u32 %s, 1, %s' % (s(sm + 2, 2), v(vt)))
    A('v_and_b32 %s, 2, %s' % (v(vt), v(VLANE)))
    A('v_cmp_eq_u32 %s, 2, %s' % (s(sm + 4, 2), v(vt)))

def stats_exchange(A, SA, sm, VSW, VSR, PR, MEAN, RSTD):
    for tt in range(2):
        g = SA + tt * 8 + 4
        A('v_cndmask_b32 %s, %s, %s, %s' % (v(g), v(g), v(g + 1), s(sm + 2, 2)))
        A('v_cndmask_b32 %s, %s, %s, %s' % (v(g + 2), v(g + 2), v(g + 3), s(sm + 2, 2)))
        A('v_cndmask_b32 %s, %s, %s, %s' % (v(g), v(g), v(g + 2), s(sm + 4, 2)))
    A('s_mov_b64 exec, %s' % s(sm, 2))
    for tt in range(2):
        A('ds_write2_b32 %s, %s, %s offset0:%d offset1:%d' % (v(VSW), v(SA + tt * 8), v(SA + tt * 8 + 4), tt * 32, tt * 32 + 1))
    A('s_mov_b64 exec, -1')
    A('s_waitcnt lgkmcnt(0)')
    A('s_barrier')
    for tt in range(2):
        for w in range(4):
            A('ds_read_b64 %s, %s offset:%d' % (v(PR + (tt * 4 + w) * 2, 2), v(VSR), w * 256 + tt * 128))
    A('s_waitcnt lgkmcnt(0)')
    for tt in range(2):
        b = PR + tt * 8
        for k in range(2):
            A('v_add_f32 %s, %s, %s' % (v(b + k), v(b + k), v(b + 2 + k)))
            A('v_add_f32 %s, %s, %s' % (v(b + 4 + k), v(b + 4 + k), v(b + 6 + k)))
            A('v_add_f32 %s, %s, %s' % (v(b + k), v(b + k), v(b + 4 + k)))
        ln_finalize(A, b, b + 1, MEAN(tt), RSTD(tt))

def role_G(A, f1):
    NT = 2 if f1 else 3
    RB = 32 * NT * 4
    RS = 3072 if f1 else 12288
    VZ, VT = 3, 4
    VDM = 6
    VTA, VTB = 10, 11
    VG, VR, VQ = 12, 13, 14
    VX = 15
    VRD = (16, 17)
    VFI = 18
    VST8 = 19
    VSW, VSR = 20, 21
    VO4, VO2 = 22, 23
    VONE = 24
    VCS = 28
    VBI = 40
    ACC = 52
    BB = 76
    SA = 100
    PR = 116
    MR = 132
    OUT = 140
    TM = 152
    FT = 160
    XB = 40960
    STATS = 2 * XB
    SK = 70
    SB, SIN, SOUT, SFL, SFLIN, SV, SST, SPROG, SPRE = 71, 72, 73, 62, 63, 64, 65, 66, 67
    SM = 74
    tag = 'F1' if f1 else 'G'
    A.label('L_role_' + tag)
    if f1:
        srd(A, S_WT, P_W1, 640 * 1536 * 2)
        A('s_mul_i32 %s, %s, 256' % (s(SB), s(SIDX)))
    else:
        A('s_cmp_eq_u32 %s, 1' % s(SK))
        A('s_cselect_b32 %s, %s, %s' % (s(ST0), s(P_WK), s(P_WQ)))
        A('s_cselect_b32 %s, %s, %s' % (s(ST1), s(P_WK + 1), s(P_WQ + 1)))
        A('s_cmp_eq_u32 %s, 2' % s(SK))
        A('s_cselect_b32 %s, %s, %s' % (s(ST0), s(P_WV), s(ST0)))
        A('s_cselect_b32 %s, %s, %s' % (s(ST1), s(P_WV + 1), s(ST1)))
        srd(A, S_WT, ST0, 640 * 6144 * 2)
        A('s_mul_i32 %s, %s, 384' % (s(SB), s(SIDX)))
    A('s_mul_i32 %s, %s, %d' % (s(ST0), s(SW), 16 * RS))
    A('s_add_u32 %s, %s, %s' % (s(SB), s(SB), s(ST0)))
    lane_parts(A, VG, VR, VQ)
    if f1:
        A('v_mul_u32_u24 %s, %d, %s' % (v(VDM), RS, v(VG)))
        A('v_and_b32 %s, 15, %s' % (v(VT), v(VLANE)))
        A('v_lshl_add_u32 %s, %s, 4, %s' % (v(VDM), v(VT), v(VDM)))
        dma = [(VDM, 4 * j * RS) for j in range(4)]
    else:
        dma_voffs_384(A, VDM, RS, VT, VT + 1)
        dma = [(VDM + j % 3, 8 * (j // 3) * RS) for j in range(6)]
    A('v_lshl_add_u32 %s, %s, 3, %s' % (v(VTA), v(VG), v(VR)))
    A('v_mul_u32_u24 %s, %d, %s' % (v(VTA), RB, v(VTA)))
    A('v_lshl_add_u32 %s, %s, 3, %s' % (v(VTA), v(VQ), v(VTA)))
    A('s_mul_i32 %s, %s, %d' % (s(ST0), s(SW), NT * 32))
    A('v_add_u32 %s, %s, %s' % (v(VTA), s(ST0), v(VTA)))
    chunks = []
    for ci in range(10):
        reads = []
        for kk in range(2):
            ks = 2 * ci + kk
            for t in range(NT):
                for p in range(2):
                    reads.append((a((ks * NT + t) * 4 + 2 * p, 2), (32 * kk + 4 * p) * RB + t * 32))
        chunks.append(dict(srd=S_WT, base=SB, dma=[(vo, k + ci * 64 * RS) for vo, k in dma], taddr=VTA, reads=reads))
    load_weights(A, chunks, 64 * RB, 6, VTB)
    if f1:
        A('v_mov_b32 %s, %s' % (v(VX), v(VL16)))
        in_ks, in_tt, in_seg = 1024, 20480, 40960
        A('s_mul_i32 %s, %s, %d' % (s(SIN), s(SW), 5 * in_ks))
        A('s_add_u32 %s, %s, 0x%x' % (s(SIN), s(SIN), HF))
        insrd, inmod = S_WS, ' sc1'
    else:
        A('v_and_b32 %s, 15, %s' % (v(VT), v(VLANE)))
        A('v_mul_u32_u24 %s, 1280, %s' % (v(VX), v(VT)))
        A('v_lshl_add_u32 %s, %s, 4, %s' % (v(VX), v(VG), v(VX)))
        in_ks, in_tt, in_seg = 64, 20480, 40960
        A('s_mul_i32 %s, %s, %d' % (s(SIN), s(SW), 5 * in_ks))
        insrd, inmod = S_X, ''
    A('s_mul_i32 %s, %s, 5120' % (s(SV), s(SW)))
    def dma_ops(buf):
        ops = []
        for tt in range(2):
            for i in range(5):
                ops.append(['s_add_u32 m0, %s, %d' % (s(SV), buf * XB + tt * 20480 + i * 1024),
                            's_add_u32 s60, %s, %d' % (s(SIN), tt * in_tt + i * in_ks),
                            'buffer_load_dwordx4 %s, %s, s60 offen%s lds' % (v(VX), s(insrd, 4), inmod)])
        ops[-1].append('s_add_u32 %s, %s, %d' % (s(SIN), s(SIN), in_seg))
        return ops
    def dma_in(buf):
        for o in dma_ops(buf):
            for x in o: A(x)
    if not f1:
        dma_in(0)
    for i in range(4):
        A('v_mov_b32 %s, 0x3f803f80' % v(VONE + i))
    for ks in range(20):
        for t in range(NT):
            A('v_mfma_f32_16x16x32_bf16 %s, %s, %s, %s' % (v(VCS + 4 * t, 4), a((ks * NT + t) * 4, 4), v(VONE, 4), '0' if ks == 0 else v(VCS + 4 * t, 4)))
    if f1:
        srd(A, S_MISC, P_B1, 1536 * 2)
        A('s_lshl_b32 %s, %s, 8' % (s(ST0), s(SIDX)))
        A('s_lshl_b32 %s, %s, 6' % (s(ST1), s(SW)))
        A('s_add_u32 %s, %s, %s' % (s(ST0), s(ST0), s(ST1)))
        A('v_lshlrev_b32 %s, 3, %s' % (v(VT), v(VG)))
        for t in range(NT):
            A('buffer_load_dwordx2 %s, %s, %s, %s offen offset:%d' % (v(TM + 2 * t, 2), v(VT), s(S_MISC, 4), s(ST0), 32 * t))
        A('s_waitcnt vmcnt(0)')
        for t in range(NT):
            for h in range(2):
                A('v_lshlrev_b32 %s, 16, %s' % (v(VBI + 4 * t + 2 * h), v(TM + 2 * t + h)))
                A('v_and_b32 %s, 0xffff0000, %s' % (v(VBI + 4 * t + 2 * h + 1), v(TM + 2 * t + h)))
        stats_masks(A, SM, VT)
    A('v_mov_b32 %s, %s' % (v(VRD[0]), v(VL16)))
    A('v_add_u32 %s, %d, %s' % (v(VRD[1]), XB, v(VL16)))
    A('v_and_b32 %s, 15, %s' % (v(VT), v(VLANE)))
    A('v_lshlrev_b32 %s, 3, %s' % (v(VST8), v(VT)))
    A('v_add_u32 %s, %d, %s' % (v(VSR), STATS, v(VST8)))
    A('s_lshl_b32 %s, %s, 8' % (s(ST0), s(SW)))
    A('v_add_u32 %s, %s, %s' % (v(VSW), s(ST0), v(VSR)))
    A('v_mov_b32 %s, %s' % (v(VO4), v(VL16)))
    A('v_lshlrev_b32 %s, 3, %s' % (v(VO2), v(VLANE)))
    if f1:
        A('s_lshl_b32 %s, %s, 2' % (s(SOUT), s(SIDX)))
        A('s_add_u32 %s, %s, %s' % (s(SOUT), s(SOUT), s(SW)))
        A('s_lshl_b32 %s, %s, 10' % (s(SOUT), s(SOUT)))
        A('s_add_u32 %s, %s, 0x%x' % (s(SOUT), s(SOUT), ACT))
        out_seg = 98304
        flag_addr(A, SFL, SIDX, FL_A)
        A('s_mov_b32 %s, 0x%x' % (s(SFLIN), FLAGS + FL_H * 128))
        flag_voff(A, VFI, 40)
    else:
        A('s_mul_i32 %s, %s, 0x%x' % (s(SOUT), s(SK), 24 * MB))
        A('s_mul_i32 %s, %s, 12288' % (s(ST0), s(SIDX)))
        A('s_add_u32 %s, %s, %s' % (s(SOUT), s(SOUT), s(ST0)))
        A('s_mul_i32 %s, %s, 3072' % (s(ST0), s(SW)))
        A('s_add_u32 %s, %s, %s' % (s(SOUT), s(SOUT), s(ST0)))
        A('s_add_u32 %s, %s, 0x%x' % (s(SOUT), s(SOUT), QKV))
        out_seg = 32 * 12288
        A('s_lshl_b32 %s, %s, 5' % (s(ST1), s(SK)))
        A('s_add_u32 %s, %s, %s' % (s(ST1), s(ST1), s(SIDX)))
        flag_addr(A, SFL, ST1, FL_W)
        A('s_mov_b32 %s, 0x%x' % (s(SST), STAT1))
    def load_stats(buf):
        for tt in range(2):
            A('buffer_load_dwordx2 %s, %s, %s, %s offen offset:%d sc1' % (v(MR + buf * 4 + tt * 2, 2), v(VST8), s(S_WS, 4), s(SST), tt * 128))
        A('s_add_u32 %s, %s, 256' % (s(SST), s(SST)))
    prof(A, 0)
    wait_init(A, VZ, VT)
    prof(A, 1)
    A('s_mov_b32 %s, 0' % s(SSEG))
    if f1:
        A('s_mov_b32 %s, 0' % s(SPRE))
    else:
        load_stats(0)
        A('s_waitcnt vmcnt(0)')
    LOOP = 'L_loop_' + tag
    A.label(LOOP)
    for buf in range(2):
        MEAN = lambda tt: MR + buf * 4 + tt * 2
        RSTD = lambda tt: MR + buf * 4 + tt * 2 + 1
        if f1:
            Lp = A.newlabel('Lq')
            A('s_cmp_eq_u32 %s, 1' % s(SPRE))
            A('s_cbranch_scc1 %s' % Lp)
            A('s_add_u32 %s, %s, 1' % (s(ST1), s(SSEG)))
            poll4_ge(A, VFI, s(SFLIN), s(ST1), FT, sleep=2)
            dma_in(buf)
            A.label(Lp)
            A('s_waitcnt vmcnt(0)')
            A('s_barrier')
            prof(A, 2)
            A('buffer_load_dwordx4 %s, %s, %s, %s offen sc1' % (v(FT, 4), v(VFI), s(S_WS, 4), s(SFLIN)))
            for i in range(16): A('v_mov_b32 %s, 0' % v(SA + i))
            dops = []
        else:
            A('s_waitcnt vmcnt(4)')
            A('s_barrier')
            prof(A, 2)
            dops = dma_ops(1 - buf)
        def rd(ks):
            for tt in range(2):
                A('ds_read_b128 %s, %s offset:%d' % (v(BB + (ks % 3) * 8 + tt * 4, 4), v(VRD[buf]), tt * 20480 + ks * 1024))
        rd(0); rd(1)
        ndma = 0
        for ks in range(20):
            if ks + 2 < 20:
                rd(ks + 2)
                A('s_waitcnt lgkmcnt(4)')
            elif ks + 1 < 20:
                A('s_waitcnt lgkmcnt(2)')
            else:
                A('s_waitcnt lgkmcnt(0)')
            k = 0
            for t in range(NT):
                for tt in range(2):
                    d = ACC + (tt * NT + t) * 4
                    A('v_mfma_f32_16x16x32_bf16 %s, %s, %s, %s' % (v(d, 4), a((ks * NT + t) * 4, 4), v(BB + (ks % 3) * 8 + tt * 4, 4), '0' if ks == 0 else v(d, 4)))
                    k += 1
                    if k == 2 and dops and ks % 2 == 0:
                        for x in dops.pop(0): A(x)
                        ndma += 1
            if f1:
                Lw = A.newlabel('Lw')
                A.raw('    s_cmp_lg_u32 %s, %d' % (s(SW), ks // 5))
                A.raw('    s_cbranch_scc1 %s' % Lw)
                for tt in range(2):
                    B = v(BB + (ks % 3) * 8 + tt * 4, 4)
                    A('v_mfma_f32_16x16x32_bf16 %s, %s, %s, %s' % (v(SA + tt * 8, 4), v(VONE, 4), B, v(SA + tt * 8, 4)))
                    A('v_mfma_f32_16x16x32_bf16 %s, %s, %s, %s' % (v(SA + tt * 8 + 4, 4), B, B, v(SA + tt * 8 + 4, 4)))
                A.label(Lw)
                if ks == 4:
                    Ln = A.newlabel('Ln')
                    A('s_waitcnt vmcnt(0)')
                    A('s_add_u32 %s, %s, 2' % (s(ST1), s(SSEG)))
                    A('v_min3_u32 %s, %s, %s, %s' % (v(FT), v(FT), v(FT + 1), v(FT + 2)))
                    A('v_min_u32 %s, %s, %s' % (v(FT), v(FT), v(FT + 3)))
                    A('v_cmp_gt_u32 vcc, %s, %s' % (s(ST1), v(FT)))
                    A('s_mov_b32 %s, 0' % s(SPRE))
                    A('s_cbranch_vccnz %s' % Ln)
                    dma_in(1 - buf)
                    A('s_mov_b32 %s, 1' % s(SPRE))
                    A.label(Ln)
            elif ks == 9:
                A('s_waitcnt vmcnt(%d)' % ndma)
                post_wflag(A, VZ, VT, SFL, SSEG)
                load_stats(1 - buf)
        assert not dops
        prof(A, 3)
        if f1:
            A._nop(8)
            stats_exchange(A, SA, SM, VSW, VSR, PR, MEAN, RSTD)
        for tt in range(2):
            for t in range(NT):
                d = ACC + (tt * NT + t) * 4
                for r in range(4):
                    A('v_fma_f32 %s, -%s, %s, %s' % (v(d + r), v(MEAN(tt)), v(VCS + 4 * t + r), v(d + r)))
                for r in range(4):
                    if f1:
                        A('v_fma_f32 %s, %s, %s, %s' % (v(d + r), v(d + r), v(RSTD(tt)), v(VBI + 4 * t + r)))
                    else:
                        A('v_mul_f32 %s, %s, %s' % (v(d + r), v(d + r), v(RSTD(tt))))
                if f1:
                    for r in range(4): A('v_mul_f32 %s, 0x3fb8aa3b, %s' % (v(TM + r), v(d + r)))
                    for r in range(4): A('v_min_f32 %s, 0x42200000, %s' % (v(TM + r), v(TM + r)))
                    for r in range(4): A('v_exp_f32 %s, %s' % (v(TM + r), v(TM + r)))
                    for r in range(4): A('v_add_f32 %s, 2.0, %s' % (v(TM + 4 + r), v(TM + r)))
                    for r in range(4): A('v_mul_f32 %s, %s, %s' % (v(TM + r), v(TM + r), v(TM + 4 + r)))
                    for r in range(4): A('v_add_f32 %s, 2.0, %s' % (v(TM + 4 + r), v(TM + r)))
                    for r in range(4): A('v_rcp_f32 %s, %s' % (v(TM + 4 + r), v(TM + 4 + r)))
                    for r in range(4): A('v_mul_f32 %s, %s, %s' % (v(TM + r), v(TM + r), v(TM + 4 + r)))
                    for r in range(4): A('v_mul_f32 %s, %s, %s' % (v(d + r), v(d + r), v(TM + r)))
                o = OUT + tt * 6 + t * 2
                A('v_cvt_pk_bf16_f32 %s, %s, %s' % (v(o), v(d), v(d + 1)))
                A('v_cvt_pk_bf16_f32 %s, %s, %s' % (v(o + 1), v(d + 2), v(d + 3)))
            if f1:
                A('s_add_u32 s60, %s, %d' % (s(SOUT), tt * 49152))
                A('buffer_store_dwordx4 %s, %s, %s, s60 offen sc1' % (v(OUT + tt * 6, 4), v(VO4), s(S_WS, 4)))
            else:
                A('buffer_store_dwordx4 %s, %s, %s, %s offen offset:%d sc1' % (v(OUT + tt * 6, 4), v(VO4), s(S_WS, 4), s(SOUT), tt * 1536))
                A('buffer_store_dwordx2 %s, %s, %s, %s offen offset:%d sc1' % (v(OUT + tt * 6 + 4, 2), v(VO2), s(S_WS, 4), s(SOUT), tt * 1536 + 1024))
        A('s_add_u32 %s, %s, %d' % (s(SOUT), s(SOUT), out_seg))
        A('s_add_u32 %s, %s, 1' % (s(SSEG), s(SSEG)))
        prof(A, 4)
        if f1:
            A('s_waitcnt vmcnt(0)')
            post_wflag(A, VZ, VT, SFL, SSEG)
            prof(A, 5)
    A('s_cmp_lt_u32 %s, %d' % (s(SSEG), Cfg.nseg))
    A('s_cbranch_scc1 %s' % LOOP)
    if not f1:
        A('s_waitcnt vmcnt(0)')
        post_wflag(A, VZ, VT, SFL, SSEG)
    A('s_branch L_exit')

def wo_pair(i):
    w, t = divmod(i, 3)
    return (w, t) if t < 2 else (4 + (w >> 1), w & 1)

def role_O(A):
    VZ, VT = 3, 4
    VTA, VTB = 10, 11
    VG, VR, VQ = 12, 13, 14
    VL8 = 15
    VA = 16
    VN = 64
    ACC = 112
    OUT = 128
    SB, SIN, SOUT, SFL, SFLIN, SPROG, SPRE = 71, 72, 73, 74, 75, 76, 77
    A.label('L_role_O')
    srd(A, S_WT, P_WO, 6144 * 640 * 2)
    A('s_mul_i32 %s, %s, %d' % (s(SB), s(SIDX), 192 * 1280))
    A('s_mul_i32 %s, %s, 5120' % (s(ST0), s(SW)))
    A('s_add_u32 %s, %s, %s' % (s(SB), s(SB), s(ST0)))
    lane_parts(A, VG, VR, VQ)
    A('v_lshl_add_u32 %s, %s, 2, %s' % (v(VTA), v(VG), v(VR)))
    A('v_mul_u32_u24 %s, 1280, %s' % (v(VTA), v(VTA)))
    A('v_lshl_add_u32 %s, %s, 3, %s' % (v(VTA), v(VQ), v(VTA)))
    A('s_mul_i32 %s, %s, 320' % (s(ST0), s(SW)))
    A('v_add_u32 %s, %s, %s' % (v(VTA), s(ST0), v(VTA)))
    chunks = []
    for i in range(12):
        f, p = wo_pair(i)
        reads = [(a((ct * 6 + f) * 4 + 2 * p, 2), ct * 32) for ct in range(10)]
        chunks.append(dict(srd=S_WT, base=SB, dma=[(VL16, i * 20480 + j * 1024) for j in range(5)], taddr=VTA, reads=reads))
    load_weights(A, chunks, 20480, 7, VTB)
    A('v_lshlrev_b32 %s, 3, %s' % (v(VL8), v(VLANE)))
    A('s_mul_i32 %s, %s, 12288' % (s(SIN), s(SIDX)))
    A('s_add_u32 %s, %s, 0x%x' % (s(SIN), s(SIN), QKV + 2 * 24 * MB))
    A('s_mul_i32 %s, %s, %d' % (s(SOUT), s(SW), 10 * 32768))
    A('s_lshl_b32 %s, %s, 10' % (s(ST0), s(SIDX)))
    A('s_add_u32 %s, %s, %s' % (s(SOUT), s(SOUT), s(ST0)))
    A('s_add_u32 %s, %s, 0x%x' % (s(SOUT), s(SOUT), VO))
    A('s_lshl_b32 %s, %s, 7' % (s(ST0), s(SIDX)))
    A('s_add_u32 %s, %s, 0x%x' % (s(SFLIN), s(ST0), FLAGS + (FL_W + 64) * 128))
    flag_addr(A, SFL, SIDX, FL_W + 96)
    def load_v():
        for w in range(4):
            A('s_add_u32 s60, %s, %d' % (s(SIN), w * 3072))
            for tt in range(2):
                A('buffer_load_dwordx4 %s, %s, %s, s60 offen offset:%d sc1' % (v(VN + (tt * 6 + w) * 4, 4), v(VL16), s(S_WS, 4), tt * 1536))
                A('buffer_load_dwordx2 %s, %s, %s, s60 offen offset:%d sc1' % (v(VN + (tt * 6 + 4 + (w >> 1)) * 4 + 2 * (w & 1), 2), v(VL8), s(S_WS, 4), tt * 1536 + 1024))
        A('s_add_u32 %s, %s, %d' % (s(SIN), s(SIN), 32 * 12288))
    prof(A, 0)
    wait_init(A, VZ, VT)
    poll4_ge(A, VZ, s(SFLIN), '1', 140, out_s=SPROG)
    prof(A, 1)
    load_v()
    A('s_mov_b32 %s, 0' % s(SSEG))
    A.label('L_loop_O')
    A('s_waitcnt vmcnt(0)')
    A.label('L_loop_O2')
    prof(A, 2)
    for i in range(48):
        A('v_mov_b32 %s, %s' % (v(VA + i), v(VN + i)))
    A('s_add_u32 %s, %s, 2' % (s(ST0), s(SSEG)))
    A('s_mov_b32 %s, 0' % s(SPRE))
    A('s_cmp_lt_u32 %s, %s' % (s(SPROG), s(ST0)))
    A('s_cbranch_scc1 L_O_nopre')
    load_v()
    A('s_mov_b32 %s, 1' % s(SPRE))
    A.label('L_O_nopre')
    prof(A, 3)
    def epi(ct):
        d = ACC + (ct & 1) * 8; o = OUT + (ct & 1) * 4
        return ['v_cvt_pk_bf16_f32 %s, %s, %s' % (v(o), v(d), v(d + 1)),
                'v_cvt_pk_bf16_f32 %s, %s, %s' % (v(o + 1), v(d + 4), v(d + 5)),
                'v_cvt_pk_bf16_f32 %s, %s, %s' % (v(o + 2), v(d + 2), v(d + 3)),
                'v_cvt_pk_bf16_f32 %s, %s, %s' % (v(o + 3), v(d + 6), v(d + 7)),
                's_add_u32 s60, %s, %d' % (s(SOUT), ct * 32768),
                'buffer_store_dwordx4 %s, %s, %s, s60 offen sc1' % (v(o, 4), v(VL16), s(S_WS, 4))]
    pend = []
    for ct in range(10):
        k = 0
        for f in range(6):
            for tt in range(2):
                d = ACC + (ct & 1) * 8 + tt * 4
                A('v_mfma_f32_16x16x32_bf16 %s, %s, %s, %s' % (v(d, 4), v(VA + (tt * 6 + f) * 4, 4), a((ct * 6 + f) * 4, 4), '0' if f == 0 else v(d, 4)))
                k += 1
                if k >= 6 and pend: A(pend.pop(0))
        assert not pend
        pend = epi(ct)
    for x in pend: A(x)
    A('s_add_u32 %s, %s, %d' % (s(SOUT), s(SOUT), 40 * 32768))
    A('s_add_u32 %s, %s, 1' % (s(SSEG), s(SSEG)))
    prof(A, 4)
    A('s_add_u32 %s, %s, 1' % (s(ST0), s(SSEG)))
    A('s_min_u32 %s, %s, %d' % (s(ST0), s(ST0), Cfg.nseg))
    A('buffer_load_dwordx4 %s, %s, %s, %s offen sc1' % (v(140, 4), v(VZ), s(S_WS, 4), s(SFLIN)))
    A('s_waitcnt vmcnt(0)')
    post_wflag(A, VZ, VT, SFL, SSEG)
    A('v_min3_u32 v140, v140, v141, v142')
    A('v_min_u32 v140, v140, v143')
    A('v_readfirstlane_b32 %s, v140' % s(SPROG))
    A('s_cmp_ge_u32 %s, %s' % (s(SPROG), s(ST0)))
    A('s_cbranch_scc1 L_O_have')
    poll4_ge(A, VZ, s(SFLIN), s(ST0), 140, out_s=SPROG)
    A.label('L_O_have')
    prof(A, 5)
    A('s_cmp_ge_u32 %s, %d' % (s(SSEG), Cfg.nseg))
    A('s_cbranch_scc1 L_exit')
    A('s_cmp_eq_u32 %s, 1' % s(SPRE))
    A('s_cbranch_scc1 L_loop_O2')
    load_v()
    A('s_branch L_loop_O')

def do_init(A):
    SI = 70
    VS, VO_, VZ4, VT = 4, 8, 12, 16
    XF, SA, PR, MR, VONE, VSW, VSR, VX = 64, 104, 120, 136, 140, 144, 145, 146
    for i in range(4):
        A('v_mov_b32 %s, -1' % v(VS + i))
        A('v_mov_b32 %s, 0' % v(VZ4 + i))
        A('v_mov_b32 %s, 0x3f803f80' % v(VONE + i))
    A('v_lshlrev_b32 %s, 4, v0' % v(VO_))
    L4 = A.newlabel('Li')
    A('s_cmp_lg_u32 %s, 63' % s(SI))
    A('s_cbranch_scc1 %s' % L4)
    A('s_cmp_eq_u32 %s, 0' % s(SW))
    A('s_cbranch_scc1 %s' % L4)
    A('s_mov_b64 exec, 1')
    A('s_cmp_eq_u32 %s, 1' % s(SW))
    A('s_cselect_b32 s72, 0x%x, 0x%x' % (COMM + xp(31744), COMM + xp(31744)))
    A('s_cmp_eq_u32 %s, 2' % s(SW))
    A('s_cselect_b32 s72, 0x%x, s72' % (COMM + 2 * MB + xp(31744)))
    A('s_cmp_eq_u32 %s, 3' % s(SW))
    A('s_cselect_b32 s72, 0x%x, s72' % PROBE2)
    A('s_mov_b32 s74, -1'); A('s_mov_b32 s75, -1')
    A('s_mov_b32 s73, %d' % NPROBE)
    Lr = A.newlabel('Lr')
    A.label(Lr)
    for half in range(2):
        A('s_add_u32 s60, s72, %d' % (half * 8192))
        A('buffer_store_dword %s, %s, %s, s60 offen sc1' % (v(VS), v(VZ4), s(S_WS, 4)))
        A('s_waitcnt vmcnt(0)')
        A('s_memtime s[76:77]')
        A('s_waitcnt lgkmcnt(0)')
        A('buffer_load_dword %s, %s, %s, s60 offen sc1' % (v(VT), v(VZ4), s(S_WS, 4)))
        A('s_waitcnt vmcnt(0)')
        A('s_memtime s[78:79]')
        A('s_waitcnt lgkmcnt(0)')
        A('s_sub_u32 s76, s78, s76')
        A('s_min_u32 %s, %s, s76' % (s(74 + half), s(74 + half)))
    A('s_sub_u32 s73, s73, 1')
    A('s_cmp_gt_u32 s73, 0')
    A('s_cbranch_scc1 %s' % Lr)
    A('s_cmp_lt_u32 s75, s74')
    A('s_cselect_b32 s73, 1, 0')
    A('s_sub_u32 s72, %s, 1' % s(SW))
    A('s_lshl_b32 s73, s73, s72')
    A('v_mov_b32 %s, s73' % v(VT))
    A('buffer_atomic_or %s, %s, %s, 0 offen offset:4 sc1' % (v(VT), v(VZ4), s(S_DBG, 4)))
    if Cfg.prof:
        A('s_lshl_b32 s73, s75, 16'); A('s_or_b32 s73, s73, s74')
        A('v_mov_b32 %s, s73' % v(VT)); A('s_lshl_b32 s72, %s, 2' % s(SW))
        A('buffer_store_dword %s, %s, %s, s72 offen offset:16 sc1' % (v(VT), v(VZ4), s(S_DBG, 4)))
    A('s_mov_b64 exec, -1')
    A.label(L4)
    A('v_and_b32 %s, 15, %s' % (v(VT), v(VLANE)))
    A('v_mul_u32_u24 %s, 1280, %s' % (v(VX), v(VT)))
    A('v_lshrrev_b32 %s, 4, %s' % (v(VT + 1), v(VLANE)))
    A('v_lshl_add_u32 %s, %s, 4, %s' % (v(VX), v(VT + 1), v(VX)))
    A('v_lshlrev_b32 %s, 3, %s' % (v(VSR), v(VT)))
    A('s_lshl_b32 %s, %s, 8' % (s(ST0), s(SW)))
    A('v_add_u32 %s, %s, %s' % (v(VSW), s(ST0), v(VSR)))
    A('s_mul_i32 %s, %s, 40960' % (s(ST0), s(SI)))
    A('s_mul_i32 %s, %s, 320' % (s(ST1), s(SW)))
    A('s_add_u32 %s, %s, %s' % (s(ST0), s(ST0), s(ST1)))
    A('s_add_u32 %s, %s, 20480' % (s(ST1), s(ST0)))
    for tt in range(2):
        for i in range(5):
            A('buffer_load_dwordx4 %s, %s, %s, %s offen offset:%d' % (v(XF + (tt * 5 + i) * 4, 4), v(VX), s(S_X, 4), s((ST0, ST1)[tt]), i * 64))
    stats_masks(A, 74, VT)
    A('s_waitcnt vmcnt(0)')
    for i in range(5):
        for tt in range(2):
            B = v(XF + (tt * 5 + i) * 4, 4)
            A('v_mfma_f32_16x16x32_bf16 %s, %s, %s, %s' % (v(SA + tt * 8, 4), v(VONE, 4), B, '0' if i == 0 else v(SA + tt * 8, 4)))
            A('v_mfma_f32_16x16x32_bf16 %s, %s, %s, %s' % (v(SA + tt * 8 + 4, 4), B, B, '0' if i == 0 else v(SA + tt * 8 + 4, 4)))
    stats_exchange(A, SA, 74, VSW, VSR, PR, lambda tt: MR + 2 * tt, lambda tt: MR + 2 * tt + 1)
    A('s_lshl_b32 %s, %s, 8' % (s(ST0), s(SI)))
    A('s_add_u32 %s, %s, 0x%x' % (s(ST0), s(ST0), STAT1))
    A('s_mov_b64 exec, 0xffff')
    for tt in range(2):
        A('buffer_store_dwordx2 %s, %s, %s, %s offen offset:%d sc1' % (v(MR + 2 * tt, 2), v(VSR), s(S_WS, 4), s(ST0), tt * 128))
    A('s_mov_b64 exec, -1')
    def fill(base, per, nbytes, data):
        A('s_mul_i32 %s, %s, %d' % (s(ST0), s(SI), per))
        for k in range(0, nbytes, 4096):
            A('s_add_u32 s60, %s, 0x%x' % (s(ST0), base + k))
            A('buffer_store_dwordx4 %s, %s, %s, s60 offen sc1' % (v(data, 4), v(VO_), s(S_WS, 4)))
    fill(COMM, 65536, 65536, VS)
    fill(PX, 81920, 81920, VS)
    fill(URING, 20480, 20480, VS)
    L1 = A.newlabel('Li')
    A('s_sub_u32 %s, %s, 1' % (s(ST1), s(SI)))
    A('s_cmp_ge_u32 %s, 12' % s(ST1))
    A('s_cbranch_scc1 %s' % L1)
    A('s_lshl_b32 %s, %s, 12' % (s(ST0), s(ST1)))
    A('s_cmp_lt_u32 %s, 8' % s(ST1))
    A('s_cselect_b32 %s, 0x%x, %s' % (s(ST2), FLAGS, s(ST2)))
    A('s_cselect_b32 %s, %s, 0x%x' % (s(ST2), s(ST2), CANB - 8 * 4096))
    A('s_add_u32 s60, %s, %s' % (s(ST0), s(ST2)))
    A('buffer_store_dwordx4 %s, %s, %s, s60 offen sc1' % (v(VZ4, 4), v(VO_), s(S_WS, 4)))
    A.label(L1)
    A('s_waitcnt vmcnt(0)')
    A('s_barrier')
    L3 = A.newlabel('Li')
    A('s_cmp_lg_u32 %s, 0' % s(SW))
    A('s_cbranch_scc1 %s' % L3)
    L2 = A.newlabel('Li')
    A('s_cmp_lg_u32 %s, 0' % s(SI))
    A('s_cbranch_scc1 %s' % L2)
    srd(A, S_MISC, P_MEM0, 8 * 640 * 2)
    A('v_and_b32 %s, 7, %s' % (v(VT), v(VLANE)))
    A('v_mul_u32_u24 %s, 1280, %s' % (v(VT), v(VT)))
    A('v_lshrrev_b32 %s, 3, %s' % (v(VT + 1), v(VLANE)))
    A('v_lshl_add_u32 %s, %s, 4, %s' % (v(VT), v(VT + 1), v(VT)))
    for ks in range(10):
        A('buffer_load_dwordx4 %s, %s, %s, 0 offen offset:%d' % (v(20 + 4 * ks, 4), v(VT), s(S_MISC, 4), ks * 128))
    A('s_waitcnt vmcnt(0)')
    for i in range(40):
        A('v_min_u32 %s, 0xfffffffe, %s' % (v(20 + i), v(20 + i)))
    for ks in range(10):
        for half in range(2):
            A('s_mov_b32 s60, 0x%x' % (COMM + xp(U_MEM + ks * 1024) + half * 8192))
            A('buffer_store_dwordx4 %s, %s, %s, s60 offen sc1' % (v(20 + 4 * ks, 4), v(VL16), s(S_WS, 4)))
    A('s_waitcnt vmcnt(0)')
    A.label(L2)
    A('s_mov_b64 exec, 1')
    A('v_mov_b32 %s, 1' % v(VT))
    A('buffer_atomic_add %s, %s, %s, 0 offen sc1' % (v(VT), v(VZ4), s(S_DBG, 4)))
    A('s_mov_b64 exec, -1')
    A.label(L3)

def build():
    A = Asm()
    hdr = open(os.path.join(os.path.dirname(os.path.abspath(__file__)), '..', 'cdna_kernels', NAME + '.s.ref')).read().split('\n')
    for l in hdr:
        if l.startswith('; @launch'): break
        A.raw(l)
    A.raw('; @launch grid=(256,1,1) block=(256,1,1) lds=163840')
    A.raw('.amdgcn_target "amdgcn-amd-amdhsa--gfx950"')
    A.raw('.text')
    A.raw('.globl %s_kernel' % NAME)
    A.raw('.p2align 8')
    A.raw('.type %s_kernel,@function' % NAME)
    A.raw('%s_kernel:' % NAME)
    A('s_cmp_ge_u32 s2, 256')
    A('s_cbranch_scc1 L_exit0')
    A('s_load_dwordx16 s[32:47], s[0:1], 0')
    A('s_load_dwordx8 s[48:55], s[0:1], 64')
    A('s_load_dwordx4 s[56:59], s[0:1], 96')
    A('v_and_b32 %s, 63, v0' % v(VLANE))
    A('v_lshlrev_b32 %s, 4, %s' % (v(VL16), v(VLANE)))
    A('v_lshrrev_b32 v3, 6, v0')
    A('v_readfirstlane_b32 %s, v3' % s(SW))
    A('s_waitcnt lgkmcnt(0)')
    srd(A, S_WS, P_WS, WS_BYTES)
    srd(A, S_X, P_X, 2048 * 640 * 2)
    srd(A, S_DBG, P_DBG, 256)
    prof_init(A)
    A('s_and_b32 %s, s2, 7' % s(ST0))
    A('s_lshr_b32 %s, s2, 3' % s(ST1))
    A('s_cmp_ge_u32 %s, 4' % s(ST0))
    A('s_cbranch_scc1 L_workers')
    def go(role):
        return ('L_role_' + role) if role in Cfg.roles else 'L_exit'
    A('s_lshl_b32 %s, %s, 3' % (s(SIDX), s(ST0)))
    A('s_and_b32 %s, %s, 7' % (s(ST2), s(ST1)))
    A('s_add_u32 %s, %s, %s' % (s(SIDX), s(SIDX), s(ST2)))
    A('s_cmp_lt_u32 %s, 8' % s(ST1))
    A('s_cbranch_scc1 %s' % go('QK'))
    A('s_cmp_lt_u32 %s, 16' % s(ST1))
    A('s_cbranch_scc1 %s' % go('VO'))
    A('s_lshl_b32 s70, %s, 4' % s(ST0))
    A('s_add_u32 s70, s70, %s' % s(ST1))
    A('s_sub_u32 s70, s70, 16')
    A('s_mov_b32 s80, %s' % s(ST0))
    A('s_mov_b32 s81, %s' % s(ST1))
    do_init(A)
    A('s_mul_i32 %s, s80, 10' % s(SIDX))
    A('s_add_u32 %s, %s, s81' % (s(SIDX), s(SIDX)))
    A('s_sub_u32 %s, %s, 16' % (s(SIDX), s(SIDX)))
    A('s_cmp_lt_u32 s81, 26')
    A('s_cbranch_scc1 %s' % go('S2'))
    A('s_mul_i32 %s, s80, 3' % s(SIDX))
    A('s_add_u32 %s, %s, s81' % (s(SIDX), s(SIDX)))
    A('s_sub_u32 %s, %s, 26' % (s(SIDX), s(SIDX)))
    A('s_cmp_lt_u32 s81, 29')
    A('s_cbranch_scc1 %s' % go('F1'))
    A('s_sub_u32 %s, %s, 3' % (s(SIDX), s(SIDX)))
    A('s_cmp_lt_u32 %s, 10' % s(SIDX))
    A('s_cbranch_scc1 %s' % go('F2'))
    A.label('L_exit')
    prof(A, 15)
    prof_dump(A)
    A.label('L_exit0')
    A('s_endpgm')
    A.label('L_abort')
    A('s_mov_b64 exec, 1')
    A('v_mov_b32 v3, 0')
    A('v_mov_b32 v4, s2')
    A('v_or_b32 v4, 0x10000, v4')
    A('buffer_store_dword v4, v3, %s, 0 offen offset:8 sc1' % s(S_DBG, 4))
    A('s_endpgm')
    A.label('L_workers')
    A('s_sub_u32 %s, %s, 4' % (s(ST0), s(ST0)))
    A('s_lshl_b32 %s, %s, 3' % (s(SIDX), s(ST0)))
    A('s_lshr_b32 %s, %s, 2' % (s(ST2), s(ST1)))
    A('s_add_u32 %s, %s, %s' % (s(SIDX), s(SIDX), s(ST2)))
    A('s_and_b32 s70, %s, 3' % s(ST1))
    A('s_cmp_eq_u32 s70, 3')
    A('s_cbranch_scc1 %s' % go('O'))
    A('s_branch %s' % go('G'))
    import roles2
    if 'G' in Cfg.roles: role_G(A, False)
    if 'O' in Cfg.roles: role_O(A)
    if 'F1' in Cfg.roles: role_G(A, True)
    if 'QK' in Cfg.roles: roles2.role_QK(A)
    if 'VO' in Cfg.roles: roles2.role_VO(A)
    if 'S2' in Cfg.roles: roles2.role_S2(A)
    if 'F2' in Cfg.roles: roles2.role_F2(A)
    A.raw('.section .rodata,"a"')
    A.raw('.p2align 6')
    A.raw('.amdhsa_kernel %s_kernel' % NAME)
    A.raw('  .amdhsa_next_free_vgpr 512')
    A.raw('  .amdhsa_next_free_sgpr 102')
    A.raw('  .amdhsa_accum_offset 256')
    A.raw('  .amdhsa_group_segment_fixed_size 0')
    A.raw('  .amdhsa_kernarg_size 112')
    A.raw('  .amdhsa_user_sgpr_count 2')
    A.raw('  .amdhsa_user_sgpr_kernarg_segment_ptr 1')
    A.raw('  .amdhsa_system_sgpr_workgroup_id_x 1')
    A.raw('.end_amdhsa_kernel')
    return A

if __name__ == '__main__':
    sys.modules['gen'] = sys.modules['__main__']
    out = sys.argv[1] if len(sys.argv) > 1 else os.path.join(os.path.dirname(os.path.abspath(__file__)), '..', 'cdna_kernels', NAME + '.s')
    if len(sys.argv) > 2:
        Cfg.roles = set(sys.argv[2].split(','))
    if os.environ.get('PROF'): Cfg.prof = True
    A = build()
    open(out, 'w').write(A.text())
    print('wrote', out, 'instructions', A.ninstr)
```

```python
from asmlib import *
import gen as G
from gen import *

class Lg:
    def __init__(self, A): self.A = A; self.q = []
    def issue(self, text, tag=None):
        self.A(text); self.q.append(tag)
    def wait(self, tag):
        idx = max(i for i, t in enumerate(self.q) if t == tag) if tag in self.q else -1
        if idx < 0: return
        n = len(self.q) - 1 - idx
        self.A('s_waitcnt lgkmcnt(%d)' % min(n, 15))
        self.q = self.q[idx + 1:]
    def all(self):
        self.A('s_waitcnt lgkmcnt(0)'); self.q = []

def comm_base(A, dst, seg, add=0):
    if add:
        A('s_add_u32 %s, %s, %d' % (s(dst), s(seg), add))
        A('s_and_b32 %s, %s, 3' % (s(dst), s(dst)))
    else:
        A('s_and_b32 %s, %s, 3' % (s(dst), s(seg)))
    A('s_lshl_b32 %s, %s, 16' % (s(dst), s(dst)))
    A('s_add_u32 %s, %s, %s' % (s(dst), s(dst), s(SSEL)))
    A('s_add_u32 %s, %s, 0x%x' % (s(dst), s(dst), COMM))

def vxp(A, r, t):
    A('v_lshrrev_b32 %s, 13, %s' % (v(t), v(r)))
    A('v_lshl_add_u32 %s, %s, 13, %s' % (v(r), v(t), v(r)))

def rec_common_setup(A, VP, VMW4, VMW2, VIDX, VT):
    A('s_mul_i32 %s, %s, 2560' % (s(ST0), s(SW)))
    A('v_add_u32 %s, %s, %s' % (v(VMW4), s(ST0), v(VL16)))
    A('v_lshlrev_b32 %s, 3, %s' % (v(VT), v(VLANE)))
    A('v_add_u32 %s, %s, %s' % (v(VMW2), s(ST0), v(VT)))
    A('v_add_u32 %s, %d, %s' % (v(VP), U_MEM, v(VMW4)))
    A('v_add_u32 %s, %d, %s' % (v(VP + 1), U_MEM + 1024, v(VMW4)))
    A('v_add_u32 %s, %d, %s' % (v(VP + 2), U_MEM + 2048, v(VMW2)))
    for i in range(3): vxp(A, VP + i, VT)
    A('v_and_b32 %s, 8, %s' % (v(VT), v(VLANE)))
    A('v_cmp_eq_u32 vcc, 0, %s' % v(VT))
    A('v_mov_b32 %s, 0xeeee' % v(VIDX))
    A('v_mov_b32 %s, 0x4444' % v(VT))
    A('v_cndmask_b32 %s, %s, %s, vcc' % (v(VIDX), v(VIDX), v(VT)))

def rec_w_taddr(A, VTA, VG, VR, VQ, VT, RB, wcol):
    A('v_lshrrev_b32 %s, 1, %s' % (v(VTA), v(VG)))
    A('v_lshlrev_b32 %s, 4, %s' % (v(VTA), v(VTA)))
    A('v_and_b32 %s, 1, %s' % (v(VT), v(VG)))
    A('v_lshl_add_u32 %s, %s, 2, %s' % (v(VTA), v(VT), v(VTA)))
    A('v_lshrrev_b32 %s, 1, %s' % (v(VT), v(VR)))
    A('v_lshl_add_u32 %s, %s, 3, %s' % (v(VTA), v(VT), v(VTA)))
    A('v_and_b32 %s, 1, %s' % (v(VT), v(VR)))
    A('v_add_u32 %s, %s, %s' % (v(VTA), v(VT), v(VTA)))
    A('v_mul_u32_u24 %s, %d, %s' % (v(VTA), RB, v(VTA)))
    A('v_lshl_add_u32 %s, %s, 3, %s' % (v(VTA), v(VQ), v(VTA)))
    A('s_mul_i32 %s, %s, %d' % (s(ST0), s(SW), wcol))
    A('v_add_u32 %s, %s, %s' % (v(VTA), s(ST0), v(VTA)))

def wreg(i, off=0, n=8):
    return a(i * 8 + off, n) if i < 32 else v(128 + (i - 32) * 8 + off, n)

def poll_pipe(A, voff, soff, want, r0, depth, gap, soft=0):
    L = A.newlabel('Lp'); D = A.newlabel('Ld')
    ld = lambda i: 'buffer_load_dword %s, %s, %s, %s offen sc1' % (v(r0 + i % depth), v(voff), s(S_WS, 4), soff)
    A('s_mov_b32 %s, 0x%x' % (s(SSPIN), soft or SPIN // 4))
    for i in range(depth - 1):
        A(ld(i))
        if gap: A('s_nop %d' % (gap - 1))
    A.label(L)
    for i in range(depth):
        A(ld(i + depth - 1))
        A('s_waitcnt vmcnt(%d)' % (depth - 1))
        A('v_cmp_gt_u32 vcc, %s, %s' % (want, v(r0 + i)))
        A.raw('    s_cbranch_vccz %s' % D)
    if soft:
        A('s_sub_u32 %s, %s, 1' % (s(SSPIN), s(SSPIN)))
        A('s_cbranch_scc0 %s' % L)
    else:
        spin_dec(A)
        A('s_branch %s' % L)
    A.label(D)
    if soft: A('s_mov_b32 %s, 0x%x' % (s(SSPIN), SPIN))

PDA = int(os.environ.get('PDA', '4')); PGA = int(os.environ.get('PGA', '16')); HDELAY = int(os.environ.get('HDELAY', '8')); HPOS = int(os.environ.get('HPOS', '20')); NSQ = int(os.environ.get('NSQ', '4')); NSV = int(os.environ.get('NSV', '4')); NSAMP = NSQ + NSV; NH = int(os.environ.get('NH', '4'))
PDB = int(os.environ.get('PDB', '4')); PGB = int(os.environ.get('PGB', '14'))
def cana_setup(A, SCA):
    A('s_and_b32 %s, s2, 3' % s(SCA))
    A('s_lshl_b32 %s, %s, 11' % (s(SCA), s(SCA)))
    A('s_lshr_b32 %s, s2, 3' % s(ST0))
    A('s_lshl_b32 %s, %s, 2' % (s(ST0), s(ST0)))
    A('s_add_u32 %s, %s, %s' % (s(ST0), s(ST0), s(SW)))
    A('s_and_b32 %s, %s, %d' % (s(ST0), s(ST0), NH - 1))
    A('s_lshl_b32 %s, %s, 7' % (s(ST0), s(ST0)))
    A('s_add_u32 %s, %s, %s' % (s(SCA), s(SCA), s(ST0)))
    A('s_add_u32 %s, %s, 0x%x' % (s(SCA), s(SCA), CANA))

def poll_mem(A, VP, MEM, VMW4, VMW2, SCOMM, VT, SCA, shadow=None):
    L = A.newlabel('Lm'); D = A.newlabel('Lmd')
    if not os.environ.get('NOCANA'):
        A('v_lshlrev_b32 %s, 2, %s' % (v(MEM + 11), v(VLANE)))
        A('s_mov_b64 exec, 0x3ff')
        poll_pipe(A, MEM + 11, s(SCA), s(SSEG), MEM + 12, PDA, PGA, soft=24)
        if HDELAY: A('s_nop %d' % (HDELAY - 1))
        A('s_mov_b64 exec, -1')
        prof(A, 6)
    else:
        A('s_mov_b32 %s, 0x%x' % (s(SSPIN), SPIN))
    A.label(L)
    if Cfg.trace: A('s_add_u32 s100, s100, 1')
    A('buffer_load_dwordx4 %s, %s, %s, %s offen sc1' % (v(MEM, 4), v(VP), s(S_WS, 4), s(SCOMM)))
    A('buffer_load_dwordx4 %s, %s, %s, %s offen sc1' % (v(MEM + 4, 4), v(VP + 1), s(S_WS, 4), s(SCOMM)))
    A('buffer_load_dwordx2 %s, %s, %s, %s offen sc1' % (v(MEM + 8, 2), v(VP + 2), s(S_WS, 4), s(SCOMM)))
    spin_dec(A)
    if shadow: shadow()
    A('s_waitcnt vmcnt(2)')
    A('v_max3_u32 %s, %s, %s, %s' % (v(VT), v(MEM), v(MEM + 1), v(MEM + 2)))
    A('s_waitcnt vmcnt(1)')
    A('v_max3_u32 %s, %s, %s, %s' % (v(VT), v(VT), v(MEM + 3), v(MEM + 4)))
    A('v_max3_u32 %s, %s, %s, %s' % (v(VT), v(VT), v(MEM + 5), v(MEM + 6)))
    A('s_waitcnt vmcnt(0)')
    A('v_max3_u32 %s, %s, %s, %s' % (v(VT), v(VT), v(MEM + 7), v(MEM + 8)))
    A('v_max_u32 %s, %s, %s' % (v(VT), v(VT), v(MEM + 9)))
    A('v_cmp_eq_u32 vcc, -1, %s' % v(VT))
    A('s_cbranch_vccnz %s' % L)
    A('ds_write_b128 %s, %s' % (v(VMW4), v(MEM, 4)))
    A('ds_write_b128 %s, %s offset:1024' % (v(VMW4), v(MEM + 4, 4)))
    A('ds_write_b64 %s, %s offset:2048' % (v(VMW2), v(MEM + 8, 2)))
    A('s_waitcnt lgkmcnt(0)')
    A('s_barrier')

def canary_setup(A, SCM):
    A('s_cmp_eq_u32 %s, 1' % s(SW))
    A('s_cselect_b32 %s, 1, 0' % s(SCM))
    A('s_mov_b32 %s, 0' % s(SCM + 1))
def canary_ops(VZ, VC, SCAN, SCM):
    return ['s_mov_b64 exec, %s' % s(SCM, 2),
            'buffer_store_dword %s, %s, %s, %s offen sc1' % (v(VC), v(VZ), s(S_WS, 4), s(SCAN)),
            's_mov_b64 exec, -1']

S2DELAY = int(os.environ.get('S2DELAY', '6'))
S2DELAY2 = int(os.environ.get('S2DELAY2', '5'))
CANADELAY = int(os.environ.get('CANADELAY', '0'))
DMAEARLY = int(os.environ.get('DMAEARLY', '0')); S2DELAY3 = int(os.environ.get('S2DELAY3', '0')); DMAGAP = int(os.environ.get('DMAGAP', '0'))
XSLEEP = int(os.environ.get('XSLEEP', '6')); PFPOS = int(os.environ.get('PFPOS', '18'))
CAN_POS_QK = int(os.environ.get('CANQK', '61'))
CAN_POS_VO = int(os.environ.get('CANVO', '44'))

class Slots:
    def __init__(self, n):
        self.pre = [[] for _ in range(n)]; self.nv = [[] for _ in range(n)]; self.va = [[] for _ in range(n)]; self.mf = [[] for _ in range(n)]
    def emit(self, A, lg, i, main):
        for t in self.pre[i]: lg.wait(t)
        A(main)
        for x in self.nv[i]:
            if isinstance(x, tuple): lg.issue(*x)
            else: A(x)
        for x in self.va[i]: A(x)
        for x in self.mf[i]: A(x)

def role_QK(A):
    VZ, VT = 3, 4
    VC = 5
    VP = 6
    VMW4, VMW2 = 9, 10
    VIDX = 11
    VT2, VFV = 12, 13
    T = 14
    VWL = 20
    VSPX, VSPM = 21, 22
    VSR4, VSR1 = 23, 24
    VSX4, VSX1 = 25, 26
    VPX, VPM = 27, 28
    VL8 = 29
    VFL, VNEG = 30, 31
    MEM, STG, ACC, KX, SEL = 32, 72, 88, 112, 124
    SC = ACC
    QX, XA = MEM, MEM + 12
    SM = 72
    MEML, SP, WL = 0, 10240, 38400
    ROW = 176
    SB, SCOMM, SKIN, SQIN, SFK, SPXB, SHX, SHM, SCAN, SNEXT = 62, 63, 64, 65, 66, 67, 68, 69, 70, 71
    SCM = 72
    SMASK = 74
    SCS = 61
    Cfg.tregs = (4, 12)
    A.label('L_role_QK')
    if Cfg.trace: A('s_mov_b32 s84, 161280')
    srd(A, S_WT, P_WQ, 640 * 6144 * 2)
    srd(A, S_MISC, P_WK, 640 * 6144 * 2)
    VDM, VTA, VTB, VG, VR, VQ = 6, 10, 11, 12, 13, 14
    A('s_mul_i32 %s, %s, 384' % (s(SB), s(SIDX)))
    A('s_mul_i32 %s, %s, %d' % (s(ST0), s(SW), 16 * 12288))
    A('s_add_u32 %s, %s, %s' % (s(SB), s(SB), s(ST0)))
    lane_parts(A, VG, VR, VQ)
    dma_voffs_384(A, VDM, 12288, VT, VT + 1)
    rec_w_taddr(A, VTA, VG, VR, VQ, VT, 384, 96)
    def fidx(t, m, ks): return (t * 2 + m) * 8 + ks
    def lidx(t, m, ks): return (t * 2 + (ks - 8)) * 2 + m
    chunks = []
    for ks in range(10):
        for m in range(2):
            reads = []
            for t in range(3):
                for P in range(4):
                    dst = wreg(fidx(t, m, ks), 2 * P, 2) if ks < 8 else v(32 + lidx(t, m, ks) * 8 + 2 * P, 2)
                    reads.append((dst, (32 * (P >> 1) + 2 * (P & 1)) * 384 + t * 32))
            chunks.append(dict(srd=(S_WT, S_MISC)[m], base=SB, dma=[(VDM + j % 3, (ks * 64 + 8 * (j // 3)) * 12288) for j in range(6)], taddr=VTA, reads=reads))
    load_weights(A, chunks, 24576, 6, VTB, NT_R, RCAP)
    A('s_mul_i32 %s, %s, 24576' % (s(ST0), s(SW)))
    A('s_add_u32 %s, %s, %d' % (s(ST0), s(ST0), WL))
    A('v_add_u32 %s, %s, %s' % (v(VWL), s(ST0), v(VL16)))
    for i in range(12):
        for h in range(2):
            A('ds_write_b128 %s, %s offset:%d' % (v(VWL), v(32 + i * 8 + 4 * h, 4), i * 2048 + h * 1024))
    A('s_waitcnt lgkmcnt(0)')
    prof(A, 0)
    G_, C_ = 30, 31
    A('v_lshrrev_b32 %s, 4, %s' % (v(G_), v(VLANE)))
    A('v_and_b32 %s, 15, %s' % (v(C_), v(VLANE)))
    rec_common_setup(A, VP, VMW4, VMW2, VIDX, VT)
    A('v_and_b32 %s, 1, %s' % (v(VT), v(G_)))
    A('v_lshlrev_b32 %s, 2, %s' % (v(VT), v(VT)))
    A('v_sub_u32 %s, %s, %s' % (v(VT), v(C_), v(VT)))
    for h, d0 in enumerate((0, 2, 8, 10)):
        A('v_mov_b32 %s, 0' % v(SEL + h))
        A('v_mov_b32 %s, 0x3f80' % v(VT + 1))
        A('v_cmp_eq_u32 vcc, %d, %s' % (d0, v(VT)))
        A('v_cndmask_b32 %s, %s, %s, vcc' % (v(SEL + h), v(SEL + h), v(VT + 1)))
        A('v_mov_b32 %s, 0x3f800000' % v(VT + 1))
        A('v_cmp_eq_u32 vcc, %d, %s' % (d0 + 1, v(VT)))
        A('v_cndmask_b32 %s, %s, %s, vcc' % (v(SEL + h), v(SEL + h), v(VT + 1)))
    A('s_mul_i32 %s, %s, %d' % (s(ST0), s(SW), 40 * ROW))
    A('s_add_u32 %s, %s, %d' % (s(ST0), s(ST0), SP))
    A('v_mul_u32_u24 %s, %d, %s' % (v(VT), ROW, v(C_)))
    A('v_add_u32 %s, %s, %s' % (v(VT), s(ST0), v(VT)))
    A('v_lshl_add_u32 %s, %s, 4, %s' % (v(VSPX), v(G_), v(VT)))
    A('v_add_u32 %s, 96, %s' % (v(VSPM), v(VSPX)))
    A('v_add_u32 %s, 160, %s' % (v(VT), v(VT)))
    A('v_cmp_gt_u32 vcc, 2, %s' % v(G_))
    A('v_cndmask_b32 %s, %s, %s, vcc' % (v(VSPM), v(VSPM), v(VT)))
    M_, K_ = 30, 31
    A('v_lshrrev_b32 %s, 3, %s' % (v(M_), v(VLANE)))
    A('v_and_b32 %s, 7, %s' % (v(K_), v(VLANE)))
    A('v_mul_u32_u24 %s, %d, %s' % (v(VT), ROW, v(M_)))
    A('v_add_u32 %s, %d, %s' % (v(VT), SP, v(VT)))
    A('v_lshl_add_u32 %s, %s, 4, %s' % (v(VSR4), v(K_), v(VT)))
    A('v_lshl_add_u32 %s, %s, 2, %s' % (v(VSR1), v(K_), v(VT)))
    A('s_add_u32 %s, %s, 1' % (s(ST0), s(SW)))
    A('s_mul_i32 %s, %s, %d' % (s(ST0), s(ST0), 8 * ROW))
    A('v_add_u32 %s, %s, %s' % (v(VSX4), s(ST0), v(VSR4)))
    A('v_add_u32 %s, %s, %s' % (v(VSX1), s(ST0), v(VSR1)))
    A('v_bfe_u32 %s, %s, 1, 1' % (v(VT), v(K_)))
    A('v_lshl_add_u32 %s, %s, 4, %s' % (v(VPX), v(VT), v(M_)))
    A('v_lshrrev_b32 %s, 2, %s' % (v(VT), v(K_)))
    A('v_lshl_add_u32 %s, %s, 3, %s' % (v(VPX), v(VT), v(VPX)))
    A('v_lshlrev_b32 %s, 4, %s' % (v(VPX), v(VPX)))
    A('v_and_b32 %s, 1, %s' % (v(VT), v(K_)))
    A('v_lshl_add_u32 %s, %s, 3, %s' % (v(VPX), v(VT), v(VPX)))
    A('v_bfe_u32 %s, %s, 1, 1' % (v(VT), v(K_)))
    A('v_lshl_add_u32 %s, %s, 3, %s' % (v(VPM), v(VT), v(M_)))
    A('v_lshlrev_b32 %s, 4, %s' % (v(VPM), v(VPM)))
    A('v_lshrrev_b32 %s, 2, %s' % (v(VT), v(K_)))
    A('v_lshl_add_u32 %s, %s, 2, %s' % (v(VPM), v(VT), v(VPM)))
    A('s_lshr_b32 %s, %s, 1' % (s(ST0), s(SIDX)))
    A('s_lshl_b32 %s, %s, 8' % (s(ST0), s(ST0)))
    A('s_and_b32 %s, %s, 1' % (s(ST1), s(SIDX)))
    A('s_lshl_b32 %s, %s, 3' % (s(ST1), s(ST1)))
    A('s_add_u32 %s, %s, %s' % (s(ST0), s(ST0), s(ST1)))
    A('v_add_u32 %s, %s, %s' % (v(VPM), s(ST0), v(VPM)))
    A('s_lshl_b32 %s, %s, 3' % (s(ST0), s(SW)))
    A('v_add_u32 %s, %s, %s' % (v(VT), s(ST0), v(M_)))
    A('v_lshlrev_b32 %s, 2, %s' % (v(VT + 1), v(K_)))
    A('v_sub_u32 %s, %s, %s' % (v(VT), v(VT), v(VT + 1)))
    for r in range(4):
        A('v_cmp_le_i32 %s, %d, %s' % (s(SMASK + 2 * r, 2), r, v(VT)))
    A('v_lshlrev_b32 %s, 3, %s' % (v(VL8), v(VLANE)))
    A('s_mul_i32 %s, %s, 12288' % (s(SQIN), s(SIDX)))
    A('s_mul_i32 %s, %s, 3072' % (s(ST0), s(SW)))
    A('s_add_u32 %s, %s, %s' % (s(SQIN), s(SQIN), s(ST0)))
    A('s_add_u32 %s, %s, 0x%x' % (s(SQIN), s(SQIN), QKV))
    A('s_add_u32 %s, %s, 0x%x' % (s(SKIN), s(SQIN), 24 * MB))
    A('s_lshl_b32 %s, %s, 7' % (s(SFK), s(SIDX)))
    A('s_add_u32 %s, %s, 0x%x' % (s(SFK), s(SFK), FLAGS))
    A('s_lshl_b32 %s, %s, 9' % (s(SHM), s(SIDX)))
    A('s_lshr_b32 %s, %s, 13' % (s(ST1), s(SHM)))
    A('s_lshl_b32 %s, %s, 13' % (s(ST1), s(ST1)))
    A('s_add_u32 %s, %s, %s' % (s(SHX), s(SHM), s(ST1)))
    A('s_mul_i32 %s, %s, 20480' % (s(SPXB), s(SW)))
    A('s_add_u32 %s, %s, 0x%x' % (s(SPXB), s(SPXB), PX))
    A('v_and_b32 %s, 3, %s' % (v(VT), v(VLANE)))
    A('v_lshlrev_b32 %s, 2, %s' % (v(VT), v(VT)))
    A('v_bfe_u32 %s, %s, 2, 1' % (v(VFL), v(VLANE)))
    A('v_lshl_add_u32 %s, %s, 12, %s' % (v(VFL), v(VFL), v(VT)))
    A('v_mov_b32 %s, 0xff800000' % v(VNEG))
    import struct, math
    A('s_mov_b32 %s, 0x%x' % (s(SCS), struct.unpack('<I', struct.pack('<f', 192 ** -0.5 * math.log2(math.e)))[0]))
    canary_setup(A, SCM)
    wait_init(A, VZ, VT)
    A('s_lshl_b32 %s, %s, 7' % (s(SCAN), s(SIDX)))
    A('s_add_u32 %s, %s, %s' % (s(SCAN), s(SCAN), s(SSEL)))
    A('s_add_u32 %s, %s, 0x%x' % (s(SCAN), s(SCAN), CANB))
    SCA = 60
    cana_setup(A, SCA)

    def kq_ops(dst, sin):
        o = []
        for tt in range(2):
            o.append('buffer_load_dwordx4 %s, %s, %s, %s offen offset:%d sc1' % (v(dst + tt * 6, 4), v(VL16), s(S_WS, 4), s(sin), tt * 1536))
            o.append('buffer_load_dwordx2 %s, %s, %s, %s offen offset:%d sc1' % (v(dst + tt * 6 + 4, 2), v(VL8), s(S_WS, 4), s(sin), tt * 1536 + 1024))
        o.append('s_add_u32 %s, %s, %d' % (s(sin), s(sin), 32 * 12288))
        return o
    def load_kq(dst, sin):
        for x in kq_ops(dst, sin): A(x)

    SEVQ, SPF, SPE, SXA, SXM, SPA, SPM, SKL = 32, 34, 36, 38, 39, 40, 41, 42
    KL = 136704
    A('s_mov_b32 %s, 0x55555555' % s(SEVQ)); A('s_mov_b32 %s, 0x55555555' % s(SEVQ + 1))
    A('s_cmp_eq_u32 %s, 2' % s(SW))
    A('s_cselect_b64 %s, -1, 0' % s(SPF, 2))
    A('s_and_b64 %s, %s, %s' % (s(SPE, 2), s(SPF, 2), s(SEVQ, 2)))
    A('s_sub_u32 %s, %s, 81920' % (s(SPXB), s(SPXB)))
    A('s_mul_i32 %s, %s, 3072' % (s(SKL), s(SW)))
    A('s_add_u32 %s, %s, %d' % (s(SKL), s(SKL), KL))
    SFP, SM3 = 43, 44
    A('s_lshl_b32 %s, %s, 7' % (s(SFP), s(SIDX)))
    A('s_add_u32 %s, %s, 0x%x' % (s(SFP), s(SFP), FLAGS + FL_P * 128))
    A('s_cmp_eq_u32 %s, 3' % s(SW))
    A('s_cselect_b64 %s, 1, 0' % s(SM3, 2))
    def pflag_ops(r):
        return ['s_mov_b64 exec, %s' % s(SM3, 2), 'buffer_store_dword %s, %s, %s, %s offen sc1' % (v(r), v(VZ), s(S_WS, 4), s(SFP)), 's_mov_b64 exec, -1']
    def pstore_ops(O, sx, sm, full='-1', even=None):
        even = even or s(SEVQ, 2)
        o1 = ['buffer_store_dwordx2 %s, %s, %s, %s offen sc1' % (v(O, 2), v(VPX), s(S_WS, 4), s(sx))]
        if full != '-1': o1 = ['s_mov_b64 exec, %s' % full] + o1 + ['s_mov_b64 exec, -1']
        o2 = ['s_mov_b64 exec, %s' % even,
              'buffer_store_dword %s, %s, %s, %s offen sc1' % (v(O + 2), v(VPM), s(S_WS, 4), s(sm)),
              's_mov_b64 exec, -1']
        return o1, o2
    def pstore(O, sx, sm):
        for o in pstore_ops(O, sx, sm):
            for x in o: A(x)
    def kdma_ops(sin, off):
        return [['s_add_u32 m0, %s, %d' % (s(SKL), off), 'buffer_load_dwordx4 %s, %s, %s offen sc1 lds' % (v(VL16), s(S_WS, 4), s(sin))],
                ['buffer_load_dwordx4 %s, %s, %s offen offset:1024 sc1 lds' % (v(VL16), s(S_WS, 4), s(sin))],
                ['buffer_load_dwordx4 %s, %s, %s offen offset:2048 sc1 lds' % (v(VL16), s(S_WS, 4), s(sin)),
                 's_add_u32 %s, %s, %d' % (s(sin), s(sin), 32 * 12288)]]

    def softmax(r4, r1, masked, O):
        for w in range(4):
            A('ds_read_b128 %s, %s offset:%d' % (v(SM + 4 * w, 4), v(r4), w * 40 * ROW))
            A('ds_read_b32 %s, %s offset:%d' % (v(SM + 16 + w), v(r1), w * 40 * ROW + 128))
        X = [SM, SM + 1, SM + 2, SM + 3, SM + 16]
        pk = lambda d, x, y: A('v_pk_add_f32 %s, %s, %s' % (v(d, 2), v(x, 2), v(y, 2)))
        A('s_waitcnt lgkmcnt(5)')
        pk(SM, SM, SM + 4); pk(SM + 2, SM + 2, SM + 6)
        A('s_waitcnt lgkmcnt(1)')
        pk(SM + 8, SM + 8, SM + 12); pk(SM + 10, SM + 10, SM + 14)
        A('s_waitcnt lgkmcnt(0)')
        pk(SM + 16, SM + 16, SM + 18)
        pk(SM, SM, SM + 8); pk(SM + 2, SM + 2, SM + 10)
        A('v_add_f32 %s, %s, %s' % (v(SM + 16), v(SM + 16), v(SM + 17)))
        if masked:
            for r in range(4): A('v_cndmask_b32 %s, %s, %s, %s' % (v(SM + r), v(VNEG), v(SM + r), s(SMASK + 2 * r, 2)))
        MX, SU = SM + 20, SM + 21
        A('v_max3_f32 %s, %s, %s, %s' % (v(MX), v(X[0]), v(X[1]), v(X[2])))
        A('v_max3_f32 %s, %s, %s, %s' % (v(MX), v(X[3]), v(X[4]), v(MX)))
        for mod in ('quad_perm:[1,0,3,2]', 'quad_perm:[2,3,0,1]', 'row_half_mirror'):
            A('v_max_f32_dpp %s, %s, %s %s row_mask:0xf bank_mask:0xf' % (v(MX), v(MX), v(MX), mod))
        A('v_mul_f32 %s, %s, %s' % (v(MX), s(SCS), v(MX)))
        for x in X:
            A('v_fma_f32 %s, %s, %s, -%s' % (v(x), v(x), s(SCS), v(MX)))
        for x in X: A('v_exp_f32 %s, %s' % (v(x), v(x)))
        pk(SM + 4, SM, SM + 2)
        A('v_add_f32 %s, %s, %s' % (v(SU), v(SM + 4), v(X[4])))
        A('v_add_f32 %s, %s, %s' % (v(SU), v(SU), v(SM + 5)))
        A('v_mov_b32_dpp %s, %s quad_perm:[1,0,3,2] row_mask:0xf bank_mask:0xf' % (v(SM + 17), v(X[4])))
        for mod in ('quad_perm:[1,0,3,2]', 'quad_perm:[2,3,0,1]', 'row_half_mirror'):
            A('v_add_f32_dpp %s, %s, %s %s row_mask:0xf bank_mask:0xf' % (v(SU), v(SU), v(SU), mod))
        A('v_rcp_f32 %s, %s' % (v(MX), v(SU)))
        for i, x in enumerate((SM, SM + 2, SM + 16)):
            A('v_pk_mul_f32 %s, %s, %s op_sel_hi:[1,0]' % (v(x, 2), v(x, 2), v(MX, 2)))
        for i, x in enumerate((SM, SM + 2, SM + 16)):
            A('v_cvt_pk_bf16_f32 %s, |%s|, |%s|' % (v(O + i), v(x), v(x + 1)))

    def stg(t, ks):
        return [('ds_read_b128 %s, %s offset:%d' % (v(STG + m * 8 + 4 * h, 4), v(VWL), lidx(t, m, ks) * 2048 + h * 1024), ('stg', t, ks)) for m in range(2) for h in range(2)]

    def kq_wait(first):
        L = A.newlabel('Lk'); D = A.newlabel('Lkd')
        A('s_add_u32 %s, %s, 1' % (s(ST1), s(SSEG)))
        A('v_lshrrev_b32 %s, 12, %s' % (v(VT2), v(VFL)))
        A('v_add_u32 %s, %s, %s' % (v(VT2), s(ST1), v(VT2)))
        A('v_min_u32 %s, %d, %s' % (v(VT2), Cfg.nseg, v(VT2)))
        if not first:
            A('v_cmp_gt_u32 vcc, %s, %s' % (v(VT2), v(VFV)))
            A('s_cbranch_vccz L_loop_QK')
        poll_ge(A, S_WS, VFL, s(SFK), v(VT2), VT, sleep=2)
    A('s_mov_b32 %s, 0' % s(SSEG))
    kq_wait(True)
    A('v_mov_b32 %s, 0' % v(T + 3))
    load_kq(KX, SKIN)
    A('s_mov_b32 %s, 0' % s(SSEG))
    prof(A, 1)
    A.label('L_loop_QK')
    lg = Lg(A)
    comm_base(A, SCOMM, SSEG)
    A('s_add_u32 %s, %s, %s' % (s(SXA), s(SPXB), s(SHM)))
    A('s_add_u32 %s, %s, %d' % (s(SXM), s(SPXB), U_PM))
    A('s_add_u32 %s, %s, 81920' % (s(SPXB), s(SPXB)))
    def shadow():
        for x in stg(0, 8): lg.issue(*x)
        A('s_add_u32 %s, %s, 1' % (s(SNEXT), s(SSEG)))
        for i in range(0, 24, 2): A('v_pk_mov_b32 %s, 0, 0' % v(ACC + i, 2))
        comm_base(A, SPM, SSEG, 2)
        A('s_add_u32 %s, %s, %s' % (s(SPA), s(SPM), s(SHX)))
        A('s_add_u32 %s, %s, %d' % (s(SPM), s(SPM), xp(U_PM)))
        A('s_add_u32 %s, %s, %s' % (s(ST2), s(SCOMM), s(SHX)))
        A('s_add_u32 %s, %s, %d' % (s(ST3), s(SCOMM), xp(U_PM)))
        A('v_pk_mov_b32 %s, -1, -1' % v(T + 4, 2))
        A('v_mov_b32 %s, %s' % (v(VC), s(SNEXT)))
    poll_mem(A, VP, MEM, VMW4, VMW2, SCOMM, VT, SCA, shadow)
    lg.q = []
    prof(A, 2)
    order = [0, 1, 2, 3, 8, 4, 5, 6, 7, 9]
    mr = [('ds_read_b128 %s, %s offset:%d' % (v(MEM + 4 * ks, 4), v(VL16), MEML + ks * 1024), ('mem', ks)) for ks in order]
    for x in mr[:2]: lg.issue(*x)
    S = Slots(60)
    for i, x in enumerate(mr[2:]): S.nv[i].append(x)
    def cvt(d, x): return 'v_cvt_pk_bf16_f32 %s, %s, %s' % (v(d), v(x), v(x + 1))
    def post1(t):
        q = ACC + t * 8
        return [cvt(q, q), cvt(q + 1, q + 2), cvt(q + 2, q + 4), cvt(q + 3, q + 6)]
    def trans(t):
        q = ACC + t * 8
        return 'v_mfma_f32_16x16x32_bf16 %s, %s, %s, 0' % (v(q + 4, 4), v(q, 4), v(SEL, 4))
    def post2(t):
        q = ACC + t * 8
        return [cvt(T + 2 * t, q + 4), cvt(T + 2 * t + 1, q + 6)]
    for t in range(3):
        for j, ks in enumerate(order):
            if t == 0: S.pre[2 * j].append(('mem', ks))
            if ks >= 8: S.pre[20 * t + 2 * j].append(('stg', t, ks))
        for i, x in enumerate(stg(t, 9)): S.nv[20 * t + 10 + i].append(x)
        if t > 0:
            for i, x in enumerate(stg(t, 8)): S.nv[20 * t + i].append(x)
            for i, x in enumerate(post1(t - 1)): S.va[20 * t + 4 + i].append(x)
            S.mf[20 * t + 9].append(trans(t - 1))
            for i, x in enumerate(post2(t - 1)): S.va[20 * t + 15 + i].append(x)
    if CAN_POS_QK < 60: S.nv[CAN_POS_QK] += canary_ops(VZ, VC, SCAN, SCM)
    kd = kdma_ops(SQIN, 12288)
    S.nv[8] += kd[0]; S.nv[9] += kd[1]; S.nv[14] += kd[2]
    kd = kdma_ops(SKIN, 0)
    S.nv[15] += kd[0]; S.nv[16] += kd[1]; S.nv[17] += kd[2]
    o1, o2 = pstore_ops(T, SXA, SXM)
    S.nv[19] += o1; S.nv[28] += o2
    o1, o2 = pstore_ops(T + 4, SPA, SPM, s(SPF, 2), s(SPE, 2))
    o2[1] = o2[1].replace(v(T + 6) + ',', v(T + 4) + ',')
    S.nv[34] += o1; S.nv[37] += o2
    if PFPOS >= 0: S.nv[PFPOS] += pflag_ops(T + 3)
    S.nv[39].append('buffer_load_dword %s, %s, %s, %s offen sc1' % (v(VFV), v(VFL), s(S_WS, 4), s(SFK)))
    for t in range(3):
        for j, ks in enumerate(order):
            for m in range(2):
                B = wreg(fidx(t, m, ks)) if ks < 8 else v(STG + m * 8, 8)
                S.emit(A, lg, 20 * t + 2 * j + m, 'v_smfmac_f32_16x16x64_bf16 %s, %s, %s, %s' % (v(ACC + t * 8 + 4 * m, 4), v(MEM + 4 * ks, 4), B, v(VIDX)))
    A('v_mfma_f32_16x16x32_bf16 %s, %s, %s, 0' % (v(SC, 4), v(KX, 4), v(T, 4)))
    p1 = post1(2)
    A(p1[0]); A(p1[1])
    A('v_mfma_f32_16x16x32_bf16 %s, %s, %s, 0' % (v(SC + 4, 4), v(KX + 6, 4), v(T, 4)))
    A(p1[2]); A(p1[3])
    A(trans(2))
    A('v_mfma_f32_16x16x32_bf16 %s, %s, %s, 0' % (v(SC + 8, 4), v(T, 4), v(T, 4)))
    if CAN_POS_QK == 60:
        for x in canary_ops(VZ, VC, SCAN, SCM): A(x)
    for x in post2(2): A(x)
    A('v_mfma_f32_16x16x16_bf16 %s, %s, %s, %s' % (v(SC, 4), v(KX + 4, 2), v(T + 4, 2), v(SC, 4)))
    A('v_mfma_f32_16x16x16_bf16 %s, %s, %s, %s' % (v(SC + 4, 4), v(KX + 10, 2), v(T + 4, 2), v(SC + 4, 4)))
    A('v_mfma_f32_16x16x16_bf16 %s, %s, %s, %s' % (v(SC + 8, 4), v(T + 4, 2), v(T + 4, 2), v(SC + 8, 4)))
    if CAN_POS_QK == 61:
        for x in canary_ops(VZ, VC, SCAN, SCM): A(x)
    A('ds_write_b128 %s, %s' % (v(VSPX), v(SC, 4)))
    A('ds_write_b128 %s, %s offset:64' % (v(VSPX), v(SC + 4, 4)))
    A('ds_write_b128 %s, %s' % (v(VSPM), v(SC + 8, 4)))
    A('s_cmp_lg_u32 %s, 0' % s(SW))
    A('s_waitcnt lgkmcnt(0)')
    A('s_barrier')
    if Cfg.prof or Cfg.trace:
        prof(A, 3)
        A('s_cmp_lg_u32 %s, 0' % s(SW))
    A('s_cbranch_scc1 L_QK_x')
    softmax(VSR4, VSR1, False, SM + 22)
    pstore(SM + 22, ST2, ST3)
    prof(A, 4)
    ncan = 1 if CAN_POS_QK > 39 else 0
    A('s_waitcnt vmcnt(%d)' % (2 + (ncan if CAN_POS_QK < 62 else 0)))
    A('s_branch L_QK_x2')
    A.label('L_QK_x')
    if CAN_POS_QK >= 62:
        A._nop(8 * (CAN_POS_QK - 62))
        for x in canary_ops(VZ, VC, SCAN, SCM): A(x)
    A('s_waitcnt vmcnt(%d)' % ncan)
    A.label('L_QK_x2')
    A('v_add_u32 %s, %s, %s' % (v(VT), s(SKL), v(VL16)))
    A('v_add_u32 %s, %s, %s' % (v(VT2), s(SKL), v(VL8)))
    for tt in range(2):
        A('ds_read_b128 %s, %s offset:%d' % (v(QX + tt * 6, 4), v(VT), 12288 + tt * 1536))
    for tt in range(2):
        A('ds_read_b64 %s, %s offset:%d' % (v(QX + tt * 6 + 4, 2), v(VT2), 12288 + tt * 1536 + 1024))
    kt = [(KX, KX + 4), (KX + 6, KX + 10), (T, T + 4)]
    tiles = [(0, 0), (0, 2), (1, 0), (1, 1), (1, 2)]
    for qt, j in tiles:
        if j == 0: A('s_waitcnt lgkmcnt(%d)' % (3 - qt))
        A('v_mfma_f32_16x16x32_bf16 %s, %s, %s, 0' % (v(XA + (qt * 3 + j) * 4, 4), v(kt[j][0], 4), v(QX + qt * 6, 4)))
    A('s_waitcnt lgkmcnt(0)')
    for qt, j in tiles:
        d = v(XA + (qt * 3 + j) * 4, 4)
        A('v_mfma_f32_16x16x16_bf16 %s, %s, %s, %s' % (d, v(kt[j][1], 2), v(QX + qt * 6 + 4, 2), d))
    for tt in range(2):
        A('ds_read_b128 %s, %s offset:%d' % (v(KX + tt * 6, 4), v(VT), tt * 1536))
        A('ds_read_b64 %s, %s offset:%d' % (v(KX + tt * 6 + 4, 2), v(VT2), tt * 1536 + 1024))
    for qt, j in tiles:
        o = (8 + 16 * qt) * ROW
        A('ds_write_b128 %s, %s offset:%d' % (v(VSPM if j == 2 else VSPX), v(XA + (qt * 3 + j) * 4, 4), o + (64 if j == 1 else 0)))
    A('v_mov_b32 %s, %s' % (v(T + 3), s(SSEG)))
    A('s_waitcnt lgkmcnt(0)')
    A('s_barrier')
    if PFPOS < 0:
        for x in pflag_ops(T + 3): A(x)
    softmax(VSX4, VSX1, True, T)
    A('s_mov_b32 %s, %s' % (s(SSEG), s(SNEXT)))
    prof(A, 5, 1)
    A('s_cmp_ge_u32 %s, %d' % (s(SSEG), Cfg.nseg))
    A('s_cbranch_scc1 L_QK_fin')
    kq_wait(False)
    A('s_branch L_loop_QK')
    A.label('L_QK_fin')
    A('s_add_u32 %s, %s, %s' % (s(SXA), s(SPXB), s(SHM)))
    A('s_add_u32 %s, %s, %d' % (s(SXM), s(SPXB), U_PM))
    pstore(T, SXA, SXM)
    A('v_mov_b32 %s, %s' % (v(T + 3), s(SSEG)))
    A('s_waitcnt vmcnt(0)')
    A('s_barrier')
    for x in pflag_ops(T + 3): A(x)
    A('s_branch L_exit')
    Cfg.tregs = (4, 5)

def role_VO(A):
    VZ, VT = 3, 4
    VC = 5
    VP = 6
    VMW4, VMW2 = 9, 10
    VIDX = 11
    VWL = 12
    VVW = 13
    VVR = 14
    VUS = 15
    VA = 16
    MEM, STG, ACC = 32, 72, 88
    MEML, VL, WL = 0, 10240, 40960
    SCOMM, SU, SCAN, SNEXT, SUB = 64, 65, 66, 67, 68
    SCM = 74
    Cfg.tregs = (4, 31)
    A.label('L_role_VO')
    srd(A, S_WT, P_WV, 640 * 6144 * 2)
    srd(A, S_MISC, P_WO, 640 * 6144 * 2)
    VDM, VTA, VTB, VG, VR, VQ, VTA2 = 6, 10, 11, 12, 13, 14, 15
    SB, SB2 = 71, 72
    A('s_mul_i32 %s, %s, 384' % (s(SB), s(SIDX)))
    A('s_mul_i32 %s, %s, %d' % (s(ST0), s(SW), 16 * 12288))
    A('s_add_u32 %s, %s, %s' % (s(SB), s(SB), s(ST0)))
    A('s_mul_i32 %s, %s, %d' % (s(SB2), s(SIDX), 192 * 1280))
    A('s_mul_i32 %s, %s, 5120' % (s(ST0), s(SW)))
    A('s_add_u32 %s, %s, %s' % (s(SB2), s(SB2), s(ST0)))
    lane_parts(A, VG, VR, VQ)
    dma_voffs_384(A, VDM, 12288, VT, VT + 1)
    rec_w_taddr(A, VTA, VG, VR, VQ, VT, 384, 96)
    A('v_lshl_add_u32 %s, %s, 2, %s' % (v(VTA2), v(VG), v(VR)))
    A('v_mul_u32_u24 %s, 1280, %s' % (v(VTA2), v(VTA2)))
    A('v_lshl_add_u32 %s, %s, 3, %s' % (v(VTA2), v(VQ), v(VTA2)))
    A('s_mul_i32 %s, %s, 320' % (s(ST0), s(SW)))
    A('v_add_u32 %s, %s, %s' % (v(VTA2), s(ST0), v(VTA2)))
    use = [('v', ks, t) for ks in range(10) for t in range(2)] + [('v', ks, 2) for ks in range(10)] + \
          [('o', ct, j) for cp in range(5) for j in range(3) for ct in (2 * cp, 2 * cp + 1)]
    lpos = [8, 18, 28, 38, 48, 58]
    ldsf = [use[p + i] for p in lpos for i in range(2)]
    regf = [u for u in use if u not in ldsf]
    assert len(regf) == 48
    def dstreg(key, P):
        return wreg(regf.index(key), 2 * P, 2) if key in regf else v(32 + ldsf.index(key) * 8 + 2 * P, 2)
    chunks = []
    for ks in range(10):
        reads = [(dstreg(('v', ks, t), P), (32 * (P >> 1) + 2 * (P & 1)) * 384 + t * 32) for t in range(3) for P in range(4)]
        chunks.append(dict(srd=S_WT, base=SB, dma=[(VDM + j % 3, (ks * 64 + 8 * (j // 3)) * 12288) for j in range(6)], taddr=VTA, reads=reads))
    for i in range(12):
        j, P = divmod(i, 4)
        reads = [(dstreg(('o', ct, j), P), ct * 32) for ct in range(10)]
        chunks.append(dict(srd=S_MISC, base=SB2, dma=[(VL16, i * 20480 + k * 1024) for k in range(5)], taddr=VTA2, reads=reads))
    load_weights(A, chunks, 24576, 6, VTB, NT_R, RCAP)
    G_, R_, Q_ = 28, 29, 30
    lane_parts(A, G_, R_, Q_)
    A('s_mul_i32 %s, %s, 24576' % (s(ST0), s(SW)))
    A('s_add_u32 %s, %s, %d' % (s(ST0), s(ST0), WL))
    A('v_add_u32 %s, %s, %s' % (v(VWL), s(ST0), v(VL16)))
    for i in range(12):
        for h in range(2):
            A('ds_write_b128 %s, %s offset:%d' % (v(VWL), v(32 + i * 8 + 4 * h, 4), i * 2048 + h * 1024))
    A('s_waitcnt lgkmcnt(0)')
    prof(A, 0)
    rec_common_setup(A, VP, VMW4, VMW2, VIDX, VT)
    A('v_and_b32 %s, 15, %s' % (v(VVW), v(VLANE)))
    A('v_lshlrev_b32 %s, 4, %s' % (v(VVW), v(VVW)))
    A('v_and_b32 %s, 1, %s' % (v(VT), v(G_)))
    A('v_lshl_add_u32 %s, %s, 3, %s' % (v(VVW), v(VT), v(VVW)))
    A('v_lshrrev_b32 %s, 1, %s' % (v(VT), v(G_)))
    A('v_lshl_add_u32 %s, %s, 2, %s' % (v(VVW), v(VT), v(VVW)))
    A('s_mul_i32 %s, %s, 768' % (s(ST0), s(SW)))
    A('s_add_u32 %s, %s, %d' % (s(ST0), s(ST0), VL))
    A('v_add_u32 %s, %s, %s' % (v(VVW), s(ST0), v(VVW)))
    A('v_lshrrev_b32 %s, 1, %s' % (v(VVR), v(G_)))
    A('v_lshlrev_b32 %s, 5, %s' % (v(VVR), v(VVR)))
    A('v_and_b32 %s, 1, %s' % (v(VT), v(G_)))
    A('v_lshl_add_u32 %s, %s, 3, %s' % (v(VVR), v(VT), v(VVR)))
    A('v_and_b32 %s, 2, %s' % (v(VT), v(Q_)))
    A('v_add_u32 %s, %s, %s' % (v(VVR), v(VT), v(VVR)))
    A('v_lshrrev_b32 %s, 1, %s' % (v(VT), v(R_)))
    A('v_lshl_add_u32 %s, %s, 4, %s' % (v(VVR), v(VT), v(VVR)))
    A('v_and_b32 %s, 1, %s' % (v(VT), v(R_)))
    A('v_add_u32 %s, %s, %s' % (v(VVR), v(VT), v(VVR)))
    A('v_lshlrev_b32 %s, 4, %s' % (v(VVR), v(VVR)))
    A('v_and_b32 %s, 1, %s' % (v(VT), v(Q_)))
    A('v_lshl_add_u32 %s, %s, 3, %s' % (v(VVR), v(VT), v(VVR)))
    A('v_add_u32 %s, %d, %s' % (v(VVR), VL, v(VVR)))
    A('v_and_b32 %s, 15, %s' % (v(VUS), v(VLANE)))
    A('v_lshlrev_b32 %s, 4, %s' % (v(VUS), v(VUS)))
    A('v_and_b32 %s, 1, %s' % (v(VT), v(G_)))
    A('v_lshl_add_u32 %s, %s, 3, %s' % (v(VUS), v(VT), v(VUS)))
    A('v_lshrrev_b32 %s, 1, %s' % (v(VT), v(G_)))
    A('v_lshl_add_u32 %s, %s, 14, %s' % (v(VUS), v(VT), v(VUS)))
    canary_setup(A, SCM)
    wait_init(A, VZ, VT)
    A('s_lshl_b32 %s, %s, 7' % (s(SCAN), s(SIDX)))
    A('s_add_u32 %s, %s, %s' % (s(SCAN), s(SCAN), s(SSEL)))
    A('s_add_u32 %s, %s, 0x%x' % (s(SCAN), s(SCAN), CANB + 32 * 128))
    SCA = 69
    cana_setup(A, SCA)
    A('s_mul_i32 %s, %s, %d' % (s(SUB), s(SW), 10 * 16384))
    A('s_add_u32 %s, %s, %s' % (s(SUB), s(SUB), s(SSEL)))
    A('s_lshl_b32 %s, %s, 8' % (s(ST0), s(SIDX)))
    A('s_add_u32 %s, %s, %s' % (s(SUB), s(SUB), s(ST0)))
    A('s_add_u32 %s, %s, 0x%x' % (s(SUB), s(SUB), URING))
    def stg(pi):
        return [('ds_read_b128 %s, %s offset:%d' % (v(STG + m * 8 + 4 * h, 4), v(VWL), (2 * pi + m) * 2048 + h * 1024), ('stg', pi)) for m in range(2) for h in range(2)]
    A('s_mov_b32 %s, 0' % s(SSEG))
    prof(A, 1)
    A.label('L_loop_VO')
    lg = Lg(A)
    for x in stg(0): lg.issue(*x)
    for i in range(0, 40, 2): A('v_pk_mov_b32 %s, 0, 0' % v(ACC + i, 2))
    for i in range(0, 12, 2): A('v_pk_mov_b32 %s, 0, 0' % v(VA + i, 2))
    comm_base(A, SCOMM, SSEG)
    A('s_add_u32 %s, %s, 1' % (s(SNEXT), s(SSEG)))
    A('v_mov_b32 %s, %s' % (v(VC), s(SNEXT)))
    A('s_and_b32 %s, %s, 1' % (s(SU), s(SSEG)))
    A('s_mul_i32 %s, %s, %d' % (s(SU), s(SU), 40 * 16384))
    A('s_add_u32 %s, %s, %s' % (s(SU), s(SU), s(SUB)))
    poll_mem(A, VP, MEM, VMW4, VMW2, SCOMM, VT, SCA)
    lg.q = []
    prof(A, 2)
    mr = [('ds_read_b128 %s, %s offset:%d' % (v(MEM + 4 * ks, 4), v(VL16), MEML + ks * 1024), ('mem', ks)) for ks in range(10)]
    for x in mr[:2]: lg.issue(*x)
    S = Slots(60)
    for i, x in enumerate(mr[2:]): S.nv[i].append(x)
    for ks in range(10): S.pre[2 * ks].append(('mem', ks))
    for pi, p in enumerate(lpos):
        S.pre[p].append(('stg', pi))
        if pi + 1 < 6 and p != 28:
            for i, x in enumerate(stg(pi + 1)): S.nv[p + 2 + i].append(x)
    S.nv[CAN_POS_VO] += canary_ops(VZ, VC, SCAN, SCM)
    def vpost(t):
        d = VA + 4 * t
        return ['v_permlane32_swap_b32 %s, %s' % (v(d), v(d + 2)), 'v_permlane32_swap_b32 %s, %s' % (v(d + 1), v(d + 3)),
                'v_pk_add_f32 %s, %s, %s' % (v(d, 2), v(d, 2), v(d + 2, 2)),
                'v_cvt_pk_bf16_f32 %s, %s, %s' % (v(d), v(d), v(d + 1)),
                ('ds_write_b32 %s, %s offset:%d' % (v(VVW), v(d), t * 256), 'vw')]
    p0, p1 = vpost(0), vpost(1)
    for i in range(4): S.va[24 + i].append(p0[i])
    S.nv[28].append(p0[4])
    S.va[28].append(p1[0]); S.va[29].append(p1[1])
    def upost(cp):
        x = ACC + cp * 8; y = x + 4
        ops = ['v_permlane32_swap_b32 %s, %s' % (v(x + r), v(y + r)) for r in range(4)]
        ops += ['v_pk_add_f32 %s, %s, %s' % (v(x + r, 2), v(x + r, 2), v(y + r, 2)) for r in (0, 2)]
        ops.append('v_cvt_pk_bf16_f32 %s, %s, %s' % (v(x), v(x), v(x + 1)))
        ops.append('v_cvt_pk_bf16_f32 %s, %s, %s' % (v(x + 1), v(x + 2), v(x + 3)))
        ops.append('v_min_u32 %s, 0xfffffffe, %s' % (v(x), v(x)))
        ops.append('v_min_u32 %s, 0xfffffffe, %s' % (v(x + 1), v(x + 1)))
        st = ['s_add_u32 s60, %s, %d' % (s(SU), cp * 32768),
              'buffer_store_dwordx2 %s, %s, %s, s60 offen sc1' % (v(x, 2), v(VUS), s(S_WS, 4))]
        return ops, st
    tail = []
    for cp in range(5):
        ops, st = upost(cp)
        base = 30 + 6 * (cp + 1) + 3
        dist = [1, 2, 1, 2, 2, 2]
        sl = base
        for n in dist:
            for _ in range(n):
                x = ops.pop(0)
                if sl < 60: S.va[sl].append(x)
                else: tail.append(x)
            sl += 1
        if sl < 60: S.nv[sl] += st
        else: tail += st
    for j in range(3): S.pre[30 + 2 * j].append(('v', j))
    for i, key in enumerate(use):
        B = wreg(regf.index(key)) if key in regf else v(STG + (ldsf.index(key) & 1) * 8, 8)
        if key[0] == 'v':
            main = 'v_smfmac_f32_16x16x64_bf16 %s, %s, %s, %s' % (v(VA + 4 * key[2], 4), v(MEM + 4 * key[1], 4), B, v(VIDX))
        else:
            main = 'v_smfmac_f32_16x16x64_bf16 %s, %s, %s, %s' % (v(ACC + key[1] * 4, 4), v(VA + 4 * key[2], 4), B, v(VIDX))
        S.emit(A, lg, i, main)
        if i == 29:
            A(p1[2]); A(p1[3]); lg.issue(*p1[4])
            for x in stg(3): lg.issue(*x)
            p2 = vpost(2)
            for x in p2[:4]: A(x)
            lg.issue(*p2[4])
            lg.all()
            A('s_barrier')
            for j in range(3):
                for Q in range(2):
                    lg.issue('ds_read_b64_tr_b16 %s, %s offset:%d' % (v(VA + 4 * j + 2 * Q, 2), v(VVR), (64 * j + 4 * Q) * 16), ('v', j))
    for x in tail: A(x)
    A('s_mov_b32 %s, %s' % (s(SSEG), s(SNEXT)))
    prof(A, 3, 1)
    A('s_cmp_lt_u32 %s, %d' % (s(SSEG), Cfg.nseg))
    A('s_cbranch_scc1 L_loop_VO')
    A('s_branch L_exit')
    Cfg.tregs = (4, 5)

def out_lanes(A, M_, CP, VT):
    A('v_bfe_u32 %s, %s, 4, 1' % (v(M_), v(VLANE)))
    A('v_lshlrev_b32 %s, 2, %s' % (v(M_), v(M_)))
    A('v_lshrrev_b32 %s, 5, %s' % (v(VT), v(VLANE)))
    A('v_lshl_add_u32 %s, %s, 1, %s' % (v(M_), v(VT), v(M_)))
    A('v_and_b32 %s, 1, %s' % (v(VT), v(VLANE)))
    A('v_add_u32 %s, %s, %s' % (v(M_), v(VT), v(M_)))
    A('v_bfe_u32 %s, %s, 1, 3' % (v(CP), v(VLANE)))
    A('v_and_b32 %s, 3, %s' % (v(VT), v(CP)))
    A('v_lshlrev_b32 %s, 2, %s' % (v(VT), v(VT)))
    A('v_lshl_add_u32 %s, %s, 4, %s' % (v(VT), v(M_), v(VT)))
    A('v_lshrrev_b32 %s, 2, %s' % (v(VT + 1), v(CP)))

def sparse_idx(A, VIDX, VT):
    A('v_and_b32 %s, 8, %s' % (v(VT), v(VLANE)))
    A('v_cmp_eq_u32 vcc, 0, %s' % v(VT))
    A('v_mov_b32 %s, 0xeeee' % v(VIDX))
    A('v_mov_b32 %s, 0x4444' % v(VT))
    A('v_cndmask_b32 %s, %s, %s, vcc' % (v(VIDX), v(VIDX), v(VT)))

SEV, SOD = 74, 76
def parity_masks(A):
    A('s_mov_b32 %s, 0x55555555' % s(SEV)); A('s_mov_b32 %s, 0x55555555' % s(SEV + 1))
    A('s_mov_b32 %s, 0xaaaaaaaa' % s(SOD)); A('s_mov_b32 %s, 0xaaaaaaaa' % s(SOD + 1))
def halves(A, d):
    A('v_permlane32_swap_b32 %s, %s' % (v(d), v(d + 2)))
    A('v_permlane32_swap_b32 %s, %s' % (v(d + 1), v(d + 3)))
    A('v_pk_add_f32 %s, %s, %s' % (v(d, 2), v(d, 2), v(d + 2, 2)))
def pack(A, d):
    A('s_mov_b64 vcc, %s' % s(SEV, 2))
    A('v_cndmask_b32_dpp %s, %s, %s, vcc quad_perm:[1,0,3,2] row_mask:0xf bank_mask:0xf' % (v(d + 2), v(d + 1), v(d)))
    A('s_mov_b64 vcc, %s' % s(SOD, 2))
    A('v_cndmask_b32_dpp %s, %s, %s, vcc quad_perm:[1,0,3,2] row_mask:0xf bank_mask:0xf' % (v(d + 3), v(d), v(d + 1)))
    A('v_cvt_pk_bf16_f32 %s, %s, %s' % (v(d), v(d + 2), v(d + 3)))

def role_S2(A):
    VZ, VT = 3, 4
    VIDX = 6
    VUL = 7
    VMS = 8
    VCAN = 11
    VFI = 12
    D = 16
    FT = 24
    SENT = 20
    UR, PR = 32, 64
    ULDS = 65536
    SCOMM, SU, SUB, SCAN, SNEXT, SVO, SFLIN, SFL, SMS, SWV = 62, 63, 64, 65, 66, 67, 68, 69, 73, 70
    Cfg.tregs = (30, 31)
    A.label('L_role_S2')
    sparse_idx(A, VIDX, VT)
    out_lanes(A, 28, 29, VT)
    A('v_lshl_add_u32 %s, %s, 7, %s' % (v(VMS), v(VT + 1), v(VT)))
    A('v_mul_u32_u24 %s, %d, %s' % (v(VCAN), 128 * 32 // NSQ, v(VLANE)))
    A('v_subrev_u32 %s, %d, %s' % (v(VT), NSQ, v(VLANE)))
    A('v_mul_u32_u24 %s, %d, %s' % (v(VT), 128 * 32 // max(NSV, 1), v(VT)))
    A('v_add_u32 %s, 4096, %s' % (v(VT), v(VT)))
    A('v_cmp_gt_u32 vcc, %d, %s' % (NSQ, v(VLANE)))
    A('v_cndmask_b32 %s, %s, %s, vcc' % (v(VCAN), v(VT), v(VCAN)))
    A('v_add_u32 %s, %d, %s' % (v(VUL), ULDS, v(VL16)))
    SHA = 71
    A('s_and_b32 %s, s2, 3' % s(ST0))
    A('s_lshl_b32 %s, %s, 11' % (s(SHA), s(ST0)))
    A('v_lshlrev_b32 v10, 7, %s' % v(VLANE))
    A('s_mul_i32 %s, %s, 10' % (s(ST0), s(ST0)))
    A('s_sub_u32 %s, %s, %s' % (s(ST0), s(SIDX), s(ST0)))
    A('s_lshl_b32 %s, %s, 2' % (s(ST0), s(ST0)))
    A('s_add_u32 %s, %s, %s' % (s(SHA), s(SHA), s(ST0)))
    A('s_add_u32 %s, %s, 0x%x' % (s(SHA), s(SHA), CANA))
    flag_voff(A, VFI, 32)
    for i in range(4): A('v_mov_b32 %s, -1' % v(SENT + i))
    parity_masks(A)
    A('s_mov_b32 %s, 0x%x' % (s(SFLIN), FLAGS + (FL_W + 96) * 128))
    A('s_lshl_b32 %s, %s, 7' % (s(SFL), s(SIDX)))
    A('s_add_u32 %s, %s, 0x%x' % (s(SFL), s(SFL), FLAGS + FL_S * 128))
    A('s_mul_i32 %s, %s, %d' % (s(SVO), s(SIDX), ZT))
    A('s_add_u32 %s, %s, 0x%x' % (s(SVO), s(SVO), VO))
    A('s_lshl_b32 %s, %s, 8' % (s(SMS), s(SIDX)))
    A('s_add_u32 %s, %s, %d' % (s(SMS), s(SMS), U_MEM))
    A('s_lshr_b32 %s, %s, 13' % (s(ST0), s(SMS)))
    A('s_lshl_b32 %s, %s, 13' % (s(ST0), s(ST0)))
    A('s_add_u32 %s, %s, %s' % (s(SMS), s(SMS), s(ST0)))
    wait_init(A, VZ, VT)
    A('s_add_u32 %s, %s, 0x%x' % (s(SCAN), s(SSEL), CANB))
    A('s_lshl_b32 %s, %s, 14' % (s(SUB), s(SIDX)))
    A('s_add_u32 %s, %s, %s' % (s(SUB), s(SUB), s(SSEL)))
    A('s_add_u32 %s, %s, 0x%x' % (s(SUB), s(SUB), URING))
    A('s_mov_b32 %s, 0' % s(SSEG))
    def slots():
        A('s_add_u32 %s, %s, 1' % (s(SNEXT), s(SSEG)))
        comm_base(A, SCOMM, SSEG)
        A('s_and_b32 %s, %s, 1' % (s(SU), s(SSEG)))
        A('s_mul_i32 %s, %s, %d' % (s(SU), s(SU), 40 * 16384))
        A('s_add_u32 %s, %s, %s' % (s(SU), s(SU), s(SUB)))
        A('s_add_u32 %s, %s, 4096' % (s(ST2), s(SU)))
    A('s_cmp_ge_u32 %s, 2' % s(SW))
    A('s_cbranch_scc1 L_S2_dma0')
    A('s_barrier')
    A('s_cmp_eq_u32 %s, 1' % s(SW))
    A('s_cbranch_scc1 L_S2_st')
    prof(A, 1)
    A.label('L_loop_S2')
    A('s_and_b32 %s, %s, 1' % (s(ST0), s(SSEG)))
    A('s_lshl_b32 %s, %s, 15' % (s(ST0), s(ST0)))
    A('v_add_u32 %s, %s, %s' % (v(VT), s(ST0), v(VL16)))
    for h in range(32):
        A('ds_read_b128 %s, %s offset:%d' % (a(4 * h, 4), v(VT), h * 1024))
    slots()
    comm_base(A, ST3, SNEXT)
    A('s_add_u32 %s, %s, %s' % (s(ST3), s(ST3), s(SMS)))
    A('s_waitcnt lgkmcnt(0)')
    A('v_mov_b32 v9, %s' % s(SNEXT))
    A('s_mov_b32 exec_lo, 0x%x' % (((1 << NSAMP) - 1) & 0xffffffff))
    A('s_mov_b32 exec_hi, 0x%x' % (((1 << NSAMP) - 1) >> 32))
    A('s_mov_b32 s72, 3')
    poll_pipe(A, VCAN, s(SCAN), s(SNEXT), 144, PDB, PGB)
    A('s_mov_b64 exec, -1')
    prof(A, 2)
    def loads():
        for j in range(8):
            A('buffer_load_dwordx4 %s, %s, %s, %s offen offset:%d sc1' % (v(UR + 4 * j, 4), v(VL16), s(S_WS, 4), s(SU if j < 4 else ST2), (j & 3) * 1024))
        for q in range(5):
            A('s_add_u32 s60, %s, %d' % (s(SCOMM), xp(q * 4096)))
            for j in range(4):
                A('buffer_load_dwordx4 %s, %s, %s, s60 offen offset:%d sc1' % (v(PR + (q * 4 + j) * 4, 4), v(VL16), s(S_WS, 4), j * 1024))
    loads()
    A('s_barrier')
    A.label('L_S2_go')
    for i in range(4): A('v_mov_b32 %s, 0' % v(D + i))
    def hint():
        A('s_mov_b64 exec, 0x%x' % ((1 << NH) - 1))
        A('buffer_store_dword v9, v10, %s, %s offen' % (s(S_WS, 4), s(SHA)))
        A('s_mov_b64 exec, -1')
    for i in range(20):
        A('s_waitcnt vmcnt(%d)' % (19 - i + (1 if i > HPOS else 0)))
        B = a(8 * i, 8) if i < 16 else v(UR + 8 * (i - 16), 8)
        A('v_smfmac_f32_16x16x64_bf16 %s, %s, %s, %s' % (v(D, 4), v(PR + 4 * i, 4), B, v(VIDX)))
        if i == HPOS: hint()
    halves(A, D)
    A('v_cmp_u_f32 vcc, %s, %s' % (v(D), v(D + 1)))
    A('s_cbranch_vccnz L_S2_slow')
    A.label('L_S2_ok')
    pack(A, D)
    A('v_min_u32 %s, 0xfffffffe, %s' % (v(D), v(D)))
    A('buffer_store_dword %s, %s, %s, %s offen sc1' % (v(D), v(VMS), s(S_WS, 4), s(ST3)))
    if HPOS >= 20: hint()
    prof(A, 3)
    for j in range(8):
        A('ds_write_b128 %s, %s offset:%d' % (v(VUL), v(UR + 4 * j, 4), j * 1024))
    A('s_mov_b32 %s, %s' % (s(SSEG), s(SNEXT)))
    A('s_waitcnt lgkmcnt(0)')
    A('s_barrier')
    prof(A, 4, 1)
    A('s_cmp_lt_u32 %s, %d' % (s(SSEG), Cfg.nseg))
    A('s_cbranch_scc1 L_loop_S2')
    A('s_branch L_exit')
    A.label('L_S2_slow')
    A('s_sub_u32 s72, s72, 1')
    A('s_cbranch_scc0 L_S2_again')
    A('s_mov_b32 s72, 0')
    A('v_mov_b32 %s, 0' % v(VT))
    for i in range(0, 112, 2):
        A('v_max3_u32 %s, %s, %s, %s' % (v(VT), v(VT), v(UR + i), v(UR + i + 1)))
    A('v_cmp_eq_u32 vcc, -1, %s' % v(VT))
    A('s_cbranch_vccz L_S2_ok')
    spin_dec(A)
    A.label('L_S2_again')
    if Cfg.prof or Cfg.trace: A('s_add_u32 s100, s100, 1')
    loads()
    A('s_branch L_S2_go')
    A.label('L_S2_st')
    slots()
    A('s_add_u32 %s, %s, %s' % (s(ST3), s(SCOMM), s(SMS)))
    A('s_barrier')
    A('s_barrier')
    for j in range(8):
        A('ds_read_b128 %s, %s offset:%d' % (v(UR + 4 * j, 4), v(VUL), j * 1024))
    if S2DELAY: A('s_sleep %d' % S2DELAY)
    A('s_waitcnt lgkmcnt(0)')
    for j in range(0 if os.environ.get('NOULOG') else 8):
        if j % 4 == 0: A('s_add_u32 s60, %s, %d' % (s(SVO), 32768 + j * 1024))
        A('buffer_store_dwordx4 %s, %s, %s, s60 offen offset:%d sc1' % (v(UR + 4 * j, 4), v(VL16), s(S_WS, 4), (j & 3) * 1024))
    for j in range(8):
        A('buffer_store_dwordx4 %s, %s, %s, %s offen offset:%d sc1' % (v(SENT, 4), v(VL16), s(S_WS, 4), s(SU if j < 4 else ST2), (j & 3) * 1024))
    A('buffer_store_dword %s, %s, %s, %s offen sc1' % (v(SENT), v(VMS), s(S_WS, 4), s(ST3)))
    A('s_add_u32 %s, %s, %d' % (s(SVO), s(SVO), 40 * ZT))
    A('s_waitcnt vmcnt(0)')
    post_wflag(A, VZ, VT, SFL, SNEXT)
    prof(A, 5)
    A('s_mov_b32 %s, %s' % (s(SSEG), s(SNEXT)))
    A('s_cmp_lt_u32 %s, %d' % (s(SSEG), Cfg.nseg))
    A('s_cbranch_scc1 L_S2_st')
    A('s_branch L_exit')
    SSL = 72
    def dma(check=True):
        A('s_add_u32 %s, %s, 1' % (s(SNEXT), s(SSEG)))
        if check: poll4_ge(A, VFI, s(SFLIN), s(SNEXT), FT, sleep=2)
        A('s_add_u32 %s, %s, %s' % (s(ST0), s(SSL), s(SWV)))
        for q in range(4):
            A('s_add_u32 m0, %s, %d' % (s(ST0), q * 4096))
            A('s_add_u32 s60, %s, %d' % (s(SVO), q * 4096))
            for j in range(4):
                if os.environ.get('NODMA') and not check: continue
                A('buffer_load_dwordx4 %s, %s, s60 offen offset:%d sc1 lds' % (v(VL16), s(S_WS, 4), j * 1024))
                if DMAGAP: A('s_nop %d' % (DMAGAP - 1))
        A('s_add_u32 %s, %s, %d' % (s(SVO), s(SVO), 40 * ZT))
        A('s_mov_b32 %s, %s' % (s(SSEG), s(SNEXT)))
        A('s_xor_b32 %s, %s, 32768' % (s(SSL), s(SSL)))
        A('buffer_load_dwordx4 %s, %s, %s, %s offen sc1' % (v(FT, 4), v(VFI), s(S_WS, 4), s(SFLIN)))
    def settle():
        A('s_waitcnt vmcnt(0)')
        A('v_min3_u32 %s, %s, %s, %s' % (v(FT), v(FT), v(FT + 1), v(FT + 2)))
        A('v_min_u32 %s, %s, %s' % (v(FT), v(FT), v(FT + 3)))
    A.label('L_S2_dma0')
    A('s_mov_b32 %s, 0' % s(SSL))
    A('s_and_b32 %s, %s, 1' % (s(SWV), s(SW)))
    A('s_lshl_b32 %s, %s, 14' % (s(SWV), s(SWV)))
    A('s_add_u32 %s, %s, %s' % (s(SVO), s(SVO), s(SWV)))
    dma()
    A('s_waitcnt vmcnt(0)')
    A('s_barrier')
    A('s_barrier')
    dma()
    settle()
    A('s_barrier')
    A.label('L_S2_dma')
    A('v_cmp_ge_u32 vcc, %s, %s' % (s(SSEG), v(FT)))
    A('s_cbranch_vccnz L_S2_late')
    if S2DELAY2: A('s_sleep %d' % S2DELAY2)
    dma(False)
    if DMAEARLY:
        if DMAEARLY == 2:
            A('s_cmp_eq_u32 %s, 3' % s(SW))
            A('s_cbranch_scc1 L_S2_norm')
        A.label('L_S2_early')
        settle()
        A('s_barrier')
        A('s_cmp_ge_u32 %s, %d' % (s(SSEG), Cfg.nseg))
        A('s_cbranch_scc1 L_exit')
        A('v_cmp_ge_u32 vcc, %s, %s' % (s(SSEG), v(FT)))
        A('s_cbranch_vccnz L_S2_dm3')
        if S2DELAY3: A('s_sleep %d' % S2DELAY3)
        dma(False)
        A('s_barrier')
        A('s_branch L_S2_early')
        A.label('L_S2_norm')
    if Cfg.trace and not os.environ.get('LIGHT'):
        A('s_waitcnt vmcnt(0)')
        prof(A, 6, 3)
    A('s_barrier')
    A('s_branch L_S2_dm2')
    A.label('L_S2_late')
    A('s_barrier')
    dma()
    A.label('L_S2_dm2')
    settle()
    A.label('L_S2_dm3')
    A('s_barrier')
    A('s_cmp_lt_u32 %s, %d' % (s(SSEG), Cfg.nseg))
    A('s_cbranch_scc1 L_S2_dma')
    A('s_branch L_exit')
    Cfg.tregs = (4, 5)

def role_X2(A):
    VZ, VT = 3, 4
    VIDX = 6
    VHS, VXR, VFI, VCAN = 8, 9, 10, 11
    VRD = (12, 13, 14, 15)
    D = 16
    XR = 24
    FT = 28
    BB = 32
    PR = 64
    TRV = 224
    SZ, SPX, SH, SXO, SFL, SFLIN, SCAN, SWL, SJ, SHN, SCM, SNS = 62, 63, 64, 65, 66, 67, 68, 70, 71, 72, 78, 69
    SZ0, SH0, SX0 = 32, 33, 34
    NJ = 5 * Cfg.nseg
    A.label('L_role_X2')
    def mark(i):
        if Cfg.trace and not os.environ.get('LIGHT'):
            A('s_mov_b32 m0, %s' % s(SSEG))
            A('s_memrealtime s[82:83]'); A('s_waitcnt lgkmcnt(0)')
            A('v_writelane_b32 %s, s82, %s' % (v(TRV + i), 'm0'))
    if Cfg.trace:
        for i in range(8): A('v_mov_b32 %s, 0' % v(TRV + i))
    sparse_idx(A, VIDX, VT)
    out_lanes(A, 28, 29, VT)
    A('v_lshl_add_u32 %s, %s, 8, %s' % (v(VHS), v(VT + 1), v(VT)))
    A('v_mul_u32_u24 %s, 1280, v28' % v(VXR))
    A('v_lshl_add_u32 %s, v29, 2, %s' % (v(VXR), v(VXR)))
    A('s_mul_i32 %s, s80, 1280' % s(ST0))
    A('s_add_u32 %s, %s, %d' % (s(ST0), s(ST0), (FL_S - 32) * 128))
    A('s_mov_b32 %s, %d' % (s(ST1), FL_P * 128))
    A('v_min_u32 %s, 41, %s' % (v(VT), v(VLANE)))
    A('v_lshlrev_b32 %s, 7, %s' % (v(VT), v(VT)))
    A('v_add_u32 %s, %s, %s' % (v(VFI), s(ST0), v(VT)))
    A('v_add_u32 %s, %s, %s' % (v(VT), s(ST1), v(VT)))
    A('v_cmp_gt_u32 vcc, 32, %s' % v(VLANE))
    A('v_cndmask_b32 %s, %s, %s, vcc' % (v(VFI), v(VFI), v(VT)))
    flag_voff(A, VCAN, 32)
    for i in range(4): A('v_add_u32 %s, %d, %s' % (v(VRD[i]), i * ZT, v(VL16)))
    for i in range(0, 80, 2): A('v_pk_mov_b32 %s, 0, 0' % v(PR + i, 2))
    parity_masks(A)
    A('v_bfe_u32 %s, %s, 3, 1' % (v(VT), v(VLANE)))
    A('v_bfe_u32 %s, %s, 4, 1' % (v(VT + 1), v(VLANE)))
    A('v_lshl_add_u32 %s, %s, 1, %s' % (v(VT), v(VT), v(VT + 1)))
    A('v_cmp_ge_u32 %s, %s, %s' % (s(SCM, 2), s(SW), v(VT)))
    A('s_mul_i32 %s, %s, 20480' % (s(SWL), s(SW)))
    A('s_mul_i32 %s, s80, %d' % (s(SZ0), 10 * ZT))
    A('s_add_u32 %s, %s, 0x%x' % (s(SZ0), s(SZ0), VO))
    SVW, SUW, SOK, SZC = 35, 36, 37, 38
    A('s_lshr_b32 %s, %s, 1' % (s(ST0), s(SW)))
    A('s_mul_i32 %s, %s, %d' % (s(ST0), s(ST0), ZT))
    A('s_and_b32 %s, %s, 1' % (s(ST1), s(SW)))
    A('s_lshl_b32 %s, %s, 14' % (s(SVW), s(ST1)))
    A('s_add_u32 %s, %s, %s' % (s(SVW), s(SVW), s(ST0)))
    A('s_lshl_b32 %s, %s, 12' % (s(SUW), s(ST1)))
    A('s_add_u32 %s, %s, %s' % (s(SUW), s(SUW), s(ST0)))
    A('s_add_u32 %s, %s, 32768' % (s(SUW), s(SUW)))
    A('s_mov_b32 %s, 0' % s(SOK))
    A('s_lshr_b32 %s, %s, 1' % (s(ST0), s(SW)))
    A('s_mul_i32 %s, %s, 20480' % (s(SH0), s(ST0)))
    A('s_mul_i32 %s, s80, 5120' % s(ST0))
    A('s_add_u32 %s, %s, %s' % (s(SH0), s(SH0), s(ST0)))
    A('s_and_b32 %s, %s, 1' % (s(ST0), s(SW)))
    A('s_lshl_b32 %s, %s, 7' % (s(ST0), s(ST0)))
    A('s_add_u32 %s, %s, %s' % (s(SH0), s(SH0), s(ST0)))
    A('s_add_u32 %s, %s, 0x%x' % (s(SH0), s(SH0), HF))
    A('s_mul_i32 %s, %s, %d' % (s(SX0), s(SW), 8 * 1280))
    A('s_mul_i32 %s, s80, 320' % s(ST0))
    A('s_add_u32 %s, %s, %s' % (s(SX0), s(SX0), s(ST0)))
    A('s_mul_i32 %s, s80, 6' % s(ST1))
    A('s_add_u32 %s, %s, %s' % (s(ST1), s(ST1), s(SIDX)))
    flag_addr(A, SFL, ST1, FL_H)
    A('s_mov_b32 %s, 0x%x' % (s(SFLIN), FLAGS))
    A('s_mov_b32 %s, 0x%x' % (s(SCAN), FLAGS + (FL_W + 96) * 128))
    wait_init(A, VZ, VT)
    def decode(add):
        A('s_add_u32 %s, %s, %d' % (s(ST2), s(SJ), add))
        A('s_mul_i32 %s, %s, 13108' % (s(SNS), s(ST2)))
        A('s_lshr_b32 %s, %s, 16' % (s(SNS), s(SNS)))
        A('s_mul_i32 %s, %s, 5' % (s(ST3), s(SNS)))
        A('s_sub_u32 %s, %s, %s' % (s(ST3), s(ST2), s(ST3)))
        A('s_mul_i32 %s, %s, %d' % (s(SZ), s(SNS), 40 * ZT))
        A('s_mul_i32 %s, %s, %d' % (s(ST2), s(ST3), 2 * ZT))
        A('s_add_u32 %s, %s, %s' % (s(SZ), s(SZ), s(ST2)))
        A('s_add_u32 %s, %s, %s' % (s(SZ), s(SZ), s(SZ0)))
        A('s_mul_i32 %s, %s, 81920' % (s(SPX), s(SNS)))
        A('s_add_u32 %s, %s, %s' % (s(SPX), s(SPX), s(SWL)))
        A('s_add_u32 %s, %s, 0x%x' % (s(SPX), s(SPX), PX))
        A('s_mul_i32 %s, %s, 40960' % (s(ST2), s(SNS)))
        A('s_lshl_b32 %s, %s, 6' % (s(SXO), s(ST3)))
        A('s_add_u32 %s, %s, %s' % (s(SXO), s(SXO), s(ST2)))
        A('s_add_u32 %s, %s, %s' % (s(SXO), s(SXO), s(SX0)))
        A('s_lshl_b32 %s, %s, 10' % (s(SHN), s(ST3)))
        A('s_add_u32 %s, %s, %s' % (s(SHN), s(SHN), s(ST2)))
        A('s_add_u32 %s, %s, %s' % (s(SHN), s(SHN), s(SH0)))
    def vo_ops(buf):
        ops = []
        for q in range(4):
            for j in range(4):
                o = ['s_add_u32 m0, %s, %d' % (s(SVW), buf * 2 * ZT + q * 4096), 's_add_u32 s60, %s, %d' % (s(SZC), q * 4096)] if j == 0 else []
                ops.append(o + ['buffer_load_dwordx4 %s, %s, s60 offen offset:%d sc1 lds' % (v(VL16), s(S_WS, 4), j * 1024)])
        return ops
    def vo_ready():
        L = A.newlabel('Lv')
        A('s_add_u32 %s, %s, %s' % (s(SZC), s(SZ), s(SVW)))
        A('s_cmp_lt_u32 %s, %s' % (s(SNS), s(SOK)))
        A('s_cbranch_scc1 %s' % L)
        A('s_add_u32 %s, %s, 1' % (s(SOK), s(SNS)))
        poll4_ge(A, VCAN, s(SCAN), s(SOK), FT, sleep=4)
        A('s_add_u32 %s, %s, 8' % (s(ST1), s(SOK)))
        A('s_min_u32 %s, %s, %d' % (s(ST1), s(ST1), Cfg.nseg))
        A('v_cmp_gt_u32 vcc, %s, %s' % (s(ST1), v(FT)))
        A('s_cmp_eq_u64 vcc, 0')
        A('s_cselect_b32 %s, %s, %s' % (s(SOK), s(ST1), s(SOK)))
        A.label(L)
    def body(buf, more):
        A('s_mov_b32 %s, %s' % (s(SSEG), s(SNS)))
        for t in range(2):
            A('buffer_load_dword %s, %s, %s, %s offen offset:%d' % (v(XR + t), v(VXR), s(S_X, 4), s(SXO), t * 32))
        A('s_waitcnt vmcnt(0)')
        post_wflag(A, VZ, VT, SFL, SJ)
        Lw = A.newlabel('Lw')
        A('s_cmp_lg_u32 %s, 0' % s(SW))
        A('s_cbranch_scc1 %s' % Lw)
        A('s_add_u32 %s, %s, 1' % (s(ST1), s(SNS)))
        poll_ge(A, S_WS, VFI, s(SFLIN), s(ST1), VT, sleep=XSLEEP)
        A.label(Lw)
        A('s_barrier')
        mark(2)
        A('s_add_u32 m0, %s, %d' % (s(SUW), buf * 2 * ZT))
        A('s_add_u32 s60, %s, %s' % (s(SZ), s(SUW)))
        for j in range(4):
            A('buffer_load_dwordx4 %s, %s, s60 offen offset:%d sc1 lds' % (v(VL16), s(S_WS, 4), j * 1024))
        A('s_mov_b64 exec, %s' % s(SCM, 2))
        for q in range(5):
            if q == 4: A('s_mov_b64 exec, -1')
            A('s_add_u32 s61, %s, %d' % (s(SPX), q * 4096))
            for j in range(4):
                A('buffer_load_dwordx4 %s, %s, %s, s61 offen offset:%d sc1' % (v(PR + (q * 4 + j) * 4, 4), v(VL16), s(S_WS, 4), j * 1024))
        A('s_mov_b32 %s, %s' % (s(SH), s(SHN)))
        if more:
            decode(6)
            vo_ready()
        for i in range(0, 8, 2): A('v_pk_mov_b32 %s, 0, 0' % v(D + i, 2))
        A('s_waitcnt vmcnt(0)')
        A('s_barrier')
        mark(3)
        fo = vo_ops(1 - buf) if more else []
        lg = Lg(A)
        seq = [(t, i) for t in range(2) for i in range(20)]
        def rd(k):
            t, i = seq[k]
            for h in range(2):
                lg.issue('ds_read_b128 %s, %s offset:%d' % (v(BB + (k % 4) * 8 + 4 * h, 4), v(VRD[buf * 2 + t]), i * 2048 + h * 1024), k)
        rd(0); rd(1); rd(2)
        for k, (t, i) in enumerate(seq):
            lg.wait(k)
            A('v_smfmac_f32_16x16x64_bf16 %s, %s, %s, %s' % (v(D + 4 * t, 4), v(PR + 4 * i, 4), v(BB + (k % 4) * 8, 8), v(VIDX)))
            if k + 3 < 40: rd(k + 3)
            if fo and k % 2 == 0:
                for x in fo.pop(0): A(x)
        for t in range(2):
            d = D + 4 * t; x = XR + t
            halves(A, d)
            pack(A, d)
            A('v_lshlrev_b32 %s, 16, %s' % (v(d + 1), v(d)))
            A('v_and_b32 %s, 0xffff0000, %s' % (v(d), v(d)))
            A('v_lshlrev_b32 %s, 16, %s' % (v(d + 2), v(x)))
            A('v_and_b32 %s, 0xffff0000, %s' % (v(d + 3), v(x)))
            A('v_add_f32 %s, %s, %s' % (v(d + 1), v(d + 1), v(d + 2)))
            A('v_add_f32 %s, %s, %s' % (v(d), v(d), v(d + 3)))
            A('v_cvt_pk_bf16_f32 %s, %s, %s' % (v(d), v(d + 1), v(d)))
            A('buffer_store_dword %s, %s, %s, %s offen offset:%d sc1' % (v(d), v(VHS), s(S_WS, 4), s(SH), t * 512))
        mark(4)
        A('s_add_u32 %s, %s, 6' % (s(SJ), s(SJ)))
    A('s_mov_b32 %s, %s' % (s(SJ), s(SIDX)))
    decode(0)
    vo_ready()
    for o in vo_ops(0):
        for x in o: A(x)
    A.label('L_loop_X2')
    for buf in range(2):
        A('s_cmp_ge_u32 %s, %d' % (s(SJ), NJ - 6))
        A('s_cbranch_scc1 L_X2_fin%d' % buf)
        body(buf, True)
    A('s_branch L_loop_X2')
    A.label('L_X2_fin0')
    body(0, False)
    A('s_branch L_X2_end')
    A.label('L_X2_fin1')
    body(1, False)
    A.label('L_X2_end')
    A('s_waitcnt vmcnt(0)')
    post_wflag(A, VZ, VT, SFL, SJ)
    if Cfg.trace:
        A('s_barrier')
        A('v_lshlrev_b32 v3, 2, %s' % v(VLANE)); A('v_add_u32 v4, s84, v3')
        for i in range(8): A('ds_write_b32 v4, %s offset:%d' % (v(TRV + i), i * 256))
        A('s_waitcnt lgkmcnt(0)')
    A('s_branch L_exit')

def role_F2(A):
    VZ, VT = 3, 4
    VDM, VTA, VTB, VG, VR, VQ = 6, 7, 8, 9, 10, 11
    VFI, VRW, VRR, VHL, VOS = 12, 13, 14, 15, 16
    FT = 20
    HR = 24
    ACC = 32
    AF = 64
    RD = 160
    RROW = 272
    RB_ = 4 * 32 * RROW
    SB, SIN, SH, SO, SFLIN = 71, 72, 73, 62, 63
    A.label('L_role_F2')
    srd(A, S_WT, P_W2, 1536 * 640 * 2)
    srd(A, S_MISC, P_OUT, 2048 * 640 * 2)
    lane_parts(A, VG, VR, VQ)
    A('s_lshl_b32 %s, %s, 7' % (s(SB), s(SIDX)))
    A('s_mul_i32 %s, %s, %d' % (s(ST0), s(SW), 384 * 1280))
    A('s_add_u32 %s, %s, %s' % (s(SB), s(SB), s(ST0)))
    A('v_lshrrev_b32 %s, 3, %s' % (v(VDM), v(VLANE)))
    A('v_mul_u32_u24 %s, 1280, %s' % (v(VDM), v(VDM)))
    A('v_and_b32 %s, 7, %s' % (v(VT), v(VLANE)))
    A('v_lshl_add_u32 %s, %s, 4, %s' % (v(VDM), v(VT), v(VDM)))
    A('v_lshl_add_u32 %s, %s, 2, %s' % (v(VTA), v(VG), v(VR)))
    A('v_lshlrev_b32 %s, 7, %s' % (v(VTA), v(VTA)))
    A('v_lshl_add_u32 %s, %s, 3, %s' % (v(VTA), v(VQ), v(VTA)))
    A('s_lshl_b32 %s, %s, 12' % (s(ST0), s(SW)))
    A('v_add_u32 %s, %s, %s' % (v(VTA), s(ST0), v(VTA)))
    chunks = []
    for i in range(12):
        reads = [(a((i * 4 + ct) * 4 + 2 * p, 2), p * 2048 + ct * 32) for ct in range(4) for p in range(2)]
        chunks.append(dict(srd=S_WT, base=SB, dma=[(VDM, (32 * i + 8 * j) * 1280) for j in range(4)], taddr=VTA, reads=reads))
    load_weights(A, chunks, 16384, 8, VTB, NT_W)
    flag_voff(A, VFI, 12)
    A('s_lshl_b32 %s, %s, 11' % (s(SFLIN), s(SREP)))
    A('s_add_u32 %s, %s, 0x%x' % (s(SFLIN), s(SFLIN), FLAGS + FL_A * 128))
    A('v_and_b32 %s, 15, %s' % (v(VT), v(VLANE)))
    A('v_mul_u32_u24 %s, %d, %s' % (v(VRW), RROW, v(VT)))
    A('v_lshl_add_u32 %s, %s, 4, %s' % (v(VRW), v(VG), v(VRW)))
    A('s_mul_i32 %s, %s, %d' % (s(ST0), s(SW), 32 * RROW))
    A('v_add_u32 %s, %s, %s' % (v(VRW), s(ST0), v(VRW)))
    TK, CG = 28, 29
    A('v_lshrrev_b32 %s, 3, v0' % v(TK))
    A('v_and_b32 %s, 7, v0' % v(CG))
    A('v_mul_u32_u24 %s, %d, %s' % (v(VRR), RROW, v(TK)))
    A('v_lshl_add_u32 %s, %s, 5, %s' % (v(VRR), v(CG), v(VRR)))
    A('v_mul_u32_u24 %s, 1280, %s' % (v(VOS), v(TK)))
    A('v_lshl_add_u32 %s, %s, 4, %s' % (v(VOS), v(CG), v(VOS)))
    A('v_lshrrev_b32 %s, 4, %s' % (v(VT), v(TK)))
    A('v_mul_u32_u24 %s, 20480, %s' % (v(VHL), v(VT)))
    A('v_lshl_add_u32 %s, %s, 8, %s' % (v(VHL), v(CG), v(VHL)))
    A('v_and_b32 %s, 15, %s' % (v(VT), v(TK)))
    A('v_lshl_add_u32 %s, %s, 4, %s' % (v(VHL), v(VT), v(VHL)))
    A('s_lshl_b32 %s, %s, 11' % (s(SH), s(SIDX)))
    A('s_add_u32 %s, %s, 0x%x' % (s(SH), s(SH), HF))
    A('s_lshl_b32 %s, %s, 7' % (s(SO), s(SIDX)))
    A('s_mul_i32 %s, %s, 12288' % (s(SIN), s(SW)))
    A('s_add_u32 %s, %s, 0x%x' % (s(SIN), s(SIN), ACT))
    A('s_mul_i32 %s, %s, 40960' % (s(ST0), s(SREP)))
    A('s_add_u32 %s, %s, %s' % (s(SH), s(SH), s(ST0)))
    A('s_add_u32 %s, %s, %s' % (s(SO), s(SO), s(ST0)))
    A('s_mul_i32 %s, %s, 98304' % (s(ST0), s(SREP)))
    A('s_add_u32 %s, %s, %s' % (s(SIN), s(SIN), s(ST0)))
    A('s_mov_b32 %s, %s' % (s(SSEG), s(SREP)))
    A.label('L_loop_F2')
    for buf in range(2):
        A('s_add_u32 %s, %s, 1' % (s(SSEG), s(SSEG)))
        poll4_ge(A, VFI, s(SFLIN), s(SSEG), FT, sleep=2)
        prof(A, 5, 1)
        A('buffer_load_dwordx4 %s, %s, %s, %s offen sc1' % (v(HR, 4), v(VHL), s(S_WS, 4), s(SH)))
        for q in range(3):
            A('s_add_u32 %s, %s, %d' % (s(ST0), s(SIN), q * 4096))
            A('s_add_u32 %s, %s, %d' % (s(ST1), s(SIN), q * 4096 + 49152))
            for j in range(4):
                for tt in range(2):
                    A('buffer_load_dwordx4 %s, %s, %s, %s offen offset:%d sc1' % (v(AF + ((q * 4 + j) * 2 + tt) * 4, 4), v(VL16), s(S_WS, 4), s((ST0, ST1)[tt]), j * 1024))
        for i in range(12):
            for tt in range(2):
                A('s_waitcnt vmcnt(%d)' % (23 - (2 * i + tt)))
                for ct in range(4):
                    d = v(ACC + (tt * 4 + ct) * 4, 4)
                    A('v_mfma_f32_16x16x32_bf16 %s, %s, %s, %s' % (d, a((i * 4 + ct) * 4, 4), v(AF + (2 * i + tt) * 4, 4), '0' if i == 0 else d))
        for tt in range(2):
            for ct in range(4):
                A('ds_write_b128 %s, %s offset:%d' % (v(VRW), v(ACC + (tt * 4 + ct) * 4, 4), tt * 16 * RROW + ct * 64))
        A('s_waitcnt lgkmcnt(0)')
        A('s_barrier')
        prof(A, 6, 1)
        for w in range(4):
            for h in range(2):
                A('ds_read_b128 %s, %s offset:%d' % (v(RD + w * 8 + 4 * h, 4), v(VRR), w * 32 * RROW + h * 16))
        op = 'v_add_u32' if buf == 0 else 'v_subrev_u32'
        A('%s %s, %d, %s' % (op, v(VRW), RB_, v(VRW)))
        A('%s %s, %d, %s' % (op, v(VRR), RB_, v(VRR)))
        A('s_waitcnt lgkmcnt(0)')
        for i in range(8):
            A('v_add_f32 %s, %s, %s' % (v(RD + i), v(RD + i), v(RD + 8 + i)))
            A('v_add_f32 %s, %s, %s' % (v(RD + 16 + i), v(RD + 16 + i), v(RD + 24 + i)))
        for i in range(8):
            A('v_add_f32 %s, %s, %s' % (v(RD + i), v(RD + i), v(RD + 16 + i)))
        for i in range(4):
            p = RD + 8 + i; lo = RD + 12; hi = RD + 13; xl = RD + 14; xh = RD + 15
            A('v_cvt_pk_bf16_f32 %s, %s, %s' % (v(p), v(RD + 2 * i), v(RD + 2 * i + 1)))
            A('v_lshlrev_b32 %s, 16, %s' % (v(lo), v(p)))
            A('v_and_b32 %s, 0xffff0000, %s' % (v(hi), v(p)))
            A('v_lshlrev_b32 %s, 16, %s' % (v(xl), v(HR + i)))
            A('v_and_b32 %s, 0xffff0000, %s' % (v(xh), v(HR + i)))
            A('v_add_f32 %s, %s, %s' % (v(lo), v(lo), v(xl)))
            A('v_add_f32 %s, %s, %s' % (v(hi), v(hi), v(xh)))
            A('v_cvt_pk_bf16_f32 %s, %s, %s' % (v(p), v(lo), v(hi)))
        A('buffer_store_dwordx4 %s, %s, %s, %s offen' % (v(RD + 8, 4), v(VOS), s(S_MISC, 4), s(SO)))
        A('s_add_u32 %s, %s, %d' % (s(SO), s(SO), 40960 * NREP))
        A('s_add_u32 %s, %s, %d' % (s(SH), s(SH), 40960 * NREP))
        A('s_add_u32 %s, %s, %d' % (s(SIN), s(SIN), 98304 * NREP))
        prof(A, 7, 1)
        A('s_add_u32 %s, %s, %d' % (s(SSEG), s(SSEG), NREP - 1))
    A('s_cmp_lt_u32 %s, %d' % (s(SSEG), Cfg.nseg))
    A('s_cbranch_scc1 L_loop_F2')
    A('s_branch L_exit')
```

```python
import sys, os
sys.path.insert(0, os.path.dirname(os.path.abspath(__file__)))
from asmlib import *

NAME = 'sequential_preLN__memory_aug_recurrent_mem_tr__dense_activation_mish__prompt'
MB = 1 << 20
URING = 0
CANB = 80 * 16384
CANA = 81 * 16384
PROBE = 82 * 16384
COMM = 96 * 16384
U_P = 0
U_PM = 16384
U_MEM = 20480
FLAGS = 6 * MB
FL_W, FL_H, FL_S, FL_A, FL_P = 0, 128, 152, 192, 256
STAT1 = 6 * MB + 65536
XF = 2 * MB
PX = 7 * MB
HF = 13 * MB
ACT = 16 * MB
QKV = 24 * MB
VO = 96 * MB
ZT = 40960
WS_BYTES = 256 * MB
NSEG = 64
SPIN = 1 << 20
NPROBE = int(os.environ.get('NPROBE', '4'))
FLAGPOS = int(os.environ.get('FLAGPOS', '11'))
def xp(u):
    return ((u >> 13) << 14) | (u & 8191)

SW = 3
S_WS, S_WT, S_X, S_DBG, S_MISC = 4, 8, 12, 16, 20
SIDX, SSEG, SSEL, SSPIN = 24, 25, 26, 27
ST0, ST1, ST2, ST3 = 28, 29, 30, 31
P_X, P_MEM0, P_WQ, P_WK, P_WV, P_WO = 32, 34, 36, 38, 40, 42
P_W1, P_B1, P_W2, P_OUT, P_DBG, P_WS = 48, 50, 52, 54, 56, 58
VLANE, VL16 = 1, 2
SREP = 81
NREP = 4

class Cfg:
    roles = {'G', 'O', 'QK', 'VO', 'S2', 'X2', 'F1', 'F2'}
    nseg = NSEG
    prof = False
    trace = False
    tregs = (4, 5)
PROF = 23 * MB
TRACE = 200 * MB

TRL = 155648
def prof_init(A):
    if Cfg.trace:
        A('s_lshl_b32 s84, %s, 11' % s(SW)); A('s_add_u32 s84, s84, %d' % TRL)
        A('s_mov_b32 %s, 0' % s(SSEG)); A('s_mov_b32 s100, 0')
        A('s_memrealtime s[86:87]'); A('s_memtime s[88:89]'); A('s_waitcnt lgkmcnt(0)')
        return
    if not Cfg.prof: return
    for i in range(86, 102): A('s_mov_b32 s%d, 0' % i)
    A('s_memtime s[82:83]'); A('s_waitcnt lgkmcnt(0)'); A('s_mov_b32 s84, s82')
def prof(A, i, back=0):
    if Cfg.trace:
        if i > 7 or (os.environ.get('LIGHT') and i > 1): return
        t0, t1 = Cfg.tregs
        A('%s s[82:83]' % ('s_memtime' if os.environ.get('CYC') else 's_memrealtime'))
        A('s_sub_u32 s85, %s, %d' % (s(SSEG), back)); A('s_and_b32 s85, s85, 63')
        A('s_lshl_b32 s85, s85, 2'); A('s_add_u32 s85, s85, s84')
        A('s_waitcnt lgkmcnt(0)')
        A('v_mov_b32 v%d, s85' % t0); A('v_mov_b32 v%d, s82' % t1)
        A('ds_write_b32 v%d, v%d offset:%d' % (t0, t1, i * 256))
        return
    if not Cfg.prof: return
    A('s_memtime s[82:83]'); A('s_waitcnt lgkmcnt(0)')
    A('s_sub_u32 s85, s82, s84'); A('s_add_u32 s%d, s%d, s85' % (86 + i, 86 + i)); A('s_mov_b32 s84, s82')
def prof_dump(A):
    if Cfg.trace:
        A('s_memrealtime s[82:83]'); A('s_memtime s[90:91]')
        A('s_lshl_b32 s85, s2, 2'); A('s_add_u32 s85, s85, %s' % s(SW)); A('s_lshl_b32 s85, s85, 12'); A('s_add_u32 s85, s85, 0x%x' % TRACE)
        A('v_lshlrev_b32 v3, 2, %s' % v(VLANE)); A('v_add_u32 v4, s84, v3')
        for i in range(8): A('ds_read_b32 v%d, v4 offset:%d' % (8 + i, i * 256))
        A('s_waitcnt lgkmcnt(0)')
        for i in range(8): A('buffer_store_dword v%d, v3, %s, s85 offen offset:%d' % (8 + i, s(S_WS, 4), i * 256))
        A('v_mov_b32 v8, s86'); A('v_mov_b32 v9, s82'); A('v_mov_b32 v10, s100')
        A('buffer_store_dword v8, v3, %s, s85 offen offset:2048' % s(S_WS, 4))
        A('buffer_store_dword v9, v3, %s, s85 offen offset:2304' % s(S_WS, 4))
        A('buffer_store_dword v10, v3, %s, s85 offen offset:2560' % s(S_WS, 4))
        A('s_sub_u32 s90, s90, s88'); A('v_mov_b32 v11, s90')
        A('buffer_store_dword v11, v3, %s, s85 offen offset:2816' % s(S_WS, 4))
        A('s_waitcnt vmcnt(0)')
        return
    if not Cfg.prof: return
    A('s_lshl_b32 s85, s2, 2'); A('s_add_u32 s85, s85, %s' % s(SW)); A('s_lshl_b32 s85, s85, 6'); A('s_add_u32 s85, s85, 0x%x' % PROF)
    A('s_mov_b64 exec, 1'); A('v_mov_b32 v3, 0')
    for i in range(16):
        A('v_mov_b32 v4, s%d' % (86 + i))
        A('buffer_store_dword v4, v3, %s, s85 offen offset:%d' % (s(S_WS, 4), 4 * i))
    A('s_waitcnt vmcnt(0)')

def srd(A, d, ptr, nbytes):
    A('s_mov_b32 %s, %s' % (s(d), s(ptr)))
    A('s_and_b32 %s, %s, 0xffff' % (s(d + 1), s(ptr + 1)))
    A('s_mov_b32 %s, 0x%x' % (s(d + 2), nbytes))
    A('s_mov_b32 %s, 0x20000' % s(d + 3))

def spin_dec(A):
    A('s_sub_u32 %s, %s, 1' % (s(SSPIN), s(SSPIN)))
    A('s_cbranch_scc1 L_abort')

def poll_ge(A, srdreg, voff, soff, want, vt, sleep=1, out_s=None):
    L = A.newlabel('Lp'); D = A.newlabel('Ld')
    A('s_mov_b32 %s, 0x%x' % (s(SSPIN), SPIN))
    A.label(L)
    A('buffer_load_dword %s, %s, %s, %s offen sc1' % (v(vt), v(voff), s(srdreg, 4), soff))
    A('s_waitcnt vmcnt(0)')
    A('v_cmp_gt_u32 vcc, %s, %s' % (want, v(vt)))
    A('s_cbranch_vccz %s' % D)
    spin_dec(A)
    if sleep: A('s_sleep %d' % sleep)
    A('s_branch %s' % L)
    A.label(D)
    if out_s is not None:
        A('v_readfirstlane_b32 %s, %s' % (s(out_s), v(vt)))

def wait_init(A, vz, vt, early=False):
    A('v_mov_b32 %s, 0' % v(vz))
    if early:
        A('s_mov_b32 %s, 132' % s(ST1))
        poll_ge(A, S_DBG, vz, s(ST1), '1', vt, sleep=6)
        return
    A('s_mov_b32 %s, 128' % s(ST1))
    poll_ge(A, S_DBG, vz, s(ST1), '1', vt, sleep=6, out_s=SSEL)
    A('s_and_b32 %s, %s, 0xffff' % (s(SSEL), s(SSEL)))
    A('s_cmp_gt_u32 %s, %d' % (s(SSEL), 128 * NPROBE))
    A('s_cselect_b32 %s, 8192, 0' % s(SSEL))

def post_flag(A, vz, vt, soff, val_s):
    L = A.newlabel('Lf')
    A('s_cmp_lg_u32 %s, 0' % s(SW))
    A('s_cbranch_scc1 %s' % L)
    A('v_mov_b32 %s, %s' % (v(vt), s(val_s)))
    A('s_mov_b64 exec, 1')
    A('buffer_store_dword %s, %s, %s, %s offen sc1' % (v(vt), v(vz), s(S_WS, 4), s(soff)))
    A('s_mov_b64 exec, -1')
    A.label(L)

QLATE = int(os.environ.get('QLATE', '1')); FAST0 = int(os.environ.get('FAST0', '1'))
RCAP = int(os.environ.get('RCAP', '99')); WCAP = int(os.environ.get('WCAP', '3'))
NT_W = ' nt' if os.environ.get('NTW') else ''
NT_R = ' nt' if os.environ.get('NTR') else ''
def flag_addr(A, dst, idx, base_line):
    A('s_lshl_b32 %s, %s, 7' % (s(dst), s(idx)))
    A('s_lshl_b32 %s, %s, 2' % (s(ST0), s(SW)))
    A('s_add_u32 %s, %s, %s' % (s(dst), s(dst), s(ST0)))
    A('s_add_u32 %s, %s, 0x%x' % (s(dst), s(dst), FLAGS + base_line * 128))

def flag_voff(A, r, n):
    A('v_cmp_gt_u32 vcc, %d, %s' % (n, v(VLANE)))
    A('v_lshlrev_b32 %s, 7, %s' % (v(r), v(VLANE)))
    A('v_cndmask_b32 %s, 0, %s, vcc' % (v(r), v(r)))

def post_wflag(A, vz, vt, soff, val_s):
    A('v_mov_b32 %s, %s' % (v(vt), s(val_s)))
    A('s_mov_b64 exec, 1')
    A('buffer_store_dword %s, %s, %s, %s offen sc1' % (v(vt), v(vz), s(S_WS, 4), s(soff)))
    A('s_mov_b64 exec, -1')

def poll4_ge(A, voff, soff, want, vt4, sleep=1, out_s=None):
    L = A.newlabel('Lp'); D = A.newlabel('Ld')
    A('s_mov_b32 %s, 0x%x' % (s(SSPIN), SPIN))
    A.label(L)
    A('buffer_load_dwordx4 %s, %s, %s, %s offen sc1' % (v(vt4, 4), v(voff), s(S_WS, 4), soff))
    A('s_waitcnt vmcnt(0)')
    A('v_min3_u32 %s, %s, %s, %s' % (v(vt4), v(vt4), v(vt4 + 1), v(vt4 + 2)))
    A('v_min_u32 %s, %s, %s' % (v(vt4), v(vt4), v(vt4 + 3)))
    A('v_cmp_gt_u32 vcc, %s, %s' % (want, v(vt4)))
    A('s_cbranch_vccz %s' % D)
    spin_dec(A)
    if sleep: A('s_sleep %d' % sleep)
    A('s_branch %s' % L)
    A.label(D)
    if out_s is not None:
        A('v_readfirstlane_b32 %s, %s' % (s(out_s), v(vt4)))

def load_weights(A, chunks, slot_bytes, nslots, vaddr_tmp, mod='', cap=99):
    nslots = min(nslots, cap)
    ns = sorted({len(c['dma']) for c in chunks})
    wl = {}
    for i, n in enumerate(ns):
        wl[n] = 61 + i
        A('s_mul_i32 %s, %s, %d' % (s(61 + i), s(SW), n * 1024))
    def issue(ci):
        c = chunks[ci]; n = len(c['dma']); slot = ci % nslots
        for j, (vo, k) in enumerate(c['dma']):
            A('s_add_u32 m0, %s, %d' % (s(wl[n]), slot * slot_bytes + j * 1024))
            A('s_add_u32 s60, %s, 0x%x' % (s(c['base']), k))
            A('buffer_load_dwordx4 %s, %s, s60 offen%s lds' % (v(vo), s(c['srd'], 4), mod))
    N = len(chunks)
    for ci in range(min(nslots - 1, N)):
        issue(ci)
    for ci in range(N):
        out = sum(len(chunks[k]['dma']) for k in range(ci + 1, min(ci + nslots - 1, N)))
        assert out <= 63
        A('s_waitcnt vmcnt(%d)' % out)
        A('s_barrier')
        if ci + nslots - 1 < N:
            issue(ci + nslots - 1)
        c = chunks[ci]; slot = ci % nslots
        A('v_add_u32 %s, 0x%x, %s' % (v(vaddr_tmp), slot * slot_bytes, v(c['taddr'])))
        for dst, imm in ([] if os.environ.get('NOTR') else c['reads']):
            A('ds_read_b64_tr_b16 %s, %s offset:%d' % (dst, v(vaddr_tmp), imm))
        A('s_waitcnt lgkmcnt(0)')
    A('s_barrier')
    if os.environ.get('WONLY'): A('s_branch L_exit')

def lane_parts(A, vg, vr, vq):
    A('v_lshrrev_b32 %s, 4, %s' % (v(vg), v(VLANE)))
    A('v_bfe_u32 %s, %s, 2, 2' % (v(vr), v(VLANE)))
    A('v_and_b32 %s, 3, %s' % (v(vq), v(VLANE)))

def dma_voffs_384(A, d, RS, t0, t1):
    for j in range(3):
        A('v_add_u32 %s, %d, %s' % (v(t0), 64 * j, v(VLANE)))
        A('v_mul_u32_u24 %s, 2731, %s' % (v(t1), v(t0)))
        A('v_lshrrev_b32 %s, 16, %s' % (v(t1), v(t1)))
        A('v_mul_u32_u24 %s, 24, %s' % (v(d + j), v(t1)))
        A('v_sub_u32 %s, %s, %s' % (v(t0), v(t0), v(d + j)))
        A('v_lshlrev_b32 %s, 4, %s' % (v(t0), v(t0)))
        A('v_mul_u32_u24 %s, %d, %s' % (v(t1), RS, v(t1)))
        A('v_add_u32 %s, %s, %s' % (v(d + j), v(t0), v(t1)))

def bf16_round(A, r):
    A('v_cvt_pk_bf16_f32 %s, %s, %s' % (v(r), v(r), v(r)))
    A('v_and_b32 %s, 0xffff0000, %s' % (v(r), v(r)))

def ln_finalize(A, s1, s2, m, r):
    A('v_mul_f32 %s, 0x3acccccd, %s' % (v(m), v(s1)))
    A('v_mul_f32 %s, 0x3acccccd, %s' % (v(r), v(s2)))
    A('v_fma_f32 %s, -%s, %s, %s' % (v(r), v(m), v(m), v(r)))
    A('v_max_f32 %s, 0, %s' % (v(r), v(r)))
    bf16_round(A, m); bf16_round(A, r)
    A('v_add_f32 %s, 0x3727c5ac, %s' % (v(r), v(r)))
    bf16_round(A, r)
    A('v_sqrt_f32 %s, %s' % (v(r), v(r)))
    bf16_round(A, r)
    A('v_rcp_f32 %s, %s' % (v(r), v(r)))

def stats_masks(A, sm, vt):
    A('v_bfe_u32 %s, %s, 2, 2' % (v(vt), v(VLANE)))
    A('v_lshrrev_b32 %s, 4, %s' % (v(vt + 1), v(VLANE)))
    A('v_cmp_eq_u32 %s, %s, %s' % (s(sm, 2), v(vt), v(vt + 1)))
    A('v_and_b32 %s, 1, %s' % (v(vt), v(VLANE)))
    A('v_cmp_eq_u32 %s, 1, %s' % (s(sm + 2, 2), v(vt)))
    A('v_and_b32 %s, 2, %s' % (v(vt), v(VLANE)))
    A('v_cmp_eq_u32 %s, 2, %s' % (s(sm + 4, 2), v(vt)))

def stats_exchange(A, SA, sm, VSW, VSR, PR, MEAN, RSTD):
    for tt in range(2):
        g = SA + tt * 8 + 4
        A('v_cndmask_b32 %s, %s, %s, %s' % (v(g), v(g), v(g + 1), s(sm + 2, 2)))
        A('v_cndmask_b32 %s, %s, %s, %s' % (v(g + 2), v(g + 2), v(g + 3), s(sm + 2, 2)))
        A('v_cndmask_b32 %s, %s, %s, %s' % (v(g), v(g), v(g + 2), s(sm + 4, 2)))
    A('s_mov_b64 exec, %s' % s(sm, 2))
    for tt in range(2):
        A('ds_write2_b32 %s, %s, %s offset0:%d offset1:%d' % (v(VSW), v(SA + tt * 8), v(SA + tt * 8 + 4), tt * 32, tt * 32 + 1))
    A('s_mov_b64 exec, -1')
    A('s_waitcnt lgkmcnt(0)')
    A('s_barrier')
    for tt in range(2):
        for w in range(4):
            A('ds_read_b64 %s, %s offset:%d' % (v(PR + (tt * 4 + w) * 2, 2), v(VSR), w * 256 + tt * 128))
    A('s_waitcnt lgkmcnt(0)')
    for tt in range(2):
        b = PR + tt * 8
        for k in range(2):
            A('v_add_f32 %s, %s, %s' % (v(b + k), v(b + k), v(b + 2 + k)))
            A('v_add_f32 %s, %s, %s' % (v(b + 4 + k), v(b + 4 + k), v(b + 6 + k)))
            A('v_add_f32 %s, %s, %s' % (v(b + k), v(b + k), v(b + 4 + k)))
        ln_finalize(A, b, b + 1, MEAN(tt), RSTD(tt))

def role_G(A, f1):
    NT = 2 if f1 else 3
    RB = 32 * NT * 4
    RS = 3072 if f1 else 12288
    VZ, VT = 3, 4
    VDM = 6
    VTA, VTB = 10, 11
    VG, VR, VQ = 12, 13, 14
    VX = 15
    VRD = (16, 17)
    VFI = 18
    VST8 = 19
    VSW, VSR = 20, 21
    VO4, VO2 = 22, 23
    VONE = 24
    VCS = 28
    VBI = 40
    ACC = 52
    BB = 76
    SA = 100
    PR = 116
    MR = 132
    OUT = 140
    TM = 152
    FT = 160
    XB = 40960
    STATS = 2 * XB
    SK = 70
    SB, SIN, SOUT, SFL, SFLIN, SV, SST, SPROG, SPRE = 71, 72, 73, 62, 63, 64, 65, 66, 67
    SM = 74
    tag = 'F1' if f1 else 'G'
    A.label('L_role_' + tag)
    if f1:
        srd(A, S_WT, P_W1, 640 * 1536 * 2)
        A('s_mul_i32 %s, %s, 256' % (s(SB), s(SIDX)))
    else:
        A('s_cmp_eq_u32 %s, 1' % s(SK))
        A('s_cselect_b32 %s, %s, %s' % (s(ST0), s(P_WK), s(P_WQ)))
        A('s_cselect_b32 %s, %s, %s' % (s(ST1), s(P_WK + 1), s(P_WQ + 1)))
        A('s_cmp_eq_u32 %s, 2' % s(SK))
        A('s_cselect_b32 %s, %s, %s' % (s(ST0), s(P_WV), s(ST0)))
        A('s_cselect_b32 %s, %s, %s' % (s(ST1), s(P_WV + 1), s(ST1)))
        srd(A, S_WT, ST0, 640 * 6144 * 2)
        A('s_mul_i32 %s, %s, 384' % (s(SB), s(SIDX)))
    A('s_mul_i32 %s, %s, %d' % (s(ST0), s(SW), 16 * RS))
    A('s_add_u32 %s, %s, %s' % (s(SB), s(SB), s(ST0)))
    lane_parts(A, VG, VR, VQ)
    if f1:
        A('v_mul_u32_u24 %s, %d, %s' % (v(VDM), RS, v(VG)))
        A('v_and_b32 %s, 15, %s' % (v(VT), v(VLANE)))
        A('v_lshl_add_u32 %s, %s, 4, %s' % (v(VDM), v(VT), v(VDM)))
        dma = [(VDM, 4 * j * RS) for j in range(4)]
    else:
        dma_voffs_384(A, VDM, RS, VT, VT + 1)
        dma = [(VDM + j % 3, 8 * (j // 3) * RS) for j in range(6)]
    A('v_lshl_add_u32 %s, %s, 3, %s' % (v(VTA), v(VG), v(VR)))
    A('v_mul_u32_u24 %s, %d, %s' % (v(VTA), RB, v(VTA)))
    A('v_lshl_add_u32 %s, %s, 3, %s' % (v(VTA), v(VQ), v(VTA)))
    A('s_mul_i32 %s, %s, %d' % (s(ST0), s(SW), NT * 32))
    A('v_add_u32 %s, %s, %s' % (v(VTA), s(ST0), v(VTA)))
    chunks = []
    for ci in range(10):
        reads = []
        for kk in range(2):
            ks = 2 * ci + kk
            for t in range(NT):
                for p in range(2):
                    reads.append((a((ks * NT + t) * 4 + 2 * p, 2), (32 * kk + 4 * p) * RB + t * 32))
        chunks.append(dict(srd=S_WT, base=SB, dma=[(vo, k + ci * 64 * RS) for vo, k in dma], taddr=VTA, reads=reads))
    load_weights(A, chunks, 64 * RB, 6, VTB, NT_W)
    if f1:
        A('v_mov_b32 %s, %s' % (v(VX), v(VL16)))
        in_ks, in_tt, in_seg = 1024, 20480, 40960
        A('s_mul_i32 %s, %s, %d' % (s(SIN), s(SW), 5 * in_ks))
        A('s_add_u32 %s, %s, 0x%x' % (s(SIN), s(SIN), HF))
        A('s_mul_i32 %s, %s, %d' % (s(ST0), s(SREP), in_seg))
        A('s_add_u32 %s, %s, %s' % (s(SIN), s(SIN), s(ST0)))
        in_seg *= NREP
        insrd, inmod = S_WS, ' sc1'
    else:
        A('v_and_b32 %s, 15, %s' % (v(VT), v(VLANE)))
        A('v_mul_u32_u24 %s, 1280, %s' % (v(VX), v(VT)))
        A('v_lshl_add_u32 %s, %s, 4, %s' % (v(VX), v(VG), v(VX)))
        in_ks, in_tt, in_seg = 64, 20480, 40960
        A('s_mul_i32 %s, %s, %d' % (s(SIN), s(SW), 5 * in_ks))
        insrd, inmod = S_X, ''
    A('s_mul_i32 %s, %s, 5120' % (s(SV), s(SW)))
    def dma_ops(buf):
        ops = []
        for tt in range(2):
            for i in range(5):
                ops.append(['s_add_u32 m0, %s, %d' % (s(SV), buf * XB + tt * 20480 + i * 1024),
                            's_add_u32 s60, %s, %d' % (s(SIN), tt * in_tt + i * in_ks),
                            'buffer_load_dwordx4 %s, %s, s60 offen%s lds' % (v(VX), s(insrd, 4), inmod)])
        ops[-1].append('s_add_u32 %s, %s, %d' % (s(SIN), s(SIN), in_seg))
        return ops
    def dma_in(buf):
        for o in dma_ops(buf):
            for x in o: A(x)
    if not f1:
        dma_in(0)
    for i in range(4):
        A('v_mov_b32 %s, 0x3f803f80' % v(VONE + i))
    for ks in range(20):
        for t in range(NT):
            A('v_mfma_f32_16x16x32_bf16 %s, %s, %s, %s' % (v(VCS + 4 * t, 4), a((ks * NT + t) * 4, 4), v(VONE, 4), '0' if ks == 0 else v(VCS + 4 * t, 4)))
    if f1:
        srd(A, S_MISC, P_B1, 1536 * 2)
        A('s_lshl_b32 %s, %s, 8' % (s(ST0), s(SIDX)))
        A('s_lshl_b32 %s, %s, 6' % (s(ST1), s(SW)))
        A('s_add_u32 %s, %s, %s' % (s(ST0), s(ST0), s(ST1)))
        A('v_lshlrev_b32 %s, 3, %s' % (v(VT), v(VG)))
        for t in range(NT):
            A('buffer_load_dwordx2 %s, %s, %s, %s offen offset:%d' % (v(TM + 2 * t, 2), v(VT), s(S_MISC, 4), s(ST0), 32 * t))
        A('s_waitcnt vmcnt(0)')
        for t in range(NT):
            for h in range(2):
                A('v_lshlrev_b32 %s, 16, %s' % (v(VBI + 4 * t + 2 * h), v(TM + 2 * t + h)))
                A('v_and_b32 %s, 0xffff0000, %s' % (v(VBI + 4 * t + 2 * h + 1), v(TM + 2 * t + h)))
        stats_masks(A, SM, VT)
    A('v_mov_b32 %s, %s' % (v(VRD[0]), v(VL16)))
    A('v_add_u32 %s, %d, %s' % (v(VRD[1]), XB, v(VL16)))
    A('v_and_b32 %s, 15, %s' % (v(VT), v(VLANE)))
    A('v_lshlrev_b32 %s, 3, %s' % (v(VST8), v(VT)))
    A('v_add_u32 %s, %d, %s' % (v(VSR), STATS, v(VST8)))
    A('s_lshl_b32 %s, %s, 8' % (s(ST0), s(SW)))
    A('v_add_u32 %s, %s, %s' % (v(VSW), s(ST0), v(VSR)))
    A('v_mov_b32 %s, %s' % (v(VO4), v(VL16)))
    A('v_lshlrev_b32 %s, 3, %s' % (v(VO2), v(VLANE)))
    if f1:
        A('s_lshl_b32 %s, %s, 2' % (s(SOUT), s(SIDX)))
        A('s_add_u32 %s, %s, %s' % (s(SOUT), s(SOUT), s(SW)))
        A('s_lshl_b32 %s, %s, 10' % (s(SOUT), s(SOUT)))
        A('s_add_u32 %s, %s, 0x%x' % (s(SOUT), s(SOUT), ACT))
        A('s_mul_i32 %s, %s, 98304' % (s(ST0), s(SREP)))
        A('s_add_u32 %s, %s, %s' % (s(SOUT), s(SOUT), s(ST0)))
        out_seg = 98304 * NREP
        A('s_lshl_b32 %s, %s, 4' % (s(ST1), s(SREP)))
        A('s_add_u32 %s, %s, %s' % (s(ST1), s(ST1), s(SIDX)))
        flag_addr(A, SFL, ST1, FL_A)
        A('s_mov_b32 %s, 0x%x' % (s(SFLIN), FLAGS + FL_H * 128))
        flag_voff(A, VFI, 24)
    else:
        A('s_mul_i32 %s, %s, 0x%x' % (s(SOUT), s(SK), 24 * MB))
        A('s_mul_i32 %s, %s, 12288' % (s(ST0), s(SIDX)))
        A('s_add_u32 %s, %s, %s' % (s(SOUT), s(SOUT), s(ST0)))
        A('s_mul_i32 %s, %s, 3072' % (s(ST0), s(SW)))
        A('s_add_u32 %s, %s, %s' % (s(SOUT), s(SOUT), s(ST0)))
        A('s_add_u32 %s, %s, 0x%x' % (s(SOUT), s(SOUT), QKV))
        out_seg = 32 * 12288
        A('s_lshl_b32 %s, %s, 5' % (s(ST1), s(SK)))
        A('s_add_u32 %s, %s, %s' % (s(ST1), s(ST1), s(SIDX)))
        flag_addr(A, SFL, ST1, FL_W)
        A('s_mov_b32 %s, 0x%x' % (s(SST), STAT1))
    def load_stats(buf):
        for tt in range(2):
            A('buffer_load_dwordx2 %s, %s, %s, %s offen offset:%d sc1' % (v(MR + buf * 4 + tt * 2, 2), v(VST8), s(S_WS, 4), s(SST), tt * 128))
        A('s_add_u32 %s, %s, 256' % (s(SST), s(SST)))
    if not f1:
        prof(A, 0)
        wait_init(A, VZ, VT)
        prof(A, 1)
    A('s_mov_b32 %s, %s' % (s(SSEG), s(SREP) if f1 else '0'))
    P0 = 3 if f1 else 0
    if f1:
        A('v_mov_b32 %s, 0' % v(VZ))
        A('s_mov_b32 %s, 0' % s(SPRE))
    else:
        load_stats(0)
        A('s_waitcnt vmcnt(0)')
    LOOP = 'L_loop_' + tag
    A.label(LOOP)
    for buf in range(2):
        MEAN = lambda tt: MR + buf * 4 + tt * 2
        RSTD = lambda tt: MR + buf * 4 + tt * 2 + 1
        if f1:
            Lp = A.newlabel('Lq')
            A('s_cmp_eq_u32 %s, 1' % s(SPRE))
            A('s_cbranch_scc1 %s' % Lp)
            A('s_mul_i32 %s, %s, 5' % (s(ST1), s(SSEG)))
            A('s_add_u32 %s, %s, 5' % (s(ST1), s(ST1)))
            poll4_ge(A, VFI, s(SFLIN), s(ST1), FT, sleep=2)
            dma_in(buf)
            A.label(Lp)
            A('s_waitcnt vmcnt(0)')
            A('s_barrier')
            prof(A, 5)
            A('buffer_load_dwordx4 %s, %s, %s, %s offen sc1' % (v(FT, 4), v(VFI), s(S_WS, 4), s(SFLIN)))
            for i in range(16): A('v_mov_b32 %s, 0' % v(SA + i))
            dops = []
        else:
            A('s_waitcnt vmcnt(5)')
            A('s_barrier')
            prof(A, 2)
            dops = dma_ops(1 - buf)
        def rd(ks):
            for tt in range(2):
                A('ds_read_b128 %s, %s offset:%d' % (v(BB + (ks % 3) * 8 + tt * 4, 4), v(VRD[buf]), tt * 20480 + ks * 1024))
        rd(0); rd(1)
        ndma = 0
        for ks in range(20):
            if ks + 2 < 20:
                rd(ks + 2)
                A('s_waitcnt lgkmcnt(4)')
            elif ks + 1 < 20:
                A('s_waitcnt lgkmcnt(2)')
            else:
                A('s_waitcnt lgkmcnt(0)')
            k = 0
            for t in range(NT):
                for tt in range(2):
                    d = ACC + (tt * NT + t) * 4
                    A('v_mfma_f32_16x16x32_bf16 %s, %s, %s, %s' % (v(d, 4), a((ks * NT + t) * 4, 4), v(BB + (ks % 3) * 8 + tt * 4, 4), '0' if ks == 0 else v(d, 4)))
                    k += 1
                    if k == 2 and dops:
                        for x in dops.pop(0): A(x)
                        ndma += 1
            if f1:
                Lw = A.newlabel('Lw')
                A.raw('    s_cmp_lg_u32 %s, %d' % (s(SW), ks // 5))
                A.raw('    s_cbranch_scc1 %s' % Lw)
                for tt in range(2):
                    B = v(BB + (ks % 3) * 8 + tt * 4, 4)
                    A('v_mfma_f32_16x16x32_bf16 %s, %s, %s, %s' % (v(SA + tt * 8, 4), v(VONE, 4), B, v(SA + tt * 8, 4)))
                    A('v_mfma_f32_16x16x32_bf16 %s, %s, %s, %s' % (v(SA + tt * 8 + 4, 4), B, B, v(SA + tt * 8 + 4, 4)))
                A.label(Lw)
                if ks == 4:
                    Ln = A.newlabel('Ln')
                    A('s_waitcnt vmcnt(0)')
                    A('s_mul_i32 %s, %s, 5' % (s(ST1), s(SSEG)))
                    A('s_add_u32 %s, %s, %d' % (s(ST1), s(ST1), 5 * NREP + 5))
                    A('v_min3_u32 %s, %s, %s, %s' % (v(FT), v(FT), v(FT + 1), v(FT + 2)))
                    A('v_min_u32 %s, %s, %s' % (v(FT), v(FT), v(FT + 3)))
                    A('v_cmp_gt_u32 vcc, %s, %s' % (s(ST1), v(FT)))
                    A('s_mov_b32 %s, 0' % s(SPRE))
                    A('s_cbranch_vccnz %s' % Ln)
                    dma_in(1 - buf)
                    A('s_mov_b32 %s, 1' % s(SPRE))
                    A.label(Ln)
            elif ks == 10:
                load_stats(1 - buf)
            elif ks == FLAGPOS:
                A('s_waitcnt vmcnt(%d)' % (ndma + 2))
                post_wflag(A, VZ, VT, SFL, SSEG)
        assert not dops
        if not f1: prof(A, 3)
        if f1:
            A._nop(8)
            stats_exchange(A, SA, SM, VSW, VSR, PR, MEAN, RSTD)
        for tt in range(2):
            for t in range(NT):
                d = ACC + (tt * NT + t) * 4
                for r in range(4):
                    A('v_fma_f32 %s, -%s, %s, %s' % (v(d + r), v(MEAN(tt)), v(VCS + 4 * t + r), v(d + r)))
                for r in range(4):
                    if f1:
                        A('v_fma_f32 %s, %s, %s, %s' % (v(d + r), v(d + r), v(RSTD(tt)), v(VBI + 4 * t + r)))
                    else:
                        A('v_mul_f32 %s, %s, %s' % (v(d + r), v(d + r), v(RSTD(tt))))
                if f1:
                    for r in range(4): A('v_mul_f32 %s, 0x3fb8aa3b, %s' % (v(TM + r), v(d + r)))
                    for r in range(4): A('v_min_f32 %s, 0x42200000, %s' % (v(TM + r), v(TM + r)))
                    for r in range(4): A('v_exp_f32 %s, %s' % (v(TM + r), v(TM + r)))
                    for r in range(4): A('v_add_f32 %s, 2.0, %s' % (v(TM + 4 + r), v(TM + r)))
                    for r in range(4): A('v_mul_f32 %s, %s, %s' % (v(TM + r), v(TM + r), v(TM + 4 + r)))
                    for r in range(4): A('v_add_f32 %s, 2.0, %s' % (v(TM + 4 + r), v(TM + r)))
                    for r in range(4): A('v_rcp_f32 %s, %s' % (v(TM + 4 + r), v(TM + 4 + r)))
                    for r in range(4): A('v_mul_f32 %s, %s, %s' % (v(TM + r), v(TM + r), v(TM + 4 + r)))
                    for r in range(4): A('v_mul_f32 %s, %s, %s' % (v(d + r), v(d + r), v(TM + r)))
                o = OUT + tt * 6 + t * 2
                A('v_cvt_pk_bf16_f32 %s, %s, %s' % (v(o), v(d), v(d + 1)))
                A('v_cvt_pk_bf16_f32 %s, %s, %s' % (v(o + 1), v(d + 2), v(d + 3)))
            if f1:
                A('s_add_u32 s60, %s, %d' % (s(SOUT), tt * 49152))
                A('buffer_store_dwordx4 %s, %s, %s, s60 offen sc1' % (v(OUT + tt * 6, 4), v(VO4), s(S_WS, 4)))
            else:
                A('buffer_store_dwordx4 %s, %s, %s, %s offen offset:%d sc1' % (v(OUT + tt * 6, 4), v(VO4), s(S_WS, 4), s(SOUT), tt * 1536))
                A('buffer_store_dwordx2 %s, %s, %s, %s offen offset:%d sc1' % (v(OUT + tt * 6 + 4, 2), v(VO2), s(S_WS, 4), s(SOUT), tt * 1536 + 1024))
        A('s_add_u32 %s, %s, %d' % (s(SOUT), s(SOUT), out_seg))
        A('s_add_u32 %s, %s, 1' % (s(SSEG), s(SSEG)))
        prof(A, 6 if f1 else 4, 1)
        if f1:
            A('s_waitcnt vmcnt(0)')
            post_wflag(A, VZ, VT, SFL, SSEG)
            prof(A, 7, 1)
            A('s_add_u32 %s, %s, %d' % (s(SSEG), s(SSEG), NREP - 1))
    A('s_cmp_lt_u32 %s, %d' % (s(SSEG), Cfg.nseg))
    A('s_cbranch_scc1 %s' % LOOP)
    if not f1:
        A('s_waitcnt vmcnt(0)')
        post_wflag(A, VZ, VT, SFL, SSEG)
        A('s_branch L_phase2')
    else:
        A('s_branch L_exit')

def wo_pair(i):
    w, t = divmod(i, 3)
    return (w, t) if t < 2 else (4 + (w >> 1), w & 1)

def role_W(A):
    NT, RB, RS = 3, 384, 12288
    VZ, VT = 3, 4
    VDM = 6
    VTA, VTB = 10, 11
    VG, VR, VQ = 12, 13, 14
    VRD = (16, 17)
    VL8 = 18
    ACC = 24
    BB = 72
    OUT = 96
    XB = 40960
    SK = 70
    SB, SIN, SOUT, SFL, SV = 71, 72, 73, 62, 64
    A.label('L_role_G')
    A('s_cmp_eq_u32 %s, 1' % s(SK))
    A('s_cselect_b32 %s, %s, %s' % (s(ST0), s(P_WK), s(P_WQ)))
    A('s_cselect_b32 %s, %s, %s' % (s(ST1), s(P_WK + 1), s(P_WQ + 1)))
    A('s_cmp_eq_u32 %s, 2' % s(SK))
    A('s_cselect_b32 %s, %s, %s' % (s(ST0), s(P_WV), s(ST0)))
    A('s_cselect_b32 %s, %s, %s' % (s(ST1), s(P_WV + 1), s(ST1)))
    srd(A, S_WT, ST0, 640 * 6144 * 2)
    A('s_mul_i32 %s, %s, 384' % (s(SB), s(SIDX)))
    A('s_mul_i32 %s, %s, %d' % (s(ST0), s(SW), 16 * RS))
    A('s_add_u32 %s, %s, %s' % (s(SB), s(SB), s(ST0)))
    lane_parts(A, VG, VR, VQ)
    dma_voffs_384(A, VDM, RS, VT, VT + 1)
    dma = [(VDM + j % 3, 8 * (j // 3) * RS) for j in range(6)]
    A('v_lshl_add_u32 %s, %s, 3, %s' % (v(VTA), v(VG), v(VR)))
    A('v_mul_u32_u24 %s, %d, %s' % (v(VTA), RB, v(VTA)))
    A('v_lshl_add_u32 %s, %s, 3, %s' % (v(VTA), v(VQ), v(VTA)))
    A('s_mul_i32 %s, %s, %d' % (s(ST0), s(SW), NT * 32))
    A('v_add_u32 %s, %s, %s' % (v(VTA), s(ST0), v(VTA)))
    chunks = []
    for ci in range(10):
        reads = []
        for kk in range(2):
            ks = 2 * ci + kk
            for t in range(NT):
                for p in range(2):
                    reads.append((a((ks * NT + t) * 4 + 2 * p, 2), (32 * kk + 4 * p) * RB + t * 32))
        chunks.append(dict(srd=S_WT, base=SB, dma=[(vo, k + ci * 64 * RS) for vo, k in dma], taddr=VTA, reads=reads))
    if QLATE:
        Lq = A.newlabel('Lq')
        A('s_cmp_ge_u32 %s, %d' % (s(SK), QLATE))
        A('s_cbranch_scc1 %s' % Lq)
        wait_init(A, VZ, VT, True)
        A.label(Lq)
    load_weights(A, chunks, 64 * RB, 6, VTB, NT_W, WCAP)
    A('s_mul_i32 %s, %s, 10240' % (s(SV), s(SW)))
    A('s_add_u32 %s, %s, 0x%x' % (s(SIN), s(SV), XF))
    def dma_ops(buf):
        ops = []
        for i in range(10):
            o = []
            if i % 4 == 0:
                o = ['s_add_u32 m0, %s, %d' % (s(SV), buf * XB + i * 1024), 's_add_u32 s60, %s, %d' % (s(SIN), i * 1024)]
            ops.append(o + ['buffer_load_dwordx4 %s, %s, s60 offen offset:%d sc1 lds' % (v(VL16), s(S_WS, 4), (i % 4) * 1024)])
        ops[-1].append('s_add_u32 %s, %s, %d' % (s(SIN), s(SIN), XB))
        return ops
    A('v_mov_b32 %s, %s' % (v(VRD[0]), v(VL16)))
    A('v_add_u32 %s, %d, %s' % (v(VRD[1]), XB, v(VL16)))
    A('v_lshlrev_b32 %s, 3, %s' % (v(VL8), v(VLANE)))
    A('s_mul_i32 %s, %s, 0x%x' % (s(SOUT), s(SK), 24 * MB))
    A('s_mul_i32 %s, %s, 12288' % (s(ST0), s(SIDX)))
    A('s_add_u32 %s, %s, %s' % (s(SOUT), s(SOUT), s(ST0)))
    A('s_mul_i32 %s, %s, 3072' % (s(ST0), s(SW)))
    A('s_add_u32 %s, %s, %s' % (s(SOUT), s(SOUT), s(ST0)))
    A('s_add_u32 %s, %s, 0x%x' % (s(SOUT), s(SOUT), QKV))
    A('s_lshl_b32 %s, %s, 5' % (s(ST1), s(SK)))
    A('s_add_u32 %s, %s, %s' % (s(ST1), s(ST1), s(SIDX)))
    flag_addr(A, SFL, ST1, FL_W)
    prof(A, 0)
    wait_init(A, VZ, VT, True)
    prof(A, 1)
    for o in dma_ops(0):
        for x in o: A(x)
    A('s_mov_b32 %s, 0' % s(SSEG))
    def epi(buf):
        va = []; st = []
        for tt in range(2):
            for t in range(NT):
                d = ACC + buf * 24 + (tt * NT + t) * 4; o = OUT + tt * 6 + t * 2
                va.append('v_cvt_pk_bf16_f32 %s, %s, %s' % (v(o), v(d), v(d + 1)))
                va.append('v_cvt_pk_bf16_f32 %s, %s, %s' % (v(o + 1), v(d + 2), v(d + 3)))
            st.append('buffer_store_dwordx4 %s, %s, %s, %s offen offset:%d sc1' % (v(OUT + tt * 6, 4), v(VL16), s(S_WS, 4), s(SOUT), tt * 1536))
            st.append('buffer_store_dwordx2 %s, %s, %s, %s offen offset:%d sc1' % (v(OUT + tt * 6 + 4, 2), v(VL8), s(S_WS, 4), s(SOUT), tt * 1536 + 1024))
        st.append('s_add_u32 %s, %s, %d' % (s(SOUT), s(SOUT), 32 * 12288))
        return va, st
    def body(buf, first, keep=0):
        A('s_waitcnt vmcnt(%d)' % (keep if first else 1))
        A('s_barrier')
        prof(A, 2)
        dops = dma_ops(1 - buf)
        va, st = ([], []) if first else epi(1 - buf)
        def rd(ks):
            for tt in range(2):
                A('ds_read_b128 %s, %s offset:%d' % (v(BB + (ks % 3) * 8 + tt * 4, 4), v(VRD[buf]), tt * 20480 + ks * 1024))
        rd(0); rd(1)
        young = 0
        for ks in range(20):
            if ks + 2 < 20:
                rd(ks + 2)
                A('s_waitcnt lgkmcnt(4)')
            else:
                A('s_waitcnt lgkmcnt(%d)' % (2 if ks + 1 < 20 else 0))
            k = 0
            for t in range(NT):
                for tt in range(2):
                    d = ACC + buf * 24 + (tt * NT + t) * 4
                    A('v_mfma_f32_16x16x32_bf16 %s, %s, %s, %s' % (v(d, 4), a((ks * NT + t) * 4, 4), v(BB + (ks % 3) * 8 + tt * 4, 4), '0' if ks == 0 else v(d, 4)))
                    if k == 0 and dops:
                        for x in dops.pop(0): A(x)
                        young += 1
                    elif k < 5 and va:
                        A(va.pop(0))
                    elif k < 5 and st:
                        x = st.pop(0); A(x)
                        if x.startswith('buffer'): young = 0
                    elif k == 2 and ks == FLAGPOS:
                        A('v_mov_b32 %s, %s' % (v(VT), s(SSEG)))
                    elif k == 3 and ks == FLAGPOS:
                        if not first: A('s_waitcnt vmcnt(%d)' % young)
                        A('s_mov_b64 exec, 1')
                        A('buffer_store_dword %s, %s, %s, %s offen sc1' % (v(VT), v(VZ), s(S_WS, 4), s(SFL)))
                        A('s_mov_b64 exec, -1')
                    k += 1
        assert not dops and not va and not st
        prof(A, 3)
        A('s_add_u32 %s, %s, 1' % (s(SSEG), s(SSEG)))
    body(0, True)
    if FAST0:
        va, st = epi(0)
        for x in va + st: A(x)
        A('s_waitcnt vmcnt(0)')
        post_wflag(A, VZ, VT, SFL, SSEG)
        body(1, True, 1)
        A('s_branch L_G_in')
    A.label('L_loop_G')
    body(1, False)
    A('s_cmp_ge_u32 %s, %d' % (s(SSEG), Cfg.nseg))
    A('s_cbranch_scc1 L_G_fin')
    A.label('L_G_in')
    body(0, False)
    A('s_branch L_loop_G')
    A.label('L_G_fin')
    va, st = epi(1)
    for x in va + st: A(x)
    A('s_waitcnt vmcnt(0)')
    post_wflag(A, VZ, VT, SFL, SSEG)
    A('s_branch L_phase2')

def role_O(A):
    VZ, VT = 3, 4
    VTA, VTB = 10, 11
    VG, VR, VQ = 12, 13, 14
    VL8 = 15
    VA = 16
    ACC = 112
    OUT = 128
    FT = 140
    SB, SIN, SOUT, SFL, SFLIN, SPRE = 71, 72, 73, 74, 75, 77
    A.label('L_role_O')
    srd(A, S_WT, P_WO, 6144 * 640 * 2)
    A('s_mul_i32 %s, %s, %d' % (s(SB), s(SIDX), 192 * 1280))
    A('s_mul_i32 %s, %s, 5120' % (s(ST0), s(SW)))
    A('s_add_u32 %s, %s, %s' % (s(SB), s(SB), s(ST0)))
    lane_parts(A, VG, VR, VQ)
    A('v_lshl_add_u32 %s, %s, 2, %s' % (v(VTA), v(VG), v(VR)))
    A('v_mul_u32_u24 %s, 1280, %s' % (v(VTA), v(VTA)))
    A('v_lshl_add_u32 %s, %s, 3, %s' % (v(VTA), v(VQ), v(VTA)))
    A('s_mul_i32 %s, %s, 320' % (s(ST0), s(SW)))
    A('v_add_u32 %s, %s, %s' % (v(VTA), s(ST0), v(VTA)))
    chunks = []
    for i in range(12):
        f, p = wo_pair(i)
        reads = [(a((ct * 6 + f) * 4 + 2 * p, 2), ct * 32) for ct in range(10)]
        chunks.append(dict(srd=S_WT, base=SB, dma=[(VL16, i * 20480 + j * 1024) for j in range(5)], taddr=VTA, reads=reads))
    load_weights(A, chunks, 20480, 7, VTB, NT_W, WCAP)
    A('v_lshlrev_b32 %s, 3, %s' % (v(VL8), v(VLANE)))
    A('s_mul_i32 %s, %s, 12288' % (s(SIN), s(SIDX)))
    A('s_add_u32 %s, %s, 0x%x' % (s(SIN), s(SIN), QKV + 2 * 24 * MB))
    A('s_mul_i32 %s, %s, %d' % (s(SOUT), s(SW), 10 * ZT))
    A('s_lshl_b32 %s, %s, 10' % (s(ST0), s(SIDX)))
    A('s_add_u32 %s, %s, %s' % (s(SOUT), s(SOUT), s(ST0)))
    A('s_add_u32 %s, %s, 0x%x' % (s(SOUT), s(SOUT), VO))
    A('s_lshl_b32 %s, %s, 7' % (s(ST0), s(SIDX)))
    A('s_add_u32 %s, %s, 0x%x' % (s(SFLIN), s(ST0), FLAGS + (FL_W + 64) * 128))
    flag_addr(A, SFL, SIDX, FL_W + 96)
    def vgrp(buf, w):
        N = VA + buf * 48
        o = ['s_add_u32 s61, %s, %d' % (s(SIN), w * 3072)]
        for tt in range(2):
            o.append('buffer_load_dwordx4 %s, %s, %s, s61 offen offset:%d sc1' % (v(N + (tt * 6 + w) * 4, 4), v(VL16), s(S_WS, 4), tt * 1536))
            o.append('buffer_load_dwordx2 %s, %s, %s, s61 offen offset:%d sc1' % (v(N + (tt * 6 + 4 + (w >> 1)) * 4 + 2 * (w & 1), 2), v(VL8), s(S_WS, 4), tt * 1536 + 1024))
        if w == 3: o.append('s_add_u32 %s, %s, %d' % (s(SIN), s(SIN), 32 * 12288))
        return o
    prof(A, 0)
    wait_init(A, VZ, VT, True)
    prof(A, 1)
    A('s_mov_b32 %s, 0' % s(SSEG))
    A('s_mov_b32 %s, 0' % s(SPRE))
    def epi(ct):
        d = ACC + (ct & 1) * 8; o = OUT + (ct & 1) * 4
        return ['v_cvt_pk_bf16_f32 %s, %s, %s' % (v(o), v(d), v(d + 1)),
                'v_cvt_pk_bf16_f32 %s, %s, %s' % (v(o + 1), v(d + 4), v(d + 5)),
                'v_cvt_pk_bf16_f32 %s, %s, %s' % (v(o + 2), v(d + 2), v(d + 3)),
                'v_cvt_pk_bf16_f32 %s, %s, %s' % (v(o + 3), v(d + 6), v(d + 7)),
                's_add_u32 s60, %s, %d\nbuffer_store_dwordx4 %s, %s, %s, s60 offen sc1' % (s(SOUT), ct * ZT, v(o, 4), v(VL16), s(S_WS, 4))]
    A.label('L_loop_O')
    for buf in range(2):
        Lp = A.newlabel('Lq'); Lg_ = A.newlabel('Lq')
        A('s_cmp_eq_u32 %s, 1' % s(SPRE))
        A('s_cbranch_scc1 %s' % Lp)
        A('s_waitcnt vmcnt(0)')
        post_wflag(A, VZ, VT, SFL, SSEG)
        A('s_add_u32 %s, %s, 1' % (s(ST1), s(SSEG)))
        poll4_ge(A, VZ, s(SFLIN), s(ST1), FT)
        for w in range(4):
            for x in vgrp(buf, w): A(x)
        A('buffer_load_dwordx4 %s, %s, %s, %s offen sc1' % (v(FT, 4), v(VZ), s(S_WS, 4), s(SFLIN)))
        A('s_waitcnt vmcnt(0)')
        A('s_branch %s' % Lg_)
        A.label(Lp)
        A('s_waitcnt vmcnt(4)')
        A.label(Lg_)
        prof(A, 2)
        A('s_add_u32 %s, %s, 2' % (s(ST1), s(SSEG)))
        A('v_min3_u32 %s, %s, %s, %s' % (v(FT), v(FT), v(FT + 1), v(FT + 2)))
        A('v_min_u32 %s, %s, %s' % (v(FT), v(FT), v(FT + 3)))
        A('v_cmp_gt_u32 vcc, %s, %s' % (s(ST1), v(FT)))
        A('v_mov_b32 %s, %s' % (v(VT), s(SSEG)))
        A('s_cmp_eq_u64 vcc, 0')
        A('s_cselect_b32 %s, 1, 0' % s(SPRE))
        pend = []
        for ct in range(10):
            k = 0
            for f in range(6):
                for tt in range(2):
                    d = ACC + (ct & 1) * 8 + tt * 4
                    A('v_mfma_f32_16x16x32_bf16 %s, %s, %s, %s' % (v(d, 4), v(VA + buf * 48 + (tt * 6 + f) * 4, 4), a((ct * 6 + f) * 4, 4), '0' if f == 0 else v(d, 4)))
                    k += 1
                    if k == 1 and ct < 4:
                        Ls = A.newlabel('Ls')
                        A.raw('    s_cmp_eq_u32 %s, 0' % s(SPRE))
                        A.raw('    s_cbranch_scc1 %s' % Ls)
                        for x in vgrp(1 - buf, ct): A.raw('    ' + x)
                        A.label(Ls)
                    if k == 2 and ct == 6:
                        L1 = A.newlabel('Ls'); L2 = A.newlabel('Ls')
                        A.raw('    s_cmp_eq_u32 %s, 0' % s(SPRE))
                        A.raw('    s_cbranch_scc1 %s' % L1)
                        A.raw('    s_waitcnt vmcnt(21)')
                        A.raw('    s_branch %s' % L2)
                        A.label(L1)
                        A.raw('    s_waitcnt vmcnt(5)')
                        A.label(L2)
                        A('s_mov_b64 exec, 1')
                        A('buffer_store_dword %s, %s, %s, %s offen sc1' % (v(VT), v(VZ), s(S_WS, 4), s(SFL)))
                        A('s_mov_b64 exec, -1')
                    if k == 2 and ct == 7:
                        A('buffer_load_dwordx4 %s, %s, %s, %s offen sc1' % (v(FT, 4), v(VZ), s(S_WS, 4), s(SFLIN)))
                    if k >= 8 and pend: A(pend.pop(0))
            assert not pend
            pend = epi(ct)
        for x in pend: A(x)
        A('s_add_u32 %s, %s, %d' % (s(SOUT), s(SOUT), 40 * ZT))
        prof(A, 4)
        A('s_add_u32 %s, %s, 1' % (s(SSEG), s(SSEG)))
    A('s_cmp_lt_u32 %s, %d' % (s(SSEG), Cfg.nseg))
    A('s_cbranch_scc1 L_loop_O')
    A('s_waitcnt vmcnt(0)')
    post_wflag(A, VZ, VT, SFL, SSEG)
    A('s_branch L_exit')

def do_init(A):
    SI = 70
    VS, VO_, VZ4, VT = 4, 8, 12, 16
    XF_, SA, PR, MR, VONE, VSW, VSR, VX = 64, 104, 120, 136, 140, 144, 145, 146
    for i in range(4):
        A('v_mov_b32 %s, -1' % v(VS + i))
        A('v_mov_b32 %s, 0' % v(VZ4 + i))
        A('v_mov_b32 %s, 0x3f803f80' % v(VONE + i))
    A('v_lshlrev_b32 %s, 4, v0' % v(VO_))
    A('v_and_b32 %s, 15, %s' % (v(VT), v(VLANE)))
    A('v_mul_u32_u24 %s, 1280, %s' % (v(VX), v(VT)))
    A('v_lshrrev_b32 %s, 4, %s' % (v(VT + 1), v(VLANE)))
    A('v_lshl_add_u32 %s, %s, 4, %s' % (v(VX), v(VT + 1), v(VX)))
    A('v_lshlrev_b32 %s, 3, %s' % (v(VSR), v(VT)))
    A('s_lshl_b32 %s, %s, 8' % (s(ST0), s(SW)))
    A('v_add_u32 %s, %s, %s' % (v(VSW), s(ST0), v(VSR)))
    A('s_mul_i32 %s, %s, 40960' % (s(ST0), s(SI)))
    A('s_mul_i32 %s, %s, 320' % (s(ST1), s(SW)))
    A('s_add_u32 %s, %s, %s' % (s(ST0), s(ST0), s(ST1)))
    A('s_add_u32 %s, %s, 20480' % (s(ST1), s(ST0)))
    for tt in range(2):
        for i in range(5):
            A('buffer_load_dwordx4 %s, %s, %s, %s offen offset:%d' % (v(XF_ + (tt * 5 + i) * 4, 4), v(VX), s(S_X, 4), s((ST0, ST1)[tt]), i * 64))
    stats_masks(A, 74, VT)
    A('s_waitcnt vmcnt(0)')
    L1 = A.newlabel('Li')
    A('s_sub_u32 %s, %s, 1' % (s(ST1), s(SI)))
    A('s_cmp_ge_u32 %s, 20' % s(ST1))
    A('s_cbranch_scc1 %s' % L1)
    A('s_lshl_b32 %s, %s, 12' % (s(ST0), s(ST1)))
    A('s_cmp_lt_u32 %s, 12' % s(ST1))
    A('s_cselect_b32 %s, 0x%x, %s' % (s(ST2), FLAGS, s(ST2)))
    A('s_cselect_b32 %s, %s, 0x%x' % (s(ST2), s(ST2), CANB - 12 * 4096))
    A('s_add_u32 s60, %s, %s' % (s(ST0), s(ST2)))
    A('buffer_store_dwordx4 %s, %s, %s, s60 offen sc1' % (v(VZ4, 4), v(VO_), s(S_WS, 4)))
    A.label(L1)
    for i in range(5):
        for tt in range(2):
            B = v(XF_ + (tt * 5 + i) * 4, 4)
            A('v_mfma_f32_16x16x32_bf16 %s, %s, %s, %s' % (v(SA + tt * 8, 4), v(VONE, 4), B, '0' if i == 0 else v(SA + tt * 8, 4)))
            A('v_mfma_f32_16x16x32_bf16 %s, %s, %s, %s' % (v(SA + tt * 8 + 4, 4), B, B, '0' if i == 0 else v(SA + tt * 8 + 4, 4)))
    stats_exchange(A, SA, 74, VSW, VSR, PR, lambda tt: MR + 2 * tt, lambda tt: MR + 2 * tt + 1)
    A('s_mul_i32 %s, %s, 40960' % (s(ST0), s(SI)))
    A('s_mul_i32 %s, %s, 5120' % (s(ST1), s(SW)))
    A('s_add_u32 %s, %s, %s' % (s(ST0), s(ST0), s(ST1)))
    N0 = 20
    for tt in range(2):
        m, r = MR + 2 * tt, MR + 2 * tt + 1
        for i in range(5):
            x = XF_ + (tt * 5 + i) * 4
            for j in range(4):
                A('v_lshlrev_b32 %s, 16, %s' % (v(N0 + 2 * j), v(x + j)))
                A('v_and_b32 %s, 0xffff0000, %s' % (v(N0 + 2 * j + 1), v(x + j)))
            for j in range(4):
                A('v_pk_add_f32 %s, %s, %s op_sel_hi:[1,0] neg_lo:[0,1] neg_hi:[0,1]' % (v(N0 + 2 * j, 2), v(N0 + 2 * j, 2), v(m, 2)))
            for j in range(4):
                A('v_cvt_pk_bf16_f32 %s, %s, %s' % (v(x + j), v(N0 + 2 * j), v(N0 + 2 * j + 1)))
            for j in range(4):
                A('v_lshlrev_b32 %s, 16, %s' % (v(N0 + 2 * j), v(x + j)))
                A('v_and_b32 %s, 0xffff0000, %s' % (v(N0 + 2 * j + 1), v(x + j)))
            for j in range(4):
                A('v_pk_mul_f32 %s, %s, %s op_sel:[0,1] op_sel_hi:[1,1]' % (v(N0 + 2 * j, 2), v(N0 + 2 * j, 2), v(m, 2)))
            for j in range(4):
                A('v_cvt_pk_bf16_f32 %s, %s, %s' % (v(x + j), v(N0 + 2 * j), v(N0 + 2 * j + 1)))
            A('s_add_u32 s60, %s, 0x%x' % (s(ST0), XF + tt * 20480 + i * 1024))
            if not os.environ.get('NOXF'): A('buffer_store_dwordx4 %s, %s, %s, s60 offen sc1' % (v(x, 4), v(VL16), s(S_WS, 4)))
    def arrive(off, add_reg, go_val):
        L = A.newlabel('La')
        A('buffer_atomic_add %s, %s, %s, 0 offen offset:%d sc0 sc1' % (v(add_reg), v(VZ4), s(S_DBG, 4), off))
        A('s_waitcnt vmcnt(0)')
        A('v_readfirstlane_b32 s72, %s' % v(add_reg))
        A('s_lshr_b32 s73, s72, 16')
        A('s_cmp_lg_u32 s73, 63')
        A('s_cbranch_scc1 %s' % L)
        go_val()
        A('buffer_store_dword %s, %s, %s, 0 offen offset:%d sc1' % (v(add_reg), v(VZ4), s(S_DBG, 4), 128 + off))
        A.label(L)
    A('s_waitcnt vmcnt(0)')
    A('s_barrier')
    LA = A.newlabel('Li')
    A('s_cmp_lg_u32 %s, 0' % s(SW))
    A('s_cbranch_scc1 %s' % LA)
    A('s_mov_b64 exec, 1')
    A('v_mov_b32 v20, 0x10000')
    arrive(4, 20, lambda: A('v_mov_b32 v20, 1'))
    A('s_mov_b64 exec, -1')
    A.label(LA)
    def fill(base, per, nbytes, data):
        A('s_mul_i32 %s, %s, %d' % (s(ST0), s(SI), per))
        for k in range(0, 0 if os.environ.get('NOFILL') else nbytes, 4096):
            A('s_add_u32 s60, %s, 0x%x' % (s(ST0), base + k))
            A('buffer_store_dwordx4 %s, %s, %s, s60 offen sc1' % (v(data, 4), v(VO_), s(S_WS, 4)))
    fill(URING, 20480, 20480, VS)
    L0 = A.newlabel('Li')
    A('s_mov_b32 s72, 0xfa00'); A('s_mov_b32 s73, 0')
    A('s_bitcmp1_b64 s[72:73], %s' % s(SI))
    A('s_cbranch_scc1 %s' % L0)
    fill(COMM, 4096, 4096, VS)
    A.label(L0)
    L2 = A.newlabel('Li')
    A('s_add_u32 %s, %s, %s' % (s(ST0), s(SI), s(SW)))
    A('s_cmp_lg_u32 %s, 0' % s(ST0))
    A('s_cbranch_scc1 %s' % L2)
    srd(A, S_MISC, P_MEM0, 8 * 640 * 2)
    A('v_and_b32 %s, 7, %s' % (v(VT), v(VLANE)))
    A('v_mul_u32_u24 %s, 1280, %s' % (v(VT), v(VT)))
    A('v_lshrrev_b32 %s, 3, %s' % (v(VT + 1), v(VLANE)))
    A('v_lshl_add_u32 %s, %s, 4, %s' % (v(VT), v(VT + 1), v(VT)))
    for ks in range(10):
        A('buffer_load_dwordx4 %s, %s, %s, 0 offen offset:%d' % (v(20 + 4 * ks, 4), v(VT), s(S_MISC, 4), ks * 128))
    A('s_waitcnt vmcnt(0)')
    for i in range(40):
        A('v_min_u32 %s, 0xfffffffe, %s' % (v(20 + i), v(20 + i)))
    for ks in range(10):
        for half in range(2):
            A('s_mov_b32 s60, 0x%x' % (COMM + xp(U_MEM + ks * 1024) + half * 8192))
            A('buffer_store_dwordx4 %s, %s, %s, s60 offen sc1' % (v(20 + 4 * ks, 4), v(VL16), s(S_WS, 4)))
    A.label(L2)
    A('s_mov_b64 exec, 1')
    A('s_lshl_b32 s72, %s, 14' % s(SW))
    A('s_lshl_b32 s73, %s, 7' % s(SI))
    A('s_add_u32 s72, s72, s73')
    A('s_add_u32 s72, s72, 0x%x' % PROBE)
    A('s_and_b32 s73, %s, 1' % s(SW))
    A('s_lshl_b32 s73, s73, 13')
    A('s_add_u32 s72, s72, s73')
    A('s_xor_b32 s73, s72, 8192')
    A('s_mov_b32 s74, 0')
    for rep in range(0 if os.environ.get('NOPROBE') else NPROBE):
        A('buffer_store_dword %s, %s, %s, s72 offen sc1' % (v(VS), v(VZ4), s(S_WS, 4)))
        A('buffer_store_dword %s, %s, %s, s73 offen sc1' % (v(VS), v(VZ4), s(S_WS, 4)))
        A('s_waitcnt vmcnt(0)')
        A('s_memtime s[76:77]')
        A('s_waitcnt lgkmcnt(0)')
        A('buffer_load_dword %s, %s, %s, s72 offen sc1' % (v(VT), v(VZ4), s(S_WS, 4)))
        A('s_waitcnt vmcnt(0)')
        A('s_memtime s[78:79]')
        A('s_waitcnt lgkmcnt(0)')
        A('buffer_load_dword %s, %s, %s, s73 offen sc1' % (v(VT), v(VZ4), s(S_WS, 4)))
        A('s_sub_u32 s75, s78, s76')
        A('s_waitcnt vmcnt(0)')
        A('s_memtime s[76:77]')
        A('s_waitcnt lgkmcnt(0)')
        A('s_sub_u32 s76, s76, s78')
        A('s_cmp_lt_u32 s76, s75')
        A('s_cselect_b32 s75, 1, 0')
        A('s_and_b32 s76, %s, 1' % s(SW))
        A('s_xor_b32 s75, s75, s76')
        A('s_add_u32 s74, s74, s75')
    A('s_lshl_b32 s72, %s, 2' % s(SW))
    A('v_mov_b32 %s, s72' % v(VT)); A('v_mov_b32 %s, s74' % v(VT + 1))
    A('ds_write_b32 %s, %s offset:2048' % (v(VT), v(VT + 1)))
    A('s_mov_b64 exec, -1')
    A('s_waitcnt vmcnt(0) lgkmcnt(0)')
    A('s_barrier')
    L3 = A.newlabel('Li')
    A('s_cmp_lg_u32 %s, 0' % s(SW))
    A('s_cbranch_scc1 %s' % L3)
    A('s_mov_b64 exec, 1')
    A('ds_read_b128 %s, %s offset:2048' % (v(20, 4), v(VZ4)))
    A('s_waitcnt lgkmcnt(0)')
    A('v_add3_u32 v20, v20, v21, v22')
    A('v_add_u32 v23, 0x10000, v23')
    A('v_add_u32 v20, v20, v23')
    A('v_readfirstlane_b32 s74, v20')
    def go():
        A('s_add_u32 s72, s72, s74')
        A('v_mov_b32 v20, s72')
    arrive(0, 20, go)
    A('s_mov_b64 exec, -1')
    A.label(L3)

def build():
    A = Asm()
    hdr = open(os.path.join(os.path.dirname(os.path.abspath(__file__)), '..', 'cdna_kernels', NAME + '.s.ref')).read().split('\n')
    for l in hdr:
        if l.startswith('; @launch'): break
        A.raw(l)
    A.raw('; @launch grid=(256,1,1) block=(256,1,1) lds=163840')
    A.raw('.amdgcn_target "amdgcn-amd-amdhsa--gfx950"')
    A.raw('.text')
    A.raw('.globl %s_kernel' % NAME)
    A.raw('.p2align 8')
    A.raw('.type %s_kernel,@function' % NAME)
    A.raw('%s_kernel:' % NAME)
    A('s_cmp_ge_u32 s2, 256')
    A('s_cbranch_scc1 L_exit0')
    A('s_load_dwordx16 s[32:47], s[0:1], 0')
    A('s_load_dwordx8 s[48:55], s[0:1], 64')
    A('s_load_dwordx4 s[56:59], s[0:1], 96')
    A('v_and_b32 %s, 63, v0' % v(VLANE))
    A('v_lshlrev_b32 %s, 4, %s' % (v(VL16), v(VLANE)))
    A('v_lshrrev_b32 v3, 6, v0')
    A('v_readfirstlane_b32 %s, v3' % s(SW))
    A('s_waitcnt lgkmcnt(0)')
    srd(A, S_WS, P_WS, WS_BYTES)
    srd(A, S_X, P_X, 2048 * 640 * 2)
    srd(A, S_DBG, P_DBG, 256)
    prof_init(A)
    A('s_and_b32 %s, s2, 7' % s(ST0))
    A('s_lshr_b32 %s, s2, 3' % s(ST1))
    A('s_cmp_ge_u32 %s, 4' % s(ST0))
    A('s_cbranch_scc1 L_workers')
    def go(role):
        return ('L_role_' + role) if role in Cfg.roles else 'L_exit'
    A('s_lshl_b32 %s, %s, 3' % (s(SIDX), s(ST0)))
    A('s_and_b32 %s, %s, 7' % (s(ST2), s(ST1)))
    A('s_add_u32 %s, %s, %s' % (s(SIDX), s(SIDX), s(ST2)))
    A('s_cmp_lt_u32 %s, 8' % s(ST1))
    A('s_cbranch_scc1 %s' % go('QK'))
    A('s_cmp_lt_u32 %s, 16' % s(ST1))
    A('s_cbranch_scc1 %s' % go('VO'))
    A('s_lshl_b32 s70, %s, 4' % s(ST0))
    A('s_add_u32 s70, s70, %s' % s(ST1))
    A('s_sub_u32 s70, s70, 16')
    A('s_mov_b32 s80, %s' % s(ST0))
    A('s_mov_b32 s81, %s' % s(ST1))
    if not os.environ.get('NOINIT'): do_init(A)
    A('s_mul_i32 %s, s80, 10' % s(SIDX))
    A('s_add_u32 %s, %s, s81' % (s(SIDX), s(SIDX)))
    A('s_sub_u32 %s, %s, 16' % (s(SIDX), s(SIDX)))
    A('s_cmp_lt_u32 s81, 26')
    A('s_cbranch_scc1 %s' % go('S2'))
    A('s_sub_u32 %s, s81, 26' % s(SIDX))
    A('s_branch %s' % go('X2'))
    A.label('L_exit')
    prof(A, 15)
    prof_dump(A)
    A.label('L_exit0')
    A('s_endpgm')
    A.label('L_abort')
    A('s_mov_b64 exec, 1')
    A('v_mov_b32 v3, 0')
    A('v_mov_b32 v4, s2')
    A('v_or_b32 v4, 0x10000, v4')
    A('buffer_store_dword v4, v3, %s, 0 offen offset:8 sc1' % s(S_DBG, 4))
    A('s_endpgm')
    A.label('L_workers')
    A('s_sub_u32 %s, %s, 4' % (s(ST0), s(ST0)))
    A('s_lshl_b32 %s, %s, 3' % (s(SIDX), s(ST0)))
    A('s_lshr_b32 %s, %s, 2' % (s(ST2), s(ST1)))
    A('s_add_u32 %s, %s, %s' % (s(SIDX), s(SIDX), s(ST2)))
    A('s_and_b32 s70, %s, 3' % s(ST1))
    A('s_cmp_eq_u32 s70, 3')
    A('s_cbranch_scc1 %s' % go('O'))
    A('s_branch %s' % go('G'))
    A.label('L_phase2')
    A('s_and_b32 %s, s2, 3' % s(SREP))
    A('s_lshr_b32 %s, s2, 5' % s(SIDX))
    A('s_mul_i32 %s, %s, 3' % (s(SIDX), s(SIDX)))
    A('s_bfe_u32 %s, s2, 0x20003' % s(ST0))
    A('s_add_u32 %s, %s, %s' % (s(SIDX), s(SIDX), s(ST0)))
    A('s_waitcnt vmcnt(0) lgkmcnt(0)')
    A('s_barrier')
    A('s_cmp_lt_u32 %s, 12' % s(SIDX))
    A('s_cbranch_scc1 %s' % go('F1'))
    A('s_sub_u32 %s, %s, 12' % (s(SIDX), s(SIDX)))
    A('s_cmp_lt_u32 %s, 10' % s(SIDX))
    A('s_cbranch_scc1 %s' % go('F2'))
    A('s_branch L_exit')
    import roles2
    if 'G' in Cfg.roles: role_W(A)
    if 'O' in Cfg.roles: role_O(A)
    if 'F1' in Cfg.roles: role_G(A, True)
    if 'QK' in Cfg.roles: roles2.role_QK(A)
    if 'VO' in Cfg.roles: roles2.role_VO(A)
    if 'S2' in Cfg.roles: roles2.role_S2(A)
    if 'X2' in Cfg.roles: roles2.role_X2(A)
    if 'F2' in Cfg.roles: roles2.role_F2(A)
    A.raw('.section .rodata,"a"')
    A.raw('.p2align 6')
    A.raw('.amdhsa_kernel %s_kernel' % NAME)
    A.raw('  .amdhsa_next_free_vgpr 512')
    A.raw('  .amdhsa_next_free_sgpr 102')
    A.raw('  .amdhsa_accum_offset 256')
    A.raw('  .amdhsa_group_segment_fixed_size 0')
    A.raw('  .amdhsa_kernarg_size 112')
    A.raw('  .amdhsa_user_sgpr_count 2')
    A.raw('  .amdhsa_user_sgpr_kernarg_segment_ptr 1')
    A.raw('  .amdhsa_system_sgpr_workgroup_id_x 1')
    A.raw('.end_amdhsa_kernel')
    return A

if __name__ == '__main__':
    sys.modules['gen'] = sys.modules['__main__']
    out = sys.argv[1] if len(sys.argv) > 1 else os.path.join(os.path.dirname(os.path.abspath(__file__)), '..', 'cdna_kernels', NAME + '.s')
    if len(sys.argv) > 2:
        Cfg.roles = set(sys.argv[2].split(','))
    if os.environ.get('ROLES'): Cfg.roles = set(os.environ['ROLES'].split(','))
    if os.environ.get('PROF'): Cfg.prof = True
    if os.environ.get('TRACE'): Cfg.trace = True
    A = build()
    open(out, 'w').write(A.text())
    print('wrote', out, 'instructions', A.ninstr)
```

```python
import re

REG_RE = re.compile(r'^(-?\|?|abs\()?([vas])(\d+)[\)\|]?$')
RNG_RE = re.compile(r'^(-?)([vas])\[(\d+):(\d+)\]$')

def regs_of(op):
    op = op.strip()
    m = RNG_RE.match(op)
    if m:
        return {(m.group(2), i) for i in range(int(m.group(3)), int(m.group(4)) + 1)}
    m = REG_RE.match(op)
    if m:
        return {(m.group(2), int(m.group(3)))}
    if op == 'vcc':
        return {('s', 106), ('s', 107)}
    if op == 'vcc_lo':
        return {('s', 106)}
    if op == 'vcc_hi':
        return {('s', 107)}
    if op == 'exec':
        return {('s', 126), ('s', 127)}
    if op == 'm0':
        return {('s', 124)}
    return set()

TRANS = ('v_exp_f32', 'v_log_f32', 'v_rcp_f32', 'v_rsq_f32', 'v_sqrt_f32')

class Ins:
    __slots__ = ('text', 'mn', 'kind', 'w', 'r', 'rc', 'rab', 'states', 'dpp', 'wide_store', 'sdata', 'lds_dma', 'passes')

def parse(text):
    t = text.split(';')[0].strip()
    ins = Ins()
    ins.text = text
    parts = t.split(None, 1)
    mn = parts[0]
    ins.mn = mn
    rest = parts[1] if len(parts) > 1 else ''
    rest = re.sub(r'quad_perm:\[(\d),(\d),(\d),(\d)\]', r'quad_perm:\1\2\3\4', rest)
    rest = re.sub(r'(op_sel_hi|op_sel|neg_lo|neg_hi):\[(\d),(\d)\]', r'\1:\2\3', rest)
    rest = re.sub(r'(op_sel_hi|op_sel|neg_lo|neg_hi):\[(\d),(\d),(\d)\]', r'\1:\2\3\4', rest)
    ops = [o.strip() for o in rest.split(',')] if rest else []
    mods = ''
    if ops:
        last = ops[-1].split(None, 1)
        ops[-1] = last[0]
        mods = last[1] if len(last) > 1 else ''
    ins.w = set(); ins.r = set(); ins.rc = set(); ins.rab = set()
    ins.states = 1; ins.dpp = False; ins.wide_store = False; ins.sdata = set(); ins.lds_dma = False; ins.passes = 0
    R = [regs_of(o) for o in ops]
    if mn == 's_nop':
        ins.kind = 'nop'; ins.states = int(ops[0], 0) + 1
    elif mn.startswith('v_mfma') or mn.startswith('v_smfmac'):
        ins.kind = 'mfma'
        ins.w = R[0]
        ins.rab = R[1] | R[2]
        if mn.startswith('v_smfmac'):
            ins.rc = R[0]; ins.rab |= R[3]
        else:
            ins.rc = R[3]
        ins.r = ins.rab | ins.rc
        ins.passes = 8 if '32x32' in mn else 4
    elif mn.startswith('v_'):
        ins.kind = 'valu'
        ins.dpp = ('_dpp' in mn) or ('row_' in mods) or ('quad_perm' in mods)
        if mn.startswith('v_cmp'):
            ins.w = R[0]
            for x in R[1:]: ins.r |= x
        elif 'swap' in mn:
            ins.w = R[0] | R[1]; ins.r = R[0] | R[1]
        elif mn.startswith('v_add_co') or mn.startswith('v_addc_co'):
            ins.w = R[0] | R[1]
            for x in R[2:]: ins.r |= x
        else:
            ins.w = R[0]
            for x in R[1:]: ins.r |= x
            if mn.startswith('v_fmac') or mn.startswith('v_dot2c') or ins.dpp or mn.startswith('v_writelane'):
                ins.r |= R[0]
            if mn.startswith('v_cndmask') and len(ops) == 3:
                ins.r |= regs_of('vcc')
    elif mn.startswith('ds_'):
        ins.kind = 'ds'
        if mn.startswith('ds_read') or mn.startswith('ds_bpermute') or mn.startswith('ds_swizzle'):
            ins.w = R[0]
            for x in R[1:]: ins.r |= x
        else:
            for x in R: ins.r |= x
    elif mn.startswith('buffer_') or mn.startswith('global_'):
        ins.kind = 'vmem'
        lds = ' lds' in (' ' + mods)
        if 'load' in mn and not lds:
            ins.w = R[0]
            for x in R[1:]: ins.r |= x
        elif 'atomic' in mn and 'sc0' in mods:
            ins.w = R[0]
            for x in R: ins.r |= x
        else:
            for x in R: ins.r |= x
            if lds:
                ins.lds_dma = True
            if 'store' in mn and ('x3' in mn or 'x4' in mn):
                ins.wide_store = True
                ins.sdata = R[0] if mn.startswith('buffer_') else R[1]
    elif mn.startswith('s_'):
        ins.kind = 'salu'
        if mn.startswith('s_cmp') or mn.startswith('s_bitcmp') or mn.startswith('s_cbranch') or mn in ('s_branch', 's_barrier', 's_waitcnt', 's_endpgm', 's_sleep', 's_setprio'):
            for x in R: ins.r |= x
        else:
            if R: ins.w = R[0]
            for x in R[1:]: ins.r |= x
            if 'saveexec' in mn: ins.w |= regs_of('exec')
    else:
        raise ValueError('unknown instruction: ' + text)
    return ins

def isvec(rs):
    return {r for r in rs if r[0] in 'va'}
def issc(rs):
    return {r for r in rs if r[0] == 's'}

def need(p, c):
    n = 0
    if p.kind == 'valu':
        vw = isvec(p.w); sw = issc(p.w)
        if c.kind == 'mfma' and vw & c.r: n = max(n, 2)
        if c.kind == 'valu':
            if c.dpp and vw & c.r: n = max(n, 2)
            if 'permlane' in c.mn and vw & c.r: n = max(n, 2)
            if (c.mn.startswith('v_readlane') or c.mn.startswith('v_readfirstlane')) and vw & c.r: n = max(n, 1)
            if p.mn.split('_e')[0] in TRANS or p.mn in TRANS:
                if vw & (c.r | c.w): n = max(n, 1)
            if sw & c.r:
                n = max(n, 4 if ('lane' in c.mn) else 2)
        if c.kind == 'vmem' and sw & c.r: n = max(n, 5)
        if c.kind == 'salu' and sw & c.r and not c.mn.startswith('s_cbranch'): n = max(n, 1)
    if p.kind == 'mfma':
        big = p.passes == 8
        if c.kind == 'mfma':
            if p.w & c.rab: n = max(n, 12 if big else 8)
            if p.w & c.rc and not (p.w == c.rc and p.passes == c.passes): n = max(n, 10 if big else 6)
            if p.w & c.w and not (p.w & c.rc): n = max(n, 10 if big else 6)
        elif c.kind in ('valu', 'vmem', 'ds'):
            if p.w & (c.r | c.w): n = max(n, 12 if big else 8)
            if c.kind == 'valu' and p.rc & c.w: n = max(n, 7 if big else 3)
    if p.kind == 'vmem' and p.wide_store and (p.sdata & c.w): n = max(n, 2)
    if p.kind == 'salu':
        if ('s', 124) in p.w and c.kind == 'vmem' and c.lds_dma: n = max(n, 1)
        if (regs_of('exec') & p.w) and c.kind == 'valu' and c.dpp: n = max(n, 1)
    return n

class Asm:
    def __init__(self):
        self.lines = []
        self.hist = []
        self.nlab = 0
        self.ninstr = 0
        self.tight = False
    def raw(self, s):
        self.lines.append(s)
    def c(self, s):
        self.lines.append('    ; ' + s)
    def label(self, name):
        self.lines.append(name + ':')
    def newlabel(self, base='L'):
        self.nlab += 1
        return '%s_%d' % (base, self.nlab)
    def flush(self):
        dist = 0; n = 0
        for p in reversed(self.hist):
            req = 0
            if p.kind == 'mfma': req = 12 if p.passes == 8 else 8
            elif p.kind == 'valu': req = 5 if issc(p.w) - regs_of('vcc') else 2
            elif p.kind == 'vmem' and p.wide_store: req = 2
            elif p.kind == 'salu' and ('s', 124) in p.w: req = 1
            n = max(n, req - dist)
            dist += p.states
            if dist >= 12: break
        n -= 1
        if n > 0: self._nop(n)
    def _nop(self, n):
        while n > 0:
            k = min(n, 16)
            ins = parse('s_nop %d' % (k - 1))
            self.lines.append('    s_nop %d' % (k - 1)); self.hist.append(ins); self.ninstr += 1
            n -= k
    def __call__(self, text, *args):
        if args: text = text % args
        for t in text.split('\n'):
            t = t.strip()
            if not t: continue
            self.i(t)
    def i(self, text):
        ins = parse(text)
        if ins.mn.startswith('s_cbranch') or ins.mn == 's_branch':
            self.flush()
        dist = 0; n = 0
        H = self.hist
        for k in range(len(H) - 1, -1, -1):
            p = H[k]
            req = need(p, ins)
            d = dist
            if req > d and self.tight and p.kind == 'mfma':
                t = 0; last = 0; lp = p.passes
                for q in H[k + 1:]:
                    if q.kind == 'mfma':
                        t = max(t + 1, last + lp); last = t; lp = q.passes
                    else:
                        t += q.states
                d = t
            n = max(n, req - d)
            dist += p.states
            if dist >= 12: break
        if n > 0: self._nop(n)
        self.lines.append('    ' + text)
        self.hist.append(ins); self.ninstr += 1
        if len(self.hist) > 32: self.hist = self.hist[-16:]
    def text(self):
        return '\n'.join(self.lines) + '\n'

def v(i, n=1):
    return 'v%d' % i if n == 1 else 'v[%d:%d]' % (i, i + n - 1)
def a(i, n=1):
    return 'a%d' % i if n == 1 else 'a[%d:%d]' % (i, i + n - 1)
def s(i, n=1):
    return 's%d' % i if n == 1 else 's[%d:%d]' % (i, i + n - 1)
```

```python
from asmlib import *
import gen as G
from gen import *

class Lg:
    def __init__(self, A): self.A = A; self.q = []
    def issue(self, text, tag=None):
        self.A(text); self.q.append(tag)
    def wait(self, tag):
        idx = max(i for i, t in enumerate(self.q) if t == tag) if tag in self.q else -1
        if idx < 0: return
        n = len(self.q) - 1 - idx
        self.A('s_waitcnt lgkmcnt(%d)' % min(n, 15))
        self.q = self.q[idx + 1:]
    def all(self):
        self.A('s_waitcnt lgkmcnt(0)'); self.q = []

def comm_base(A, dst, seg, add=0):
    if add:
        A('s_add_u32 %s, %s, %d' % (s(dst), s(seg), add))
        A('s_and_b32 %s, %s, 3' % (s(dst), s(dst)))
    else:
        A('s_and_b32 %s, %s, 3' % (s(dst), s(seg)))
    A('s_lshl_b32 %s, %s, 16' % (s(dst), s(dst)))
    A('s_add_u32 %s, %s, %s' % (s(dst), s(dst), s(SSEL)))
    A('s_add_u32 %s, %s, 0x%x' % (s(dst), s(dst), COMM))

def vxp(A, r, t):
    A('v_lshrrev_b32 %s, 13, %s' % (v(t), v(r)))
    A('v_lshl_add_u32 %s, %s, 13, %s' % (v(r), v(t), v(r)))

def rec_w_taddr(A, VTA, VG, VR, VQ, VT, RB, wcol):
    A('v_lshrrev_b32 %s, 1, %s' % (v(VTA), v(VG)))
    A('v_lshlrev_b32 %s, 4, %s' % (v(VTA), v(VTA)))
    A('v_and_b32 %s, 1, %s' % (v(VT), v(VG)))
    A('v_lshl_add_u32 %s, %s, 2, %s' % (v(VTA), v(VT), v(VTA)))
    A('v_lshrrev_b32 %s, 1, %s' % (v(VT), v(VR)))
    A('v_lshl_add_u32 %s, %s, 3, %s' % (v(VTA), v(VT), v(VTA)))
    A('v_and_b32 %s, 1, %s' % (v(VT), v(VR)))
    A('v_add_u32 %s, %s, %s' % (v(VTA), v(VT), v(VTA)))
    A('v_mul_u32_u24 %s, %d, %s' % (v(VTA), RB, v(VTA)))
    A('v_lshl_add_u32 %s, %s, 3, %s' % (v(VTA), v(VQ), v(VTA)))
    A('s_mul_i32 %s, %s, %d' % (s(ST0), s(SW), wcol))
    A('v_add_u32 %s, %s, %s' % (v(VTA), s(ST0), v(VTA)))

def wreg(i, off=0, n=8):
    return a(i * 8 + off, n) if i < 32 else v(128 + (i - 32) * 8 + off, n)

def poll_pipe(A, voff, soff, want, r0, depth, gap, soft=0, warm=None):
    L = A.newlabel('Lp'); D = A.newlabel('Ld')
    ld = lambda i: 'buffer_load_dword %s, %s, %s, %s offen sc1' % (v(r0 + i % depth), v(voff), s(S_WS, 4), soff)
    A('s_mov_b32 %s, 0x%x' % (s(SSPIN), soft or SPIN // 4))
    for i in range(depth - 1):
        A(ld(i))
        if gap: A('s_nop %d' % (gap - 1))
    A.label(L)
    for i in range(depth):
        A(ld(i + depth - 1))
        if warm:
            for x in warm: A.raw('    ' + x)
        A('s_waitcnt vmcnt(%d)' % (depth - 1))
        A('v_cmp_gt_u32 vcc, %s, %s' % (want, v(r0 + i)))
        A.raw('    s_cbranch_vccz %s' % D)
    if soft:
        A('s_sub_u32 %s, %s, 1' % (s(SSPIN), s(SSPIN)))
        A('s_cbranch_scc0 %s' % L)
    else:
        spin_dec(A)
        A('s_branch %s' % L)
    A.label(D)
    if soft: A('s_mov_b32 %s, 0x%x' % (s(SSPIN), SPIN))

WARM = int(os.environ.get('WARM', '0')); WARM2 = int(os.environ.get('WARM2', '0'))
PACE = int(os.environ.get('PACE', '10')); GL = int(os.environ.get('GL', '4'))
PDA = int(os.environ.get('PDA', '4')); PGA = int(os.environ.get('PGA', '16')); HDELAY = int(os.environ.get('HDELAY', '8')); HPOS = int(os.environ.get('HPOS', '20')); NSQ = int(os.environ.get('NSQ', '4')); NSV = int(os.environ.get('NSV', '4')); NSAMP = NSQ + NSV; NH = int(os.environ.get('NH', '4'))
PDB = int(os.environ.get('PDB', '4')); PGB = int(os.environ.get('PGB', '14'))
def cana_setup(A, SCA):
    A('s_and_b32 %s, s2, 3' % s(SCA))
    A('s_lshl_b32 %s, %s, 11' % (s(SCA), s(SCA)))
    A('s_lshr_b32 %s, s2, 3' % s(ST0))
    A('s_lshl_b32 %s, %s, 2' % (s(ST0), s(ST0)))
    A('s_add_u32 %s, %s, %s' % (s(ST0), s(ST0), s(SW)))
    A('s_and_b32 %s, %s, %d' % (s(ST0), s(ST0), NH - 1))
    A('s_lshl_b32 %s, %s, 7' % (s(ST0), s(ST0)))
    A('s_add_u32 %s, %s, %s' % (s(SCA), s(SCA), s(ST0)))
    A('s_add_u32 %s, %s, 0x%x' % (s(SCA), s(SCA), CANA))

def rec_common_setup(A, VP, VMW4, VMW2, VIDX, VT):
    A('s_mul_i32 %s, %s, 2560' % (s(ST0), s(SW)))
    A('v_add_u32 %s, %s, %s' % (v(VMW4), s(ST0), v(VL16)))
    A('v_lshlrev_b32 %s, 3, %s' % (v(VT), v(VLANE)))
    A('v_add_u32 %s, %s, %s' % (v(VMW2), s(ST0), v(VT)))
    A('v_add_u32 %s, %d, %s' % (v(VP), U_MEM, v(VMW4)))
    A('v_add_u32 %s, %d, %s' % (v(VP + 1), U_MEM + 1024, v(VMW4)))
    A('v_add_u32 %s, %d, %s' % (v(VP + 2), U_MEM + 2048, v(VMW2)))
    for i in range(3): vxp(A, VP + i, VT)

def poll_mem(A, VP, MEM, VMW4, VMW2, SCOMM, VT, SCA, shadow=None):
    L = A.newlabel('Lm'); D = A.newlabel('Lmd')
    if not os.environ.get('NOCANA'):
        A('v_lshlrev_b32 %s, 2, %s' % (v(MEM + 11), v(VLANE)))
        A('s_mov_b64 exec, 0x3ff')
        poll_pipe(A, MEM + 11, s(SCA), s(SSEG), MEM + 12, PDA, PGA, soft=24, warm=['v_mfma_f32_16x16x32_bf16 %s, a[0:3], a[4:7], 0' % v(MEM + 24, 4)] * WARM)
        if HDELAY: A('s_nop %d' % (HDELAY - 1))
        A('s_mov_b64 exec, -1')
        prof(A, 6)
    else:
        A('s_mov_b32 %s, 0x%x' % (s(SSPIN), SPIN))
    A.label(L)
    if Cfg.trace: A('s_add_u32 s100, s100, 1')
    A('buffer_load_dwordx4 %s, %s, %s, %s offen sc1' % (v(MEM, 4), v(VP), s(S_WS, 4), s(SCOMM)))
    A('buffer_load_dwordx4 %s, %s, %s, %s offen sc1' % (v(MEM + 4, 4), v(VP + 1), s(S_WS, 4), s(SCOMM)))
    A('buffer_load_dwordx2 %s, %s, %s, %s offen sc1' % (v(MEM + 8, 2), v(VP + 2), s(S_WS, 4), s(SCOMM)))
    spin_dec(A)
    if shadow: shadow()
    for _ in range(WARM2): A.raw('    v_mfma_f32_16x16x32_bf16 %s, a[0:3], a[4:7], 0' % v(MEM + 24, 4))
    A('s_waitcnt vmcnt(2)')
    A('ds_write_b128 %s, %s' % (v(VMW4), v(MEM, 4)))
    A('s_waitcnt vmcnt(1)')
    A('ds_write_b128 %s, %s offset:1024' % (v(VMW4), v(MEM + 4, 4)))
    A('s_waitcnt vmcnt(0)')
    A('ds_write_b64 %s, %s offset:2048' % (v(VMW2), v(MEM + 8, 2)))
    A('v_max3_u32 %s, %s, %s, %s' % (v(VT), v(MEM), v(MEM + 1), v(MEM + 2)))
    A('v_max3_u32 %s, %s, %s, %s' % (v(VT), v(VT), v(MEM + 3), v(MEM + 4)))
    A('v_max3_u32 %s, %s, %s, %s' % (v(VT), v(VT), v(MEM + 5), v(MEM + 6)))
    A('v_max3_u32 %s, %s, %s, %s' % (v(VT), v(VT), v(MEM + 7), v(MEM + 8)))
    A('v_max_u32 %s, %s, %s' % (v(VT), v(VT), v(MEM + 9)))
    A('v_cmp_eq_u32 vcc, -1, %s' % v(VT))
    A('s_waitcnt lgkmcnt(0)')
    A('s_cbranch_vccnz %s' % L)
    A('s_barrier')

SMA, SMB = 50, 51
def mem_ld(MEM, j):
    return 'buffer_load_dwordx4 %s, %s, %s, %s offen offset:%d sc1' % (v(MEM + 4 * j, 4), v(VL16), s(S_WS, 4), s(SMA if j < 4 else SMB + (j - 4) // 4), (j % 4) * 1024)

def fetch_mem(A, MEM, SCOMM, SCA, VA_, R0, shadow):
    A('s_add_u32 %s, %s, %d' % (s(SMA), s(SCOMM), xp(U_MEM)))
    A('s_add_u32 %s, %s, %d' % (s(SMB), s(SCOMM), xp(U_MEM + 4096)))
    A('s_add_u32 %s, %s, %d' % (s(SMB + 1), s(SCOMM), xp(U_MEM + 8192)))
    A('s_mov_b64 exec, 0x3ff')
    poll_pipe(A, VA_, s(SCA), s(SSEG), R0, PDA, PGA, soft=24)
    A('s_mov_b64 exec, -1')
    if HDELAY: A('s_nop %d' % (HDELAY - 1))
    prof(A, 6)
    A(mem_ld(MEM, 0))
    n0 = len(A.lines)
    shadow()
    work = A.lines[n0:]; del A.lines[n0:]
    for j in range(1, 10):
        k = 0
        while work and k < PACE:
            A.lines.append(work.pop(0)); k += 1
        if k < PACE: A._nop(PACE - k)
        A(mem_ld(MEM, j))
    A.lines += work
    A._nop(2)

def chk_ops(MEM, j, VCK):
    m = MEM + 4 * j
    return ['v_max3_u32 %s, %s, %s, %s' % (v(VCK), v(m), v(m + 1), v(m + 2)),
            'v_max_u32 %s, %s, %s' % (v(VCK), v(VCK), v(m + 3)),
            'v_cmp_eq_u32 vcc, -1, %s' % v(VCK)]

def quick_ops(MEM, j, tag, VCK):
    m = MEM + 4 * j
    return ['v_fma_f32 %s, %s, %s, %s' % (v(VCK), v(m), v(m + 1), v(m + 2)),
            'v_cmp_u_f32 vcc, %s, %s' % (v(VCK), v(m + 3)),
            'RAW s_cbranch_vccnz L_%s_redo%d' % (tag, j), 'LAB L_%s_ok%d' % (tag, j)]

def frag_redo(A, tag, MEM, VCK):
    for j in range(10):
        A.label('L_%s_redo%d' % (tag, j))
        if Cfg.trace: A('s_add_u32 s100, s100, 1')
        for k in range(j, 10): A(mem_ld(MEM, k))
        spin_dec(A)
        A('s_waitcnt vmcnt(0)')
        for x in chk_ops(MEM, j, VCK): A(x)
        A('s_cbranch_vccnz L_%s_redo%d' % (tag, j))
        A('s_branch L_%s_ok%d' % (tag, j))

def canary_setup(A, SCM):
    A('s_cmp_eq_u32 %s, 1' % s(SW))
    A('s_cselect_b32 %s, 1, 0' % s(SCM))
    A('s_mov_b32 %s, 0' % s(SCM + 1))
def canary_ops(VZ, VC, SCAN, SCM):
    return ['s_mov_b64 exec, %s' % s(SCM, 2),
            'buffer_store_dword %s, %s, %s, %s offen sc1' % (v(VC), v(VZ), s(S_WS, 4), s(SCAN)),
            's_mov_b64 exec, -1']

S2DELAY = int(os.environ.get('S2DELAY', '3'))
S2DELAY2 = int(os.environ.get('S2DELAY2', '2'))
CANADELAY = int(os.environ.get('CANADELAY', '0'))
DMAEARLY = int(os.environ.get('DMAEARLY', '0')); S2DELAY3 = int(os.environ.get('S2DELAY3', '0')); DMAGAP = int(os.environ.get('DMAGAP', '0'))
PFD = int(os.environ.get('PFD', '0')); PFK = [int(x) for x in os.environ.get('PFK', '1,21').split(',')]
VPF = int(os.environ.get('VPF', '0')); VPFS = [int(x) for x in os.environ.get('VPFS', '9,15').split(',')]
FSLEEP = int(os.environ.get('FSLEEP', '3'))
KQS = [int(x) for x in os.environ.get('KQS', '0,4,8,16,24,28,6,14,18,26,36').split(',')]
XVO = int(os.environ.get('XVO', '0'))
XDELAY = int(os.environ.get('XDELAY', '0'))
XH = int(os.environ.get('XH', '0'))
XSLEEP = int(os.environ.get('XSLEEP', '6')); PFPOS = int(os.environ.get('PFPOS', '40'))
CAN_POS_QK = int(os.environ.get('CANQK', '60'))
CAN_POS_VO = int(os.environ.get('CANVO', '44'))

class Slots:
    def __init__(self, n):
        self.pre = [[] for _ in range(n)]; self.nv = [[] for _ in range(n)]; self.va = [[] for _ in range(n)]; self.mf = [[] for _ in range(n)]
        self.young = 0
    def op(self, A, lg, x):
        if isinstance(x, tuple): lg.issue(*x)
        elif x.startswith('RAW '): A.raw('    ' + x[4:])
        elif x.startswith('LAB '): A.label(x[4:])
        elif x.startswith('VM '): A('s_waitcnt vmcnt(%d)' % (9 - int(x[3:]) + self.young))
        else:
            A(x)
            if x.startswith('buffer_'): self.young += 1
    def emit(self, A, lg, i, main):
        for t in self.pre[i]: lg.wait(t)
        A(main)
        for x in self.nv[i] + self.va[i] + self.mf[i]: self.op(A, lg, x)
    def gate(self, tag, MEM, j, VCK, first_use):
        c = quick_ops(MEM, j, tag, VCK)
        self.nv[first_use - GL].append('VM %d' % j)
        self.va[first_use - GL].append(c[0]); self.va[first_use - GL + 1].append(c[1])
        self.nv[first_use - 1] = c[2:] + self.nv[first_use - 1]

def role_QK(A):
    VZ, VT = 3, 4
    VC = 5
    VP = 6
    VMW4, VMW2 = 9, 10
    VIDX = 11
    VT2, VFV = 12, 13
    T = 14
    VWL = 20
    VSPX, VSPM = 21, 22
    VSR4, VSR1 = 23, 24
    VSX4, VSX1 = 25, 26
    VPX, VPM = 27, 28
    VL8 = 29
    VFL, VNEG = 30, 31
    MEM, STG, ACC, KX, SEL = 32, 72, 88, 112, 124
    SC = ACC
    QX, XA = MEM, MEM + 12
    SM = 72
    MEML, SP, WL = 0, 10240, 38400
    ROW = 176
    SB, SCOMM, SKIN, SQIN, SFK, SPXB, SHX, SHM, SCAN, SNEXT = 62, 63, 64, 65, 66, 67, 68, 69, 70, 71
    SCM = 72
    SMASK = 74
    SCS = 61
    Cfg.tregs = (4, 12)
    A.label('L_role_QK')
    if Cfg.trace: A('s_mov_b32 s84, 161280')
    srd(A, S_WT, P_WQ, 640 * 6144 * 2)
    srd(A, S_MISC, P_WK, 640 * 6144 * 2)
    VDM, VTA, VTB, VG, VR, VQ = 6, 10, 11, 12, 13, 14
    A('s_mul_i32 %s, %s, 384' % (s(SB), s(SIDX)))
    A('s_mul_i32 %s, %s, %d' % (s(ST0), s(SW), 16 * 12288))
    A('s_add_u32 %s, %s, %s' % (s(SB), s(SB), s(ST0)))
    lane_parts(A, VG, VR, VQ)
    dma_voffs_384(A, VDM, 12288, VT, VT + 1)
    rec_w_taddr(A, VTA, VG, VR, VQ, VT, 384, 96)
    seq = [(0, 0), (1, 0), (2, 0)] + [(t, ks) for ks in range(1, 10) for t in range(2)] + [(2, ks) for ks in range(1, 10)]
    lp = [4, 9, 14, 19, 24, 29]
    ldsp = [seq[p] for p in lp]
    regp = [x for x in seq if x not in ldsp]
    def fidx(t, m, ks): return regp.index((t, ks)) * 2 + m
    def lidx(t, m, ks): return ldsp.index((t, ks)) * 2 + m
    chunks = []
    for ks in range(10):
        for m in range(2):
            reads = []
            for t in range(3):
                for P in range(4):
                    dst = wreg(fidx(t, m, ks), 2 * P, 2) if (t, ks) in regp else v(32 + lidx(t, m, ks) * 8 + 2 * P, 2)
                    reads.append((dst, (32 * (P >> 1) + 2 * (P & 1)) * 384 + t * 32))
            chunks.append(dict(srd=(S_WT, S_MISC)[m], base=SB, dma=[(VDM + j % 3, (ks * 64 + 8 * (j // 3)) * 12288) for j in range(6)], taddr=VTA, reads=reads))
    load_weights(A, chunks, 24576, 6, VTB, NT_R, RCAP)
    A('s_mul_i32 %s, %s, 24576' % (s(ST0), s(SW)))
    A('s_add_u32 %s, %s, %d' % (s(ST0), s(ST0), WL))
    A('v_add_u32 %s, %s, %s' % (v(VWL), s(ST0), v(VL16)))
    for i in range(12):
        for h in range(2):
            A('ds_write_b128 %s, %s offset:%d' % (v(VWL), v(32 + i * 8 + 4 * h, 4), i * 2048 + h * 1024))
    A('s_waitcnt lgkmcnt(0)')
    prof(A, 0)
    G_, C_ = 30, 31
    A('v_lshrrev_b32 %s, 4, %s' % (v(G_), v(VLANE)))
    A('v_and_b32 %s, 15, %s' % (v(C_), v(VLANE)))
    sparse_idx(A, VIDX, VT, True)
    A('v_lshlrev_b32 %s, 2, %s' % (v(VMW2), v(VLANE)))
    A('v_lshlrev_b32 %s, 2, %s' % (v(VT), v(G_)))
    A('v_sub_u32 %s, %s, %s' % (v(VT), v(C_), v(VT)))
    for h, d0 in enumerate((2, 0)):
        A('v_mov_b32 %s, 0' % v(SEL + h))
        A('v_mov_b32 %s, 0x3f80' % v(VT + 1))
        A('v_cmp_eq_u32 vcc, %d, %s' % (d0, v(VT)))
        A('v_cndmask_b32 %s, %s, %s, vcc' % (v(SEL + h), v(SEL + h), v(VT + 1)))
        A('v_mov_b32 %s, 0x3f800000' % v(VT + 1))
        A('v_cmp_eq_u32 vcc, %d, %s' % (d0 + 1, v(VT)))
        A('v_cndmask_b32 %s, %s, %s, vcc' % (v(SEL + h), v(SEL + h), v(VT + 1)))
    A('s_mul_i32 %s, %s, %d' % (s(ST0), s(SW), 40 * ROW))
    A('s_add_u32 %s, %s, %d' % (s(ST0), s(ST0), SP))
    A('v_mul_u32_u24 %s, %d, %s' % (v(VT), ROW, v(C_)))
    A('v_add_u32 %s, %s, %s' % (v(VT), s(ST0), v(VT)))
    A('v_lshl_add_u32 %s, %s, 4, %s' % (v(VSPX), v(G_), v(VT)))
    A('v_lshl_add_u32 %s, %s, 3, %s' % (v(VSPM), v(G_), v(VT)))
    VSX2, VSM2 = 6, 7
    A('v_lshrrev_b32 %s, 2, %s' % (v(VT), v(C_)))
    A('v_and_b32 %s, 1, %s' % (v(VT + 1), v(C_)))
    A('v_lshl_add_u32 %s, %s, 1, %s' % (v(VT), v(VT), v(VT + 1)))
    A('v_mul_u32_u24 %s, %d, %s' % (v(VT), ROW, v(VT)))
    A('v_add_u32 %s, %s, %s' % (v(VT), s(ST0), v(VT)))
    A('v_bfe_u32 %s, %s, 1, 1' % (v(VT + 1), v(C_)))
    A('v_xor_b32 %s, 1, %s' % (v(VT + 1), v(VT + 1)))
    A('v_lshl_add_u32 %s, %s, 4, %s' % (v(VSX2), v(G_), v(VT)))
    A('v_lshl_add_u32 %s, %s, 6, %s' % (v(VSX2), v(VT + 1), v(VSX2)))
    A('v_lshl_add_u32 %s, %s, 3, %s' % (v(VSM2), v(G_), v(VT)))
    A('v_lshl_add_u32 %s, %s, 2, %s' % (v(VSM2), v(VT + 1), v(VSM2)))
    M_, K_ = 30, 31
    A('v_lshrrev_b32 %s, 3, %s' % (v(M_), v(VLANE)))
    A('v_and_b32 %s, 7, %s' % (v(K_), v(VLANE)))
    A('v_mul_u32_u24 %s, %d, %s' % (v(VT), ROW, v(M_)))
    A('v_add_u32 %s, %d, %s' % (v(VT), SP, v(VT)))
    A('v_lshl_add_u32 %s, %s, 4, %s' % (v(VSR4), v(K_), v(VT)))
    A('v_lshl_add_u32 %s, %s, 2, %s' % (v(VSR1), v(K_), v(VT)))
    A('s_add_u32 %s, %s, 1' % (s(ST0), s(SW)))
    A('s_mul_i32 %s, %s, %d' % (s(ST0), s(ST0), 8 * ROW))
    A('v_add_u32 %s, %s, %s' % (v(VSX4), s(ST0), v(VSR4)))
    A('v_add_u32 %s, %s, %s' % (v(VSX1), s(ST0), v(VSR1)))
    A('v_bfe_u32 %s, %s, 1, 1' % (v(VT), v(K_)))
    A('v_lshl_add_u32 %s, %s, 4, %s' % (v(VPX), v(VT), v(M_)))
    A('v_lshrrev_b32 %s, 2, %s' % (v(VT), v(K_)))
    A('v_lshl_add_u32 %s, %s, 3, %s' % (v(VPX), v(VT), v(VPX)))
    A('v_lshlrev_b32 %s, 4, %s' % (v(VPX), v(VPX)))
    A('v_and_b32 %s, 1, %s' % (v(VT), v(K_)))
    A('v_lshl_add_u32 %s, %s, 3, %s' % (v(VPX), v(VT), v(VPX)))
    A('v_bfe_u32 %s, %s, 1, 1' % (v(VT), v(K_)))
    A('v_lshl_add_u32 %s, %s, 3, %s' % (v(VPM), v(VT), v(M_)))
    A('v_lshlrev_b32 %s, 4, %s' % (v(VPM), v(VPM)))
    A('v_lshrrev_b32 %s, 2, %s' % (v(VT), v(K_)))
    A('v_lshl_add_u32 %s, %s, 2, %s' % (v(VPM), v(VT), v(VPM)))
    A('s_lshr_b32 %s, %s, 1' % (s(ST0), s(SIDX)))
    A('s_lshl_b32 %s, %s, 8' % (s(ST0), s(ST0)))
    A('s_and_b32 %s, %s, 1' % (s(ST1), s(SIDX)))
    A('s_lshl_b32 %s, %s, 3' % (s(ST1), s(ST1)))
    A('s_add_u32 %s, %s, %s' % (s(ST0), s(ST0), s(ST1)))
    A('v_add_u32 %s, %s, %s' % (v(VPM), s(ST0), v(VPM)))
    VPX2, VPM2 = SEL + 2, SEL + 3
    to_inl(A, VPX2, VPX, VT); to_inl(A, VPM2, VPM, VT)
    A('v_bfe_u32 %s, %s, 1, 1' % (v(VT), v(K_)))
    A('v_lshl_add_u32 %s, %s, 3, %s' % (v(VPM), v(VT), v(M_)))
    A('v_lshlrev_b32 %s, 3, %s' % (v(VPM), v(VPM)))
    A('v_lshrrev_b32 %s, 2, %s' % (v(VT), v(K_)))
    A('v_lshl_add_u32 %s, %s, 2, %s' % (v(VPM), v(VT), v(VPM)))
    A('s_lshl_b32 %s, %s, 7' % (s(ST0), s(SIDX)))
    A('v_add_u32 %s, %s, %s' % (v(VPM), s(ST0), v(VPM)))
    A('s_lshl_b32 %s, %s, 3' % (s(ST0), s(SW)))
    A('v_add_u32 %s, %s, %s' % (v(VT), s(ST0), v(M_)))
    A('v_lshlrev_b32 %s, 2, %s' % (v(VT + 1), v(K_)))
    A('v_sub_u32 %s, %s, %s' % (v(VT), v(VT), v(VT + 1)))
    for r in range(4):
        A('v_cmp_le_i32 %s, %d, %s' % (s(SMASK + 2 * r, 2), r, v(VT)))
    A('v_lshlrev_b32 %s, 3, %s' % (v(VL8), v(VLANE)))
    A('s_mul_i32 %s, %s, 12288' % (s(SQIN), s(SIDX)))
    A('s_mul_i32 %s, %s, 3072' % (s(ST0), s(SW)))
    A('s_add_u32 %s, %s, %s' % (s(SQIN), s(SQIN), s(ST0)))
    A('s_add_u32 %s, %s, 0x%x' % (s(SQIN), s(SQIN), QKV))
    A('s_add_u32 %s, %s, 0x%x' % (s(SKIN), s(SQIN), 24 * MB))
    A('s_lshl_b32 %s, %s, 7' % (s(SFK), s(SIDX)))
    A('s_add_u32 %s, %s, 0x%x' % (s(SFK), s(SFK), FLAGS))
    A('s_lshl_b32 %s, %s, 9' % (s(SHM), s(SIDX)))
    A('s_lshr_b32 %s, %s, 13' % (s(ST1), s(SHM)))
    A('s_lshl_b32 %s, %s, 13' % (s(ST1), s(ST1)))
    A('s_add_u32 %s, %s, %s' % (s(SHX), s(SHM), s(ST1)))
    A('s_mul_i32 %s, %s, 20480' % (s(SPXB), s(SW)))
    A('s_add_u32 %s, %s, 0x%x' % (s(SPXB), s(SPXB), PX))
    A('v_and_b32 %s, 3, %s' % (v(VT), v(VLANE)))
    A('v_lshlrev_b32 %s, 2, %s' % (v(VT), v(VT)))
    A('v_bfe_u32 %s, %s, 2, 1' % (v(VFL), v(VLANE)))
    A('v_lshl_add_u32 %s, %s, 12, %s' % (v(VFL), v(VFL), v(VT)))
    A('v_mov_b32 %s, 0xff800000' % v(VNEG))
    import struct, math
    A('s_mov_b32 %s, 0x%x' % (s(SCS), struct.unpack('<I', struct.pack('<f', 192 ** -0.5 * math.log2(math.e)))[0]))
    canary_setup(A, SCM)
    wait_init(A, VZ, VT)
    A('s_lshl_b32 %s, %s, 7' % (s(SCAN), s(SIDX)))
    A('s_add_u32 %s, %s, %s' % (s(SCAN), s(SCAN), s(SSEL)))
    A('s_add_u32 %s, %s, 0x%x' % (s(SCAN), s(SCAN), CANB))
    SCA = 60
    cana_setup(A, SCA)

    def kq_ops(dst, sin):
        o = []
        for tt in range(2):
            o.append('buffer_load_dwordx4 %s, %s, %s, %s offen offset:%d sc1' % (v(dst + tt * 6, 4), v(VL16), s(S_WS, 4), s(sin), tt * 1536))
            o.append('buffer_load_dwordx2 %s, %s, %s, %s offen offset:%d sc1' % (v(dst + tt * 6 + 4, 2), v(VL8), s(S_WS, 4), s(sin), tt * 1536 + 1024))
        o.append('s_add_u32 %s, %s, %d' % (s(sin), s(sin), 32 * 12288))
        return o
    def load_kq(dst, sin):
        for x in kq_ops(dst, sin): A(x)

    SEVQ, SPF, SPE, SXA, SXM, SPA, SPM, SKL = 32, 34, 36, 38, 39, 40, 41, 42
    KL = 136704
    A('s_mov_b32 %s, 0x55555555' % s(SEVQ)); A('s_mov_b32 %s, 0x55555555' % s(SEVQ + 1))
    A('s_cmp_eq_u32 %s, 2' % s(SW))
    A('s_cselect_b64 %s, -1, 0' % s(SPF, 2))
    A('s_and_b64 %s, %s, %s' % (s(SPE, 2), s(SPF, 2), s(SEVQ, 2)))
    A('s_sub_u32 %s, %s, 81920' % (s(SPXB), s(SPXB)))
    A('s_mul_i32 %s, %s, 3072' % (s(SKL), s(SW)))
    A('s_add_u32 %s, %s, %d' % (s(SKL), s(SKL), KL))
    SFP, SM3, SRF = 43, 44, 48
    A('v_mov_b32 %s, 0' % v(VFV))
    near_line(A, SFP, SIDX, NF_P)
    A('s_cmp_eq_u32 %s, 3' % s(SW))
    A('s_cselect_b64 %s, 1, 0' % s(SM3, 2))
    def pflag_ops(r):
        return ['s_mov_b64 exec, %s' % s(SM3, 2), 'buffer_store_dword %s, %s, %s, %s offen sc1' % (v(r), v(VZ), s(S_WS, 4), s(SFP)), 's_mov_b64 exec, -1']
    def pstore_ops(O, sx, sm, full='-1', even=None, VPX=VPX, VPM=VPM):
        even = even or s(SEVQ, 2)
        o1 = ['buffer_store_dwordx2 %s, %s, %s, %s offen sc1' % (v(O, 2), v(VPX), s(S_WS, 4), s(sx))]
        if full != '-1': o1 = ['s_mov_b64 exec, %s' % full] + o1 + ['s_mov_b64 exec, -1']
        o2 = ['s_mov_b64 exec, %s' % even,
              'buffer_store_dword %s, %s, %s, %s offen sc1' % (v(O + 2), v(VPM), s(S_WS, 4), s(sm)),
              's_mov_b64 exec, -1']
        return o1, o2
    def pstore(O, sx, sm):
        for o in pstore_ops(O, sx, sm):
            for x in o: A(x)
    def kdma_ops(sin, off):
        return [['s_add_u32 m0, %s, %d' % (s(SKL), off), 'buffer_load_dwordx4 %s, %s, %s offen sc1 lds' % (v(VL16), s(S_WS, 4), s(sin))],
                ['buffer_load_dwordx4 %s, %s, %s offen offset:1024 sc1 lds' % (v(VL16), s(S_WS, 4), s(sin))],
                ['buffer_load_dwordx4 %s, %s, %s offen offset:2048 sc1 lds' % (v(VL16), s(S_WS, 4), s(sin)),
                 's_add_u32 %s, %s, %d' % (s(sin), s(sin), 32 * 12288)]]

    def softmax(r4, r1, masked, O):
        for w in range(4):
            A('ds_read_b128 %s, %s offset:%d' % (v(SM + 4 * w, 4), v(r4), w * 40 * ROW))
            A('ds_read_b32 %s, %s offset:%d' % (v(SM + 16 + w), v(r1), w * 40 * ROW + 128))
        X = [SM, SM + 1, SM + 2, SM + 3, SM + 16]
        pk = lambda d, x, y: A('v_pk_add_f32 %s, %s, %s' % (v(d, 2), v(x, 2), v(y, 2)))
        A('s_waitcnt lgkmcnt(5)')
        pk(SM, SM, SM + 4); pk(SM + 2, SM + 2, SM + 6)
        A('s_waitcnt lgkmcnt(1)')
        pk(SM + 8, SM + 8, SM + 12); pk(SM + 10, SM + 10, SM + 14)
        A('s_waitcnt lgkmcnt(0)')
        pk(SM + 16, SM + 16, SM + 18)
        pk(SM, SM, SM + 8); pk(SM + 2, SM + 2, SM + 10)
        A('v_add_f32 %s, %s, %s' % (v(SM + 16), v(SM + 16), v(SM + 17)))
        if masked:
            for r in range(4): A('v_cndmask_b32 %s, %s, %s, %s' % (v(SM + r), v(VNEG), v(SM + r), s(SMASK + 2 * r, 2)))
        MX, SU = SM + 20, SM + 21
        A('v_max3_f32 %s, %s, %s, %s' % (v(MX), v(X[0]), v(X[1]), v(X[2])))
        A('v_max3_f32 %s, %s, %s, %s' % (v(MX), v(X[3]), v(X[4]), v(MX)))
        for mod in ('quad_perm:[1,0,3,2]', 'quad_perm:[2,3,0,1]', 'row_half_mirror'):
            A('v_max_f32_dpp %s, %s, %s %s row_mask:0xf bank_mask:0xf' % (v(MX), v(MX), v(MX), mod))
        A('v_mul_f32 %s, %s, %s' % (v(MX), s(SCS), v(MX)))
        for x in X:
            A('v_fma_f32 %s, %s, %s, -%s' % (v(x), v(x), s(SCS), v(MX)))
        for x in X: A('v_exp_f32 %s, %s' % (v(x), v(x)))
        pk(SM + 4, SM, SM + 2)
        A('v_add_f32 %s, %s, %s' % (v(SU), v(SM + 4), v(X[4])))
        A('v_add_f32 %s, %s, %s' % (v(SU), v(SU), v(SM + 5)))
        A('v_mov_b32_dpp %s, %s quad_perm:[1,0,3,2] row_mask:0xf bank_mask:0xf' % (v(SM + 17), v(X[4])))
        for mod in ('quad_perm:[1,0,3,2]', 'quad_perm:[2,3,0,1]', 'row_half_mirror'):
            A('v_add_f32_dpp %s, %s, %s %s row_mask:0xf bank_mask:0xf' % (v(SU), v(SU), v(SU), mod))
        A('v_rcp_f32 %s, %s' % (v(MX), v(SU)))
        for i, x in enumerate((SM, SM + 2, SM + 16)):
            A('v_pk_mul_f32 %s, %s, %s op_sel_hi:[1,0]' % (v(x, 2), v(x, 2), v(MX, 2)))
        for i, x in enumerate((SM, SM + 2, SM + 16)):
            A('v_cvt_pk_bf16_f32 %s, |%s|, |%s|' % (v(O + i), v(x), v(x + 1)))

    def stg(t, ks):
        return [('ds_read_b128 %s, %s offset:%d' % (v(STG + m * 8 + 4 * h, 4), v(VWL), lidx(t, m, ks) * 2048 + h * 1024), ('stg', t, ks)) for m in range(2) for h in range(2)]

    SKM = 56
    def kq_wait(first):
        L = A.newlabel('Lk')
        A('s_add_u32 %s, %s, 1' % (s(ST1), s(SSEG)))
        if not first:
            A('v_cmp_gt_u32 vcc, %s, %s' % (s(ST1), v(VFV)))
            A('s_cbranch_vccz %s' % L)
        poll_ge(A, S_WS, VFL, s(SFK), s(ST1), VFV, sleep=2)
        A.label(L)
        if not first:
            L2 = A.newlabel('Lk')
            A('s_cmp_lg_u64 %s, 0' % s(SKM, 2))
            A('s_cbranch_scc1 %s' % L2)
            A('s_sub_u32 %s, %s, %d' % (s(SKIN), s(SKIN), 32 * 12288))
            A('s_waitcnt lgkmcnt(0)')
            load_kq(KX, SKIN)
            A.label(L2)
        A('s_add_u32 %s, %s, 2' % (s(ST1), s(SSEG)))
        A('s_min_u32 %s, %s, %d' % (s(ST1), s(ST1), Cfg.nseg))
        A('v_cmp_gt_u32 vcc, %s, %s' % (s(ST1), v(VFV)))
        A('s_and_b32 vcc_lo, vcc_lo, 0xf0')
        A('s_cselect_b64 %s, 0, -1' % s(SKM, 2))
    A('s_mov_b32 %s, 0' % s(SSEG))
    kq_wait(True)
    A('v_mov_b32 %s, 0' % v(T + 3))
    load_kq(KX, SKIN)
    A('s_mov_b32 %s, 0' % s(SSEG))
    prof(A, 1)
    A.label('L_loop_QK')
    lg = Lg(A)
    comm_base(A, SCOMM, SSEG)
    A('s_add_u32 %s, %s, %s' % (s(SXA), s(SPXB), s(SHM)))
    A('s_add_u32 %s, %s, %d' % (s(SXM), s(SPXB), U_PM))
    A('s_add_u32 %s, %s, 81920' % (s(SPXB), s(SPXB)))
    def shadow():
        for x in stg(*ldsp[0]): lg.issue(*x)
        A('s_add_u32 %s, %s, 1' % (s(SNEXT), s(SSEG)))
        for i in range(0, 24, 2): A('v_pk_mov_b32 %s, 0, 0' % v(ACC + i, 2))
        comm_base(A, SPM, SSEG, 2)
        A('s_add_u32 %s, %s, %s' % (s(SPA), s(SPM), s(SHX)))
        A('s_add_u32 %s, %s, %d' % (s(SPM), s(SPM), xp(U_PM)))
        A('s_add_u32 %s, %s, %s' % (s(ST2), s(SCOMM), s(SHX)))
        A('s_add_u32 %s, %s, %d' % (s(ST3), s(SCOMM), xp(U_PM)))
        A('s_cmp_ge_u32 %s, %d' % (s(SNEXT), Cfg.nseg))
        A('s_cselect_b32 %s, 1, %s' % (s(SB), s(SW)))
        A('s_add_u32 %s, %s, 3' % (s(ST1), s(SSEG)))
        A('s_min_u32 %s, %s, %d' % (s(ST1), s(ST1), Cfg.nseg))
        A('v_cmp_gt_u32 %s, %s, %s' % (s(SRF, 2), s(ST1), v(VFV)))
        A('v_pk_mov_b32 %s, -1, -1' % v(T + 4, 2))
        A('v_mov_b32 %s, %s' % (v(VC), s(SNEXT)))
    assert PDA <= 4
    fetch_mem(A, MEM, SCOMM, SCA, VMW2, MEM + 36, shadow)
    A('s_waitcnt vmcnt(9)')
    prof(A, 2)
    A.raw('; LAB QKcrit')
    S = Slots(60)
    for x in quick_ops(MEM, 0, 'QK', VT): S.op(A, lg, x)
    for j in range(1, 10): S.gate('QK', MEM, j, VT, 2 * seq.index((0, j)))
    def cvt(d, x): return 'v_cvt_pk_bf16_f32 %s, %s, %s' % (v(d), v(x), v(x + 1))
    def post1(t):
        q = ACC + t * 8
        ad = lambda d: 'v_add_f32 %s, %s, %s' % (v(d), v(d), v(d + 2))
        return [ad(q), ad(q + 1), cvt(q, q), ad(q + 4), ad(q + 5), cvt(q + 1, q + 4)]
    def trans(t):
        q = ACC + t * 8
        return 'v_mfma_f32_16x16x16_bf16 %s, %s, %s, 0' % (v(q + 4, 4), v(q, 2), v(SEL, 2))
    def post2(t):
        q = ACC + t * 8
        return [cvt(T + 2 * t, q + 4), cvt(T + 2 * t + 1, q + 6)]
    for i, p in enumerate(lp):
        S.pre[2 * p].append(('stg',) + seq[p])
        if i + 1 < 6:
            for k, x in enumerate(stg(*ldsp[i + 1])): S.nv[2 * p + 2 + k].append(x)
    for i, x in enumerate(post1(0) + post1(1)): S.va[(41, 42, 43, 44, 45, 46, 48, 49, 50, 51, 52, 53)[i]].append(x)
    S.mf[48].insert(0, trans(0)); S.mf[55].append(trans(1))
    for i, x in enumerate(post2(0) + post2(1)): S.va[(54, 56, 58, 59)[i]].append(x)
    if CAN_POS_QK < 60: S.nv[CAN_POS_QK] += canary_ops(VZ, VC, SCAN, SCM)
    kd = kdma_ops(SQIN, 12288) + [['s_mov_b64 exec, %s' % s(SKM, 2)] + o + ['s_mov_b64 exec, -1'] for o in kdma_ops(SKIN, 0)]
    kd[3] = [kd[3][1], kd[3][0]] + kd[3][2:]
    px = pstore_ops(T, SXA, SXM)
    po = pstore_ops(T + 4, SPA, SPM, s(SPF, 2), s(SPE, 2), VPX=VPX2, VPM=VPM2)
    po[1][1] = po[1][1].replace(v(T + 6) + ',', v(T + 4) + ',')
    fl = ['s_mov_b64 exec, %s' % s(SRF, 2), 'buffer_load_dword %s, %s, %s, %s offen sc1' % (v(VFV), v(VFL), s(S_WS, 4), s(SFK)), 's_mov_b64 exec, -1']
    for sl, o in zip(KQS, kd + list(px) + list(po) + [fl]): S.nv[sl] += o
    if PFPOS >= 0: S.nv[PFPOS] += pflag_ops(T + 3)
    A.tight = True
    for p, (t, ks) in enumerate(seq):
        for m in range(2):
            B = wreg(fidx(t, m, ks)) if (t, ks) in regp else v(STG + m * 8, 8)
            S.emit(A, lg, 2 * p + m, 'v_smfmac_f32_16x16x64_bf16 %s, %s, %s, %s' % (v(ACC + t * 8 + 4 * m, 4), v(MEM + 4 * ks, 4), B, v(VIDX)))
    p1 = post1(2)
    for x in p1[:3]: A(x)
    A('v_mfma_f32_16x16x32_bf16 %s, %s, %s, 0' % (v(SC, 4), v(KX, 4), v(T, 4)))
    for x in p1[3:]: A(x)
    A(trans(2))
    A('v_mfma_f32_16x16x32_bf16 %s, %s, %s, 0' % (v(SC + 4, 4), v(KX + 6, 4), v(T, 4)))
    if CAN_POS_QK == 60:
        for x in canary_ops(VZ, VC, SCAN, SCM): A(x)
    A('v_mfma_f32_16x16x32_bf16 %s, %s, %s, 0' % (v(SC + 8, 4), v(T, 4), v(T, 4)))
    for x in post2(2): A(x)
    A('v_mfma_f32_16x16x16_bf16 %s, %s, %s, %s' % (v(SC, 4), v(KX + 4, 2), v(T + 4, 2), v(SC, 4)))
    A('s_mov_b32 vcc_lo, 0xcccccccc')
    A('s_mov_b32 vcc_hi, 0xcccccccc')
    A('v_mfma_f32_16x16x16_bf16 %s, %s, %s, %s' % (v(SC + 4, 4), v(KX + 10, 2), v(T + 4, 2), v(SC + 4, 4)))
    A('v_mfma_f32_16x16x16_bf16 %s, %s, %s, %s' % (v(SC + 8, 4), v(T + 4, 2), v(T + 4, 2), v(SC + 8, 4)))
    if CAN_POS_QK == 61:
        for x in canary_ops(VZ, VC, SCAN, SCM): A(x)
    qp = 'quad_perm:[2,3,2,3] row_mask:0xf bank_mask:0xf'
    for i in range(4): A('v_cndmask_b32_dpp %s, %s, %s, vcc %s' % (v(SC + i), v(SC + 4 + i), v(SC + i), qp))
    A('ds_write_b128 %s, %s' % (v(VSX2), v(SC, 4)))
    A('v_cndmask_b32_dpp %s, %s, %s, vcc %s' % (v(SC + 8), v(SC + 9), v(SC + 8), qp))
    A('ds_write_b32 %s, %s offset:128' % (v(VSM2), v(SC + 8)))
    A.tight = False
    A('s_cmp_lg_u32 %s, 0' % s(SB))
    A('s_waitcnt lgkmcnt(0)')
    A('s_barrier')
    A.raw('; LAB end')
    if Cfg.prof or Cfg.trace:
        prof(A, 3)
        A('s_cmp_lg_u32 %s, 0' % s(SB))
    A('s_cbranch_scc1 L_QK_x')
    A.raw('; LAB QKsm')
    softmax(VSR4, VSR1, False, SM + 22)
    for o in pstore_ops(SM + 22, ST2, ST3, VPX=VPX2, VPM=VPM2):
        for x in o: A(x)
    A.raw('; LAB end')
    prof(A, 4)
    later = sum(1 for sl in KQS[3:] if sl > KQS[2]) + (1 if PFPOS > KQS[2] else 0)
    assert all(sl != KQS[2] for sl in KQS[3:]) and CAN_POS_QK > max(KQS)
    A('s_waitcnt vmcnt(%d)' % (later + 2 + (1 if CAN_POS_QK < 62 else 0)))
    A('s_branch L_QK_x2')
    A.label('L_QK_x')
    if CAN_POS_QK >= 62:
        A._nop(8 * (CAN_POS_QK - 62))
        for x in canary_ops(VZ, VC, SCAN, SCM): A(x)
    A('s_waitcnt vmcnt(%d)' % (later + 1))
    A.label('L_QK_x2')
    A('v_add_u32 %s, %s, %s' % (v(VT), s(SKL), v(VL16)))
    A('v_add_u32 %s, %s, %s' % (v(VT2), s(SKL), v(VL8)))
    for tt in range(2):
        A('ds_read_b128 %s, %s offset:%d' % (v(QX + tt * 6, 4), v(VT), 12288 + tt * 1536))
    for tt in range(2):
        A('ds_read_b64 %s, %s offset:%d' % (v(QX + tt * 6 + 4, 2), v(VT2), 12288 + tt * 1536 + 1024))
    kt = [(KX, KX + 4), (KX + 6, KX + 10), (T, T + 4)]
    tiles = [(0, 0), (0, 2), (1, 0), (1, 1), (1, 2)]
    for qt, j in tiles:
        if j == 0: A('s_waitcnt lgkmcnt(%d)' % (3 - qt))
        A('v_mfma_f32_16x16x32_bf16 %s, %s, %s, 0' % (v(XA + (qt * 3 + j) * 4, 4), v(kt[j][0], 4), v(QX + qt * 6, 4)))
    A('s_waitcnt lgkmcnt(0)')
    for qt, j in tiles:
        d = v(XA + (qt * 3 + j) * 4, 4)
        A('v_mfma_f32_16x16x16_bf16 %s, %s, %s, %s' % (d, v(kt[j][1], 2), v(QX + qt * 6 + 4, 2), d))
    for qt, j in tiles:
        o = (8 + 16 * qt) * ROW
        if j == 2: A('ds_write_b64 %s, %s offset:%d' % (v(VSPM), v(XA + (qt * 3 + j) * 4, 2), o + 128))
        else: A('ds_write_b128 %s, %s offset:%d' % (v(VSPX), v(XA + (qt * 3 + j) * 4, 4), o + 64 * j))
    A('v_mov_b32 %s, %s' % (v(T + 3), s(SSEG)))
    A('s_waitcnt lgkmcnt(0)')
    A('s_barrier')
    softmax(VSX4, VSX1, True, T)
    A('s_waitcnt vmcnt(0)')
    A('s_barrier')
    if PFPOS < 0:
        for x in pflag_ops(T + 3): A(x)
    for tt in range(2):
        A('ds_read_b128 %s, %s offset:%d' % (v(KX + tt * 6, 4), v(VT), tt * 1536))
        A('ds_read_b64 %s, %s offset:%d' % (v(KX + tt * 6 + 4, 2), v(VT2), tt * 1536 + 1024))
    A('s_mov_b32 %s, %s' % (s(SSEG), s(SNEXT)))
    prof(A, 5, 1)
    A('s_cmp_ge_u32 %s, %d' % (s(SSEG), Cfg.nseg))
    A('s_cbranch_scc1 L_QK_fin')
    kq_wait(False)
    A('s_branch L_loop_QK')
    A.label('L_QK_fin')
    A('s_add_u32 %s, %s, %s' % (s(SXA), s(SPXB), s(SHM)))
    A('s_add_u32 %s, %s, %d' % (s(SXM), s(SPXB), U_PM))
    pstore(T, SXA, SXM)
    A('s_branch L_exit')
    frag_redo(A, 'QK', MEM, VT)
    Cfg.tregs = (4, 5)

def role_VO(A):
    VZ, VT = 3, 4
    VC = 5
    VP = 6
    VMW4, VMW2 = 9, 10
    VIDX = 11
    VWL = 12
    VVW = 13
    VVR = 14
    VUS = 15
    VA = 16
    MEM, STG, ACC = 32, 72, 88
    MEML, VL, WL = 0, 10240, 40960
    SCOMM, SU, SCAN, SNEXT, SUB = 64, 65, 66, 67, 68
    SCM = 74
    Cfg.tregs = (4, 31)
    A.label('L_role_VO')
    srd(A, S_WT, P_WV, 640 * 6144 * 2)
    srd(A, S_MISC, P_WO, 640 * 6144 * 2)
    VDM, VTA, VTB, VG, VR, VQ, VTA2 = 6, 10, 11, 12, 13, 14, 15
    SB, SB2 = 71, 72
    A('s_mul_i32 %s, %s, 384' % (s(SB), s(SIDX)))
    A('s_mul_i32 %s, %s, %d' % (s(ST0), s(SW), 16 * 12288))
    A('s_add_u32 %s, %s, %s' % (s(SB), s(SB), s(ST0)))
    A('s_mul_i32 %s, %s, %d' % (s(SB2), s(SIDX), 192 * 1280))
    A('s_mul_i32 %s, %s, 5120' % (s(ST0), s(SW)))
    A('s_add_u32 %s, %s, %s' % (s(SB2), s(SB2), s(ST0)))
    lane_parts(A, VG, VR, VQ)
    dma_voffs_384(A, VDM, 12288, VT, VT + 1)
    rec_w_taddr(A, VTA, VG, VR, VQ, VT, 384, 96)
    A('v_lshl_add_u32 %s, %s, 2, %s' % (v(VTA2), v(VG), v(VR)))
    A('v_mul_u32_u24 %s, 1280, %s' % (v(VTA2), v(VTA2)))
    A('v_lshl_add_u32 %s, %s, 3, %s' % (v(VTA2), v(VQ), v(VTA2)))
    A('s_mul_i32 %s, %s, 320' % (s(ST0), s(SW)))
    A('v_add_u32 %s, %s, %s' % (v(VTA2), s(ST0), v(VTA2)))
    use = [('v', ks, t) for ks in range(10) for t in range(2)] + [('v', ks, 2) for ks in range(10)] + \
          [('o', ct, j) for ct in range(10) for j in range(3)]
    lpos = [8, 18, 28, 38, 48, 58]
    ldsf = [use[p + i] for p in lpos for i in range(2)]
    regf = [u for u in use if u not in ldsf]
    assert len(regf) == 48
    def dstreg(key, P):
        return wreg(regf.index(key), 2 * P, 2) if key in regf else v(32 + ldsf.index(key) * 8 + 2 * P, 2)
    chunks = []
    for ks in range(10):
        reads = [(dstreg(('v', ks, t), P), (32 * (P >> 1) + 2 * (P & 1)) * 384 + t * 32) for t in range(3) for P in range(4)]
        chunks.append(dict(srd=S_WT, base=SB, dma=[(VDM + j % 3, (ks * 64 + 8 * (j // 3)) * 12288) for j in range(6)], taddr=VTA, reads=reads))
    for i in range(12):
        j, P = divmod(i, 4)
        reads = [(dstreg(('o', ct, j), P), ct * 32) for ct in range(10)]
        chunks.append(dict(srd=S_MISC, base=SB2, dma=[(VL16, i * 20480 + k * 1024) for k in range(5)], taddr=VTA2, reads=reads))
    load_weights(A, chunks, 24576, 6, VTB, NT_R, RCAP)
    G_, R_, Q_ = 28, 29, 30
    lane_parts(A, G_, R_, Q_)
    A('s_mul_i32 %s, %s, 24576' % (s(ST0), s(SW)))
    A('s_add_u32 %s, %s, %d' % (s(ST0), s(ST0), WL))
    A('v_add_u32 %s, %s, %s' % (v(VWL), s(ST0), v(VL16)))
    for i in range(12):
        for h in range(2):
            A('ds_write_b128 %s, %s offset:%d' % (v(VWL), v(32 + i * 8 + 4 * h, 4), i * 2048 + h * 1024))
    A('s_waitcnt lgkmcnt(0)')
    prof(A, 0)
    sparse_idx(A, VIDX, VT, True)
    rec_common_setup(A, VP, VMW4, VMW2, VIDX, VT)
    A('v_lshlrev_b32 %s, 6, %s' % (v(VVW), v(R_)))
    A('v_and_b32 %s, 1, %s' % (v(VT), v(VLANE)))
    A('v_lshl_add_u32 %s, %s, 5, %s' % (v(VVW), v(VT), v(VVW)))
    A('v_lshl_add_u32 %s, %s, 3, %s' % (v(VVW), v(G_), v(VVW)))
    A('v_and_b32 %s, 2, %s' % (v(VT), v(VLANE)))
    A('v_lshl_add_u32 %s, %s, 1, %s' % (v(VVW), v(VT), v(VVW)))
    A('s_mul_i32 %s, %s, 768' % (s(ST0), s(SW)))
    A('s_add_u32 %s, %s, %d' % (s(ST0), s(ST0), VL))
    A('v_add_u32 %s, %s, %s' % (v(VVW), s(ST0), v(VVW)))
    A('v_lshrrev_b32 %s, 1, %s' % (v(VVR), v(G_)))
    A('v_lshlrev_b32 %s, 9, %s' % (v(VVR), v(VVR)))
    A('v_and_b32 %s, 1, %s' % (v(VT), v(G_)))
    A('v_lshl_add_u32 %s, %s, 7, %s' % (v(VVR), v(VT), v(VVR)))
    A('v_lshrrev_b32 %s, 1, %s' % (v(VT), v(R_)))
    A('v_lshl_add_u32 %s, %s, 8, %s' % (v(VVR), v(VT), v(VVR)))
    A('v_and_b32 %s, 1, %s' % (v(VT), v(R_)))
    A('v_lshl_add_u32 %s, %s, 5, %s' % (v(VVR), v(VT), v(VVR)))
    A('v_lshl_add_u32 %s, %s, 3, %s' % (v(VVR), v(Q_), v(VVR)))
    A('v_add_u32 %s, %d, %s' % (v(VVR), VL, v(VVR)))
    A('v_and_b32 %s, 15, %s' % (v(VUS), v(VLANE)))
    A('v_lshlrev_b32 %s, 4, %s' % (v(VUS), v(VUS)))
    A('v_lshrrev_b32 %s, 1, %s' % (v(VT), v(G_)))
    A('v_lshl_add_u32 %s, %s, 3, %s' % (v(VUS), v(VT), v(VUS)))
    A('v_and_b32 %s, 1, %s' % (v(VT), v(G_)))
    A('v_lshl_add_u32 %s, %s, 14, %s' % (v(VUS), v(VT), v(VUS)))
    canary_setup(A, SCM)
    wait_init(A, VZ, VT)
    A('s_lshl_b32 %s, %s, 7' % (s(SCAN), s(SIDX)))
    A('s_add_u32 %s, %s, %s' % (s(SCAN), s(SCAN), s(SSEL)))
    A('s_add_u32 %s, %s, 0x%x' % (s(SCAN), s(SCAN), CANB + 32 * 128))
    SCA = 69
    cana_setup(A, SCA)
    A('s_mul_i32 %s, %s, %d' % (s(SUB), s(SW), 10 * 16384))
    A('s_add_u32 %s, %s, %s' % (s(SUB), s(SUB), s(SSEL)))
    A('s_lshl_b32 %s, %s, 8' % (s(ST0), s(SIDX)))
    A('s_add_u32 %s, %s, %s' % (s(SUB), s(SUB), s(ST0)))
    A('s_add_u32 %s, %s, 0x%x' % (s(SUB), s(SUB), URING))
    def stg(pi):
        return [('ds_read_b128 %s, %s offset:%d' % (v(STG + m * 8 + 4 * h, 4), v(VWL), (2 * pi + m) * 2048 + h * 1024), ('stg', pi)) for m in range(2) for h in range(2)]
    A('s_mov_b32 %s, 0' % s(SSEG))
    prof(A, 1)
    A.label('L_loop_VO')
    lg = Lg(A)
    for x in stg(0): lg.issue(*x)
    for i in range(0, 40, 2): A('v_pk_mov_b32 %s, 0, 0' % v(ACC + i, 2))
    for i in range(0, 12, 2): A('v_pk_mov_b32 %s, 0, 0' % v(VA + i, 2))
    comm_base(A, SCOMM, SSEG)
    A('s_add_u32 %s, %s, 1' % (s(SNEXT), s(SSEG)))
    A('v_mov_b32 %s, %s' % (v(VC), s(SNEXT)))
    A('s_and_b32 %s, %s, 1' % (s(SU), s(SSEG)))
    A('s_mul_i32 %s, %s, %d' % (s(SU), s(SU), 40 * 16384))
    A('s_add_u32 %s, %s, %s' % (s(SU), s(SU), s(SUB)))
    poll_mem(A, VP, MEM, VMW4, VMW2, SCOMM, VT, SCA)
    lg.q = []
    prof(A, 2)
    A.raw('; LAB VOcrit')
    mr = [('ds_read_b128 %s, %s offset:%d' % (v(MEM + 4 * ks, 4), v(VL16), MEML + ks * 1024), ('mem', ks)) for ks in range(10)]
    for x in mr[:2]: lg.issue(*x)
    S = Slots(60)
    for i, x in enumerate(mr[2:]): S.nv[i].append(x)
    for ks in range(10): S.pre[2 * ks].append(('mem', ks))
    for pi, p in enumerate(lpos):
        S.pre[p].append(('stg', pi))
        if pi + 1 < 6 and p != 28:
            for i, x in enumerate(stg(pi + 1)): S.nv[p + 2 + i].append(x)
    S.nv[CAN_POS_VO] += canary_ops(VZ, VC, SCAN, SCM)
    def vpost(t):
        d = VA + 4 * t
        return ['v_add_f32 %s, %s, %s' % (v(d), v(d), v(d + 2)), 'v_add_f32 %s, %s, %s' % (v(d + 1), v(d + 1), v(d + 3)),
                'v_cvt_pk_bf16_f32 %s, %s, %s' % (v(d), v(d), v(d + 1)),
                ('ds_write_b32 %s, %s offset:%d' % (v(VVW), v(d), t * 256), 'vw')]
    for t in range(2):
        p = vpost(t)
        for i in range(3): S.va[21 + 3 * t + i].append(p[i])
        S.nv[24 + 4 * t].append(p[3])
    tail = []
    for cp in range(5):
        x = ACC + cp * 8; y = x + 4
        ad = lambda d: 'v_add_f32 %s, %s, %s' % (v(d), v(d), v(d + 2))
        mn = lambda d: 'v_min_u32 %s, 0xfffffffe, %s' % (v(d), v(d))
        groups = [[ad(x)], [ad(x + 1)], ['v_cvt_pk_bf16_f32 %s, %s, %s' % (v(x), v(x), v(x + 1))],
                  [ad(y), mn(x)], [ad(y + 1), 'v_cvt_pk_bf16_f32 %s, %s, %s' % (v(x + 1), v(y), v(y + 1))], [mn(x + 1)], [],
                  ['v_permlane16_swap_b32 %s, %s' % (v(x), v(x + 1))]]
        st = ['s_add_u32 s60, %s, %d' % (s(SU), cp * 32768),
              'buffer_store_dwordx2 %s, %s, %s, s60 offen sc1' % (v(x, 2), v(VUS), s(S_WS, 4))]
        sl = 30 + 6 * cp + 4
        for g in groups:
            if sl < 60: S.va[sl] += g
            else: tail += g
            sl += 1
        if sl < 60: S.nv[sl] += st
        else: tail += st
    for j in range(3): S.pre[30 + j].append(('v', j))
    A.tight = True
    for i, key in enumerate(use):
        B = wreg(regf.index(key)) if key in regf else v(STG + (ldsf.index(key) & 1) * 8, 8)
        if key[0] == 'v':
            main = 'v_smfmac_f32_16x16x64_bf16 %s, %s, %s, %s' % (v(VA + 4 * key[2], 4), v(MEM + 4 * key[1], 4), B, v(VIDX))
        else:
            main = 'v_smfmac_f32_16x16x64_bf16 %s, %s, %s, %s' % (v(ACC + key[1] * 4, 4), v(VA + 4 * key[2], 4), B, v(VIDX))
        S.emit(A, lg, i, main)
        if i == 29:
            for x in stg(3): lg.issue(*x)
            p2 = vpost(2)
            for x in p2[:3]: A(x)
            lg.issue(*p2[3])
            lg.all()
            A('s_barrier')
            for j in range(3):
                for Q in range(2):
                    lg.issue('ds_read_b64_tr_b16 %s, %s offset:%d' % (v(VA + 4 * j + 2 * Q, 2), v(VVR), j * 1024 + Q * 64), ('v', j))
    for x in tail: A(x)
    A.tight = False
    A.raw('; LAB end')
    A('s_mov_b32 %s, %s' % (s(SSEG), s(SNEXT)))
    prof(A, 3, 1, True)
    A('s_cmp_lt_u32 %s, %d' % (s(SSEG), Cfg.nseg))
    A('s_cbranch_scc1 L_loop_VO')
    A('s_branch L_exit')
    Cfg.tregs = (4, 5)

def out_lanes(A, M_, CP, VT, inl):
    if inl:
        A('v_lshrrev_b32 %s, 4, %s' % (v(M_), v(VLANE)))
        A('v_lshlrev_b32 %s, 1, %s' % (v(M_), v(M_)))
    else:
        A('v_bfe_u32 %s, %s, 4, 1' % (v(M_), v(VLANE)))
        A('v_lshlrev_b32 %s, 2, %s' % (v(M_), v(M_)))
        A('v_lshrrev_b32 %s, 5, %s' % (v(VT), v(VLANE)))
        A('v_lshl_add_u32 %s, %s, 1, %s' % (v(M_), v(VT), v(M_)))
    A('v_and_b32 %s, 1, %s' % (v(VT), v(VLANE)))
    A('v_add_u32 %s, %s, %s' % (v(M_), v(VT), v(M_)))
    A('v_bfe_u32 %s, %s, 1, 3' % (v(CP), v(VLANE)))
    A('v_and_b32 %s, 3, %s' % (v(VT), v(CP)))
    A('v_lshlrev_b32 %s, 2, %s' % (v(VT), v(VT)))
    A('v_lshl_add_u32 %s, %s, 4, %s' % (v(VT), v(M_), v(VT)))
    A('v_lshrrev_b32 %s, 2, %s' % (v(VT + 1), v(CP)))

def sparse_idx(A, VIDX, VT, inl):
    A('v_and_b32 %s, %d, %s' % (v(VT), 2 if inl else 8, v(VLANE)))
    A('v_cmp_eq_u32 vcc, 0, %s' % v(VT))
    A('v_mov_b32 %s, 0xeeee' % v(VIDX))
    A('v_mov_b32 %s, 0x4444' % v(VT))
    A('v_cndmask_b32 %s, %s, %s, vcc' % (v(VIDX), v(VIDX), v(VT)))

def to_inl(A, d, src, t):
    A('v_and_b32 %s, 0x60, %s' % (v(t), v(src)))
    A('v_lshlrev_b32 %s, 1, %s' % (v(t), v(t)))
    A('v_and_b32 %s, 0x80, %s' % (v(d), v(src)))
    A('v_lshrrev_b32 %s, 2, %s' % (v(d), v(d)))
    A('v_or_b32 %s, %s, %s' % (v(t), v(t), v(d)))
    A('v_and_b32 %s, 0xffffff1f, %s' % (v(d), v(src)))
    A('v_or_b32 %s, %s, %s' % (v(d), v(d), v(t)))

def px_voff(A, d, t):
    A('v_lshrrev_b32 %s, 4, %s' % (v(d), v(VLANE)))
    A('v_lshlrev_b32 %s, 8, %s' % (v(d), v(d)))
    A('v_and_b32 %s, 15, %s' % (v(t), v(VLANE)))
    A('v_lshl_add_u32 %s, %s, 3, %s' % (v(d), v(t), v(d)))
def px_block(A, PR, q, sreg, VPMX):
    for j in range(4):
        if q < 4:
            A('buffer_load_dwordx4 %s, %s, %s, %s offen offset:%d sc1' % (v(PR + (q * 4 + j) * 4, 4), v(VL16), s(S_WS, 4), sreg, j * 1024))
        else:
            for jj in range(2):
                A('buffer_load_dwordx2 %s, %s, %s, %s offen offset:%d sc1' % (v(PR + 64 + 4 * j + 2 * jj, 2), v(VPMX), s(S_WS, 4), sreg, j * 1024 + jj * 128))
def px_left(i):
    return (15 - i) + 8 if i < 16 else 2 * (19 - i)

SEV, SOD = 74, 76
def parity_masks(A):
    A('s_mov_b32 %s, 0x55555555' % s(SEV)); A('s_mov_b32 %s, 0x55555555' % s(SEV + 1))
    A('s_mov_b32 %s, 0xaaaaaaaa' % s(SOD)); A('s_mov_b32 %s, 0xaaaaaaaa' % s(SOD + 1))
def halves(A, d, inl=False):
    if not inl:
        A('v_permlane32_swap_b32 %s, %s' % (v(d), v(d + 2)))
        A('v_permlane32_swap_b32 %s, %s' % (v(d + 1), v(d + 3)))
    A('v_pk_add_f32 %s, %s, %s' % (v(d, 2), v(d, 2), v(d + 2, 2)))
def pack(A, d):
    A('s_mov_b64 vcc, %s' % s(SEV, 2))
    A('v_cndmask_b32_dpp %s, %s, %s, vcc quad_perm:[1,0,3,2] row_mask:0xf bank_mask:0xf' % (v(d + 2), v(d + 1), v(d)))
    A('s_mov_b64 vcc, %s' % s(SOD, 2))
    A('v_cndmask_b32_dpp %s, %s, %s, vcc quad_perm:[1,0,3,2] row_mask:0xf bank_mask:0xf' % (v(d + 3), v(d), v(d + 1)))
    A('v_cvt_pk_bf16_f32 %s, %s, %s' % (v(d), v(d + 2), v(d + 3)))

def role_S2(A):
    VZ, VT = 3, 4
    VIDX = 6
    VUL = 7
    VMS = 8
    VCAN = 11
    VFI = 12
    D = 16
    FT = 24
    SENT = 20
    UR, PR = 32, 64
    ULDS = 65536
    SCOMM, SU, SUB, SCAN, SNEXT, SVO, SFLIN, SFL, SMS, SWV = 62, 63, 64, 65, 66, 67, 68, 69, 73, 70
    Cfg.tregs = (30, 31)
    A.label('L_role_S2')
    sparse_idx(A, VIDX, VT, True)
    out_lanes(A, 28, 29, VT, True)
    A('v_lshl_add_u32 %s, %s, 7, %s' % (v(28), v(VT + 1), v(VT)))
    to_inl(A, VMS, 28, VT)
    A('v_mul_u32_u24 %s, %d, %s' % (v(VCAN), 128 * 32 // NSQ, v(VLANE)))
    A('v_subrev_u32 %s, %d, %s' % (v(VT), NSQ, v(VLANE)))
    A('v_mul_u32_u24 %s, %d, %s' % (v(VT), 128 * 32 // max(NSV, 1), v(VT)))
    A('v_add_u32 %s, 4096, %s' % (v(VT), v(VT)))
    A('v_cmp_gt_u32 vcc, %d, %s' % (NSQ, v(VLANE)))
    A('v_cndmask_b32 %s, %s, %s, vcc' % (v(VCAN), v(VT), v(VCAN)))
    A('v_add_u32 %s, %d, %s' % (v(VUL), ULDS, v(VL16)))
    SHA = 71
    A('s_and_b32 %s, s2, 3' % s(ST0))
    A('s_lshl_b32 %s, %s, 11' % (s(SHA), s(ST0)))
    A('v_lshlrev_b32 v10, 7, %s' % v(VLANE))
    A('s_mul_i32 %s, %s, 10' % (s(ST0), s(ST0)))
    A('s_sub_u32 %s, %s, %s' % (s(ST0), s(SIDX), s(ST0)))
    A('s_lshl_b32 %s, %s, 2' % (s(ST0), s(ST0)))
    A('s_add_u32 %s, %s, %s' % (s(SHA), s(SHA), s(ST0)))
    A('s_add_u32 %s, %s, 0x%x' % (s(SHA), s(SHA), CANA))
    flag_voff(A, VFI, 32)
    for i in range(4): A('v_mov_b32 %s, -1' % v(SENT + i))
    parity_masks(A)
    A('s_mov_b32 %s, 0x%x' % (s(SFLIN), FLAGS + (FL_W + 96) * 128))
    A('s_mul_i32 %s, %s, %d' % (s(SVO), s(SIDX), ZT))
    A('s_add_u32 %s, %s, 0x%x' % (s(SVO), s(SVO), VO))
    A('s_lshl_b32 %s, %s, 8' % (s(SMS), s(SIDX)))
    A('s_add_u32 %s, %s, %d' % (s(SMS), s(SMS), U_MEM))
    A('s_lshr_b32 %s, %s, 13' % (s(ST0), s(SMS)))
    A('s_lshl_b32 %s, %s, 13' % (s(ST0), s(ST0)))
    A('s_add_u32 %s, %s, %s' % (s(SMS), s(SMS), s(ST0)))
    wait_init(A, VZ, VT)
    near_line(A, SFL, SIDX, NF_S)
    A('s_add_u32 %s, %s, 0x%x' % (s(SCAN), s(SSEL), CANB))
    A('s_lshl_b32 %s, %s, 14' % (s(SUB), s(SIDX)))
    A('s_add_u32 %s, %s, %s' % (s(SUB), s(SUB), s(SSEL)))
    A('s_add_u32 %s, %s, 0x%x' % (s(SUB), s(SUB), URING))
    A('s_mov_b32 %s, 0' % s(SSEG))
    def slots():
        A('s_add_u32 %s, %s, 1' % (s(SNEXT), s(SSEG)))
        comm_base(A, SCOMM, SSEG)
        A('s_and_b32 %s, %s, 1' % (s(SU), s(SSEG)))
        A('s_mul_i32 %s, %s, %d' % (s(SU), s(SU), 40 * 16384))
        A('s_add_u32 %s, %s, %s' % (s(SU), s(SU), s(SUB)))
        A('s_add_u32 %s, %s, 4096' % (s(ST2), s(SU)))
    A('s_cmp_ge_u32 %s, 2' % s(SW))
    A('s_cbranch_scc1 L_S2_dma0')
    A('s_barrier')
    A('s_cmp_eq_u32 %s, 1' % s(SW))
    A('s_cbranch_scc1 L_S2_st')
    prof(A, 1)
    A.label('L_loop_S2')
    A('s_and_b32 %s, %s, 1' % (s(ST0), s(SSEG)))
    A('s_lshl_b32 %s, %s, 15' % (s(ST0), s(ST0)))
    A('v_add_u32 %s, %s, %s' % (v(VT), s(ST0), v(VL16)))
    for h in range(32):
        A('ds_read_b128 %s, %s offset:%d' % (a(4 * h, 4), v(VT), h * 1024))
    slots()
    comm_base(A, ST3, SNEXT)
    A('s_add_u32 %s, %s, %s' % (s(ST3), s(ST3), s(SMS)))
    A('s_waitcnt lgkmcnt(0)')
    A('v_mov_b32 v9, %s' % s(SNEXT))
    A('s_mov_b32 exec_lo, 0x%x' % (((1 << NSAMP) - 1) & 0xffffffff))
    A('s_mov_b32 exec_hi, 0x%x' % (((1 << NSAMP) - 1) >> 32))
    A('s_mov_b32 s72, 3')
    poll_pipe(A, VCAN, s(SCAN), s(SNEXT), 144, PDB, PGB)
    A('s_mov_b64 exec, -1')
    prof(A, 2)
    def loads():
        for j in range(8):
            A('buffer_load_dwordx4 %s, %s, %s, %s offen offset:%d sc1' % (v(UR + 4 * j, 4), v(VL16), s(S_WS, 4), s(SU if j < 4 else ST2), (j & 3) * 1024))
        for q in range(5):
            A('s_add_u32 s60, %s, %d' % (s(SCOMM), xp(q * 4096)))
            for j in range(4):
                A('buffer_load_dwordx4 %s, %s, %s, s60 offen offset:%d sc1' % (v(PR + (q * 4 + j) * 4, 4), v(VL16), s(S_WS, 4), j * 1024))
    loads()
    A('s_barrier')
    A.label('L_S2_go')
    for i in range(4): A('v_mov_b32 %s, 0' % v(D + i))
    def hint():
        A('s_mov_b64 exec, 0x%x' % ((1 << NH) - 1))
        A('buffer_store_dword v9, v10, %s, %s offen' % (s(S_WS, 4), s(SHA)))
        A('s_mov_b64 exec, -1')
    for i in range(20):
        A('s_waitcnt vmcnt(%d)' % (19 - i + (1 if i > HPOS else 0)))
        B = a(8 * i, 8) if i < 16 else v(UR + 8 * (i - 16), 8)
        A('v_smfmac_f32_16x16x64_bf16 %s, %s, %s, %s' % (v(D, 4), v(PR + 4 * i, 4), B, v(VIDX)))
        if i == HPOS: hint()
    halves(A, D, True)
    A('v_cmp_u_f32 vcc, %s, %s' % (v(D), v(D + 1)))
    A('s_cbranch_vccnz L_S2_slow')
    A.label('L_S2_ok')
    pack(A, D)
    A('v_min_u32 %s, 0xfffffffe, %s' % (v(D), v(D)))
    A('buffer_store_dword %s, %s, %s, %s offen sc1' % (v(D), v(VMS), s(S_WS, 4), s(ST3)))
    if HPOS >= 20: hint()
    prof(A, 3)
    for j in range(8):
        A('ds_write_b128 %s, %s offset:%d' % (v(VUL), v(UR + 4 * j, 4), j * 1024))
    A('s_mov_b32 %s, %s' % (s(SSEG), s(SNEXT)))
    A('s_waitcnt lgkmcnt(0)')
    A('s_barrier')
    prof(A, 4, 1)
    A('s_cmp_lt_u32 %s, %d' % (s(SSEG), Cfg.nseg - 1))
    A('s_cbranch_scc1 L_loop_S2')
    A('s_branch L_S2_fin')
    A.label('L_S2_slow')
    A('s_sub_u32 s72, s72, 1')
    A('s_cbranch_scc0 L_S2_again')
    A('s_mov_b32 s72, 0')
    A('v_mov_b32 %s, 0' % v(VT))
    for i in range(0, 112, 2):
        A('v_max3_u32 %s, %s, %s, %s' % (v(VT), v(VT), v(UR + i), v(UR + i + 1)))
    A('v_cmp_eq_u32 vcc, -1, %s' % v(VT))
    A('s_cbranch_vccz L_S2_ok')
    spin_dec(A)
    A.label('L_S2_again')
    if Cfg.prof or Cfg.trace: A('s_add_u32 s100, s100, 1')
    loads()
    A('s_branch L_S2_go')
    A.label('L_S2_st')
    slots()
    A('s_add_u32 %s, %s, %s' % (s(ST3), s(SCOMM), s(SMS)))
    A('s_barrier')
    A('s_barrier')
    A('s_cmp_ge_u32 %s, %d' % (s(SNEXT), Cfg.nseg - 1))
    A('s_cbranch_scc1 L_S2_fin')
    for j in range(8):
        A('ds_read_b128 %s, %s offset:%d' % (v(UR + 4 * j, 4), v(VUL), j * 1024))
    if S2DELAY: A('s_sleep %d' % S2DELAY)
    A('s_waitcnt lgkmcnt(0)')
    for j in range(0 if os.environ.get('NOULOG') else 8):
        if j % 4 == 0: A('s_add_u32 s60, %s, %d' % (s(SVO), 32768 + j * 1024))
        A('buffer_store_dwordx4 %s, %s, %s, s60 offen offset:%d sc1' % (v(UR + 4 * j, 4), v(VL16), s(S_WS, 4), (j & 3) * 1024))
    for j in range(8):
        A('buffer_store_dwordx4 %s, %s, %s, %s offen offset:%d sc1' % (v(SENT, 4), v(VL16), s(S_WS, 4), s(SU if j < 4 else ST2), (j & 3) * 1024))
    A('buffer_store_dword %s, %s, %s, %s offen sc1' % (v(SENT), v(VMS), s(S_WS, 4), s(ST3)))
    A('s_add_u32 %s, %s, %d' % (s(SVO), s(SVO), 40 * ZT))
    A('s_waitcnt vmcnt(0)')
    post_wflag(A, VZ, VT, SFL, SNEXT)
    prof(A, 5)
    A('s_mov_b32 %s, %s' % (s(SSEG), s(SNEXT)))
    A('s_branch L_S2_st')
    SSL = 72
    def dma(check=True):
        A('s_add_u32 %s, %s, 1' % (s(SNEXT), s(SSEG)))
        if check: poll4_ge(A, VFI, s(SFLIN), s(SNEXT), FT, sleep=4)
        A('s_add_u32 %s, %s, %s' % (s(ST0), s(SSL), s(SWV)))
        for q in range(4):
            A('s_add_u32 m0, %s, %d' % (s(ST0), q * 4096))
            A('s_add_u32 s60, %s, %d' % (s(SVO), q * 4096))
            for j in range(4):
                if os.environ.get('NODMA') and not check: continue
                A('buffer_load_dwordx4 %s, %s, s60 offen offset:%d sc1 lds' % (v(VL16), s(S_WS, 4), j * 1024))
                if DMAGAP: A('s_nop %d' % (DMAGAP - 1))
        A('s_add_u32 %s, %s, %d' % (s(SVO), s(SVO), 40 * ZT))
        A('s_mov_b32 %s, %s' % (s(SSEG), s(SNEXT)))
        A('s_xor_b32 %s, %s, 32768' % (s(SSL), s(SSL)))
        A('v_cmp_ge_u32 vcc, %s, %s' % (s(SSEG), v(FT)))
        A('s_and_saveexec_b64 s[78:79], vcc')
        A('buffer_load_dwordx4 %s, %s, %s, %s offen sc1' % (v(FT, 4), v(VFI), s(S_WS, 4), s(SFLIN)))
        A('s_mov_b64 exec, -1')
    def settle():
        A('s_waitcnt vmcnt(0)')
        A('v_min3_u32 %s, %s, %s, %s' % (v(FT), v(FT), v(FT + 1), v(FT + 2)))
        A('v_min_u32 %s, %s, %s' % (v(FT), v(FT), v(FT + 3)))
    A.label('L_S2_dma0')
    flag_voff(A, VFI, 16)
    A('s_and_b32 %s, %s, 1' % (s(ST0), s(SW)))
    A('s_lshl_b32 %s, %s, 11' % (s(ST0), s(ST0)))
    A('s_add_u32 %s, %s, %s' % (s(SFLIN), s(SFLIN), s(ST0)))
    A('s_mov_b32 %s, 0' % s(SSL))
    A('s_and_b32 %s, %s, 1' % (s(SWV), s(SW)))
    A('s_lshl_b32 %s, %s, 14' % (s(SWV), s(SWV)))
    A('s_add_u32 %s, %s, %s' % (s(SVO), s(SVO), s(SWV)))
    dma()
    A('s_waitcnt vmcnt(0)')
    A('s_barrier')
    A('s_barrier')
    dma()
    settle()
    A('s_barrier')
    A.label('L_S2_dma')
    A('v_cmp_ge_u32 vcc, %s, %s' % (s(SSEG), v(FT)))
    A('s_cbranch_vccnz L_S2_late')
    if S2DELAY2: A('s_sleep %d' % S2DELAY2)
    dma(False)
    if Cfg.trace and not os.environ.get('LIGHT'):
        A('s_waitcnt vmcnt(0)')
        prof(A, 6, 3)
    A('s_barrier')
    A('s_branch L_S2_dm2')
    A.label('L_S2_late')
    A('s_barrier')
    dma()
    A.label('L_S2_dm2')
    settle()
    A.label('L_S2_dm3')
    A('s_barrier')
    A('s_cmp_lt_u32 %s, %d' % (s(SSEG), Cfg.nseg))
    A('s_cbranch_scc1 L_S2_dma')
    A.label('L_S2_fin')
    LAST = Cfg.nseg - 1
    VHS, VXR, XR, SCM, SH, SPX = 13, 14, 26, 78, 62, 66
    for h in range(64):
        sl = ((LAST - 1 + h // 32) & 1) * 32768
        A('ds_read_b128 %s, %s offset:%d' % (a(4 * h, 4), v(VL16), sl + (h % 32) * 1024))
    for j in range(8):
        A('ds_read_b128 %s, %s offset:%d' % (v(UR + 4 * j, 4), v(VUL), j * 1024))
    px_voff(A, 15, VT)
    sparse_idx(A, VIDX, VT, False)
    out_lanes(A, 28, 29, VT, False)
    A('v_lshl_add_u32 %s, %s, 8, %s' % (v(VHS), v(VT + 1), v(VT)))
    A('v_mul_u32_u24 %s, 1280, v28' % v(VXR))
    A('v_lshl_add_u32 %s, v29, 2, %s' % (v(VXR), v(VXR)))
    A('s_mul_i32 %s, %s, %d' % (s(ST0), s(SW), 8 * 1280))
    A('s_lshl_b32 %s, %s, 5' % (s(ST1), s(SIDX)))
    A('s_add_u32 %s, %s, %s' % (s(ST0), s(ST0), s(ST1)))
    for k in range(2):
        A('s_add_u32 %s, %s, %d' % (s(ST1), s(ST0), (LAST - 1 + k) * 40960))
        A('buffer_load_dword %s, %s, %s, %s offen' % (v(XR + k), v(VXR), s(S_X, 4), s(ST1)))
    for i in range(0, 80, 2): A('v_pk_mov_b32 %s, 0, 0' % v(PR + i, 2))
    A('v_bfe_u32 %s, %s, 3, 1' % (v(VT), v(VLANE)))
    A('v_bfe_u32 %s, %s, 4, 1' % (v(VT + 1), v(VLANE)))
    A('v_lshl_add_u32 %s, %s, 1, %s' % (v(VT), v(VT), v(VT + 1)))
    A('v_cmp_ge_u32 %s, %s, %s' % (s(SCM, 2), s(SW), v(VT)))
    A('s_lshr_b32 %s, %s, 1' % (s(ST0), s(SW)))
    A('s_mul_i32 %s, %s, 20480' % (s(SH), s(ST0)))
    A('s_lshl_b32 %s, %s, 9' % (s(ST0), s(SIDX)))
    A('s_add_u32 %s, %s, %s' % (s(SH), s(SH), s(ST0)))
    A('s_and_b32 %s, %s, 1' % (s(ST0), s(SW)))
    A('s_lshl_b32 %s, %s, 7' % (s(ST0), s(ST0)))
    A('s_add_u32 %s, %s, %s' % (s(SH), s(SH), s(ST0)))
    A('s_mul_i32 %s, %s, 20480' % (s(SPX), s(SW)))
    near_line(A, SFL, SIDX, NF_T)
    A('s_add_u32 %s, %s, %d' % (s(SU), s(SUB), (LAST & 1) * 40 * 16384))
    A('s_add_u32 %s, %s, 4096' % (s(ST2), s(SU)))
    vmask = ((1 << NSAMP) - 1) ^ ((1 << NSQ) - 1)
    A('s_mov_b32 exec_lo, 0x%x' % (vmask & 0xffffffff))
    A('s_mov_b32 exec_hi, 0x%x' % (vmask >> 32))
    A('s_mov_b32 %s, %d' % (s(ST1), Cfg.nseg))
    poll_ge(A, S_WS, VCAN, s(SCAN), s(ST1), VT, sleep=1)
    A('s_mov_b64 exec, -1')
    A('s_waitcnt lgkmcnt(0)')
    for k in range(2):
        Lr = 'L_S2_f%d' % k; Lo = 'L_S2_fo%d' % k
        A('s_mov_b32 %s, %d' % (s(SSEG), LAST - 1 + k))
        prof(A, 5)
        A.label(Lr)
        if k == 1:
            for j in range(8):
                A('buffer_load_dwordx4 %s, %s, %s, %s offen offset:%d sc1' % (v(UR + 4 * j, 4), v(VL16), s(S_WS, 4), s(SU if j < 4 else ST2), (j & 3) * 1024))
        A('s_mov_b64 exec, %s' % s(SCM, 2))
        for q in range(5):
            if q == 4: A('s_mov_b64 exec, -1')
            A('s_add_u32 s60, %s, 0x%x' % (s(SPX), PX + (LAST - 1 + k) * 81920 + q * 4096))
            px_block(A, PR, q, 's60', 15)
        for i in range(4): A('v_mov_b32 %s, 0' % v(D + i))
        for i in range(20):
            A('s_waitcnt vmcnt(%d)' % px_left(i))
            B = a(128 * k + 8 * i, 8) if i < 16 else v(UR + 8 * (i - 16), 8)
            A('v_smfmac_f32_16x16x64_bf16 %s, %s, %s, %s' % (v(D, 4), v(PR + 4 * i, 4), B, v(VIDX)))
        halves(A, D)
        A('v_cmp_u_f32 vcc, %s, %s' % (v(D), v(D + 1)))
        A('s_cbranch_vccz %s' % Lo)
        A('v_mov_b32 %s, 0' % v(VT))
        for i in range(0, 112, 2):
            A('v_max3_u32 %s, %s, %s, %s' % (v(VT), v(VT), v(UR + i), v(UR + i + 1)))
        A('v_cmp_eq_u32 vcc, -1, %s' % v(VT))
        A('s_cbranch_vccz %s' % Lo)
        spin_dec(A)
        A('s_branch %s' % Lr)
        A.label(Lo)
        pack(A, D)
        A('v_lshlrev_b32 %s, 16, %s' % (v(D + 1), v(D)))
        A('v_and_b32 %s, 0xffff0000, %s' % (v(D), v(D)))
        A('v_lshlrev_b32 %s, 16, %s' % (v(D + 2), v(XR + k)))
        A('v_and_b32 %s, 0xffff0000, %s' % (v(D + 3), v(XR + k)))
        A('v_add_f32 %s, %s, %s' % (v(D + 1), v(D + 1), v(D + 2)))
        A('v_add_f32 %s, %s, %s' % (v(D), v(D), v(D + 3)))
        A('v_cvt_pk_bf16_f32 %s, %s, %s' % (v(D), v(D + 1), v(D)))
        A('s_add_u32 s60, %s, 0x%x' % (s(SH), HF + (LAST - 1 + k) * 40960))
        A('buffer_store_dword %s, %s, %s, s60 offen sc1' % (v(D), v(VHS), s(S_WS, 4)))
        prof(A, 7)
        A('s_mov_b32 %s, %d' % (s(ST1), k + 1))
        A('s_waitcnt vmcnt(0)')
        A('s_barrier')
        post_flag(A, VZ, VT, SFL, ST1, 0)
    A('s_branch L_exit')
    Cfg.tregs = (4, 5)

def role_X2(A):
    VZ, VT = 3, 4
    VIDX = 6
    VHS, VXR, VFI, VCAN = 8, 9, 10, 11
    VRD = (12, 13, 14, 15)
    D = 16
    XR = 24
    FT = 28
    BB = 32
    PR = 64
    TRV = 224
    FR = 27
    SZ, SPX, SH, SXO, SFL, SFLIN, SCAN, SWL, SJ, SHN, SCM, SNS = 62, 63, 64, 65, 66, 67, 68, 70, 71, 72, 78, 69
    SZ0, SH0, SX0 = 32, 33, 34
    NJ = 5 * (Cfg.nseg - 2)
    A.label('L_role_X2')
    def mark(i):
        if Cfg.trace and not os.environ.get('LIGHT'):
            A('s_mov_b32 m0, %s' % s(SSEG))
            A('s_memrealtime s[82:83]'); A('s_waitcnt lgkmcnt(0)')
            A('v_writelane_b32 %s, s82, %s' % (v(TRV + i), 'm0'))
    if Cfg.trace:
        for i in range(8): A('v_mov_b32 %s, 0' % v(TRV + i))
    sparse_idx(A, VIDX, VT, False)
    out_lanes(A, 28, 29, VT, False)
    A('v_lshl_add_u32 %s, %s, 8, %s' % (v(VHS), v(VT + 1), v(VT)))
    A('v_mul_u32_u24 %s, 1280, v28' % v(VXR))
    A('v_lshl_add_u32 %s, v29, 2, %s' % (v(VXR), v(VXR)))
    A('s_mul_i32 %s, s80, 1280' % s(ST0))
    A('s_add_u32 %s, %s, %d' % (s(ST0), s(ST0), NF_S - 32 * 128))
    A('s_mov_b32 %s, %d' % (s(ST1), NF_P))
    A('v_min_u32 %s, 41, %s' % (v(VT), v(VLANE)))
    A('v_lshlrev_b32 %s, 7, %s' % (v(VT), v(VT)))
    A('v_add_u32 %s, %s, %s' % (v(VFI), s(ST0), v(VT)))
    A('v_add_u32 %s, %s, %s' % (v(VT), s(ST1), v(VT)))
    A('v_cmp_gt_u32 vcc, 32, %s' % v(VLANE))
    A('v_cndmask_b32 %s, %s, %s, vcc' % (v(VFI), v(VFI), v(VT)))
    flag_voff(A, VCAN, 32)
    px_voff(A, 7, VT)
    for i in range(4): A('v_add_u32 %s, %d, %s' % (v(VRD[i]), i * ZT, v(VL16)))
    for i in range(0, 80, 2): A('v_pk_mov_b32 %s, 0, 0' % v(PR + i, 2))
    parity_masks(A)
    A('v_bfe_u32 %s, %s, 3, 1' % (v(VT), v(VLANE)))
    A('v_bfe_u32 %s, %s, 4, 1' % (v(VT + 1), v(VLANE)))
    A('v_lshl_add_u32 %s, %s, 1, %s' % (v(VT), v(VT), v(VT + 1)))
    A('v_cmp_ge_u32 %s, %s, %s' % (s(SCM, 2), s(SW), v(VT)))
    A('s_mul_i32 %s, %s, 20480' % (s(SWL), s(SW)))
    A('s_mul_i32 %s, s80, %d' % (s(SZ0), 10 * ZT))
    A('s_add_u32 %s, %s, 0x%x' % (s(SZ0), s(SZ0), VO))
    SVW, SUW, SOK, SZC = 35, 36, 37, 38
    A('s_lshr_b32 %s, %s, 1' % (s(ST0), s(SW)))
    A('s_mul_i32 %s, %s, %d' % (s(ST0), s(ST0), ZT))
    A('s_and_b32 %s, %s, 1' % (s(ST1), s(SW)))
    A('s_lshl_b32 %s, %s, 14' % (s(SVW), s(ST1)))
    A('s_add_u32 %s, %s, %s' % (s(SVW), s(SVW), s(ST0)))
    A('s_lshl_b32 %s, %s, 12' % (s(SUW), s(ST1)))
    A('s_add_u32 %s, %s, %s' % (s(SUW), s(SUW), s(ST0)))
    A('s_add_u32 %s, %s, 32768' % (s(SUW), s(SUW)))
    A('s_mov_b32 %s, 0' % s(SOK))
    A('s_lshr_b32 %s, %s, 1' % (s(ST0), s(SW)))
    A('s_mul_i32 %s, %s, 20480' % (s(SH0), s(ST0)))
    A('s_mul_i32 %s, s80, 5120' % s(ST0))
    A('s_add_u32 %s, %s, %s' % (s(SH0), s(SH0), s(ST0)))
    A('s_and_b32 %s, %s, 1' % (s(ST0), s(SW)))
    A('s_lshl_b32 %s, %s, 7' % (s(ST0), s(ST0)))
    A('s_add_u32 %s, %s, %s' % (s(SH0), s(SH0), s(ST0)))
    A('s_add_u32 %s, %s, 0x%x' % (s(SH0), s(SH0), HF))
    A('s_mul_i32 %s, %s, %d' % (s(SX0), s(SW), 8 * 1280))
    A('s_mul_i32 %s, s80, 320' % s(ST0))
    A('s_add_u32 %s, %s, %s' % (s(SX0), s(SX0), s(ST0)))
    A('s_mov_b32 %s, 0x%x' % (s(SCAN), FLAGS + (FL_W + 96) * 128))
    wait_init(A, VZ, VT)
    A('s_mul_i32 %s, s80, 6' % s(ST1))
    A('s_add_u32 %s, %s, %s' % (s(ST1), s(ST1), s(SIDX)))
    near_line(A, SFL, ST1, NF_H)
    A('s_mov_b32 %s, %s' % (s(SFLIN), s(SSEL)))
    A('s_lshl_b32 s39, s80, 11')
    A('s_add_u32 s39, s39, 0x%x' % CANA)
    def decode(add):
        A('s_add_u32 %s, %s, %d' % (s(ST2), s(SJ), add))
        A('s_mul_i32 %s, %s, 13108' % (s(SNS), s(ST2)))
        A('s_lshr_b32 %s, %s, 16' % (s(SNS), s(SNS)))
        A('s_mul_i32 %s, %s, 5' % (s(ST3), s(SNS)))
        A('s_sub_u32 %s, %s, %s' % (s(ST3), s(ST2), s(ST3)))
        A('s_mul_i32 %s, %s, %d' % (s(SZ), s(SNS), 40 * ZT))
        A('s_mul_i32 %s, %s, %d' % (s(ST2), s(ST3), 2 * ZT))
        A('s_add_u32 %s, %s, %s' % (s(SZ), s(SZ), s(ST2)))
        A('s_add_u32 %s, %s, %s' % (s(SZ), s(SZ), s(SZ0)))
        A('s_mul_i32 %s, %s, 81920' % (s(SPX), s(SNS)))
        A('s_add_u32 %s, %s, %s' % (s(SPX), s(SPX), s(SWL)))
        A('s_add_u32 %s, %s, 0x%x' % (s(SPX), s(SPX), PX))
        A('s_mul_i32 %s, %s, 40960' % (s(ST2), s(SNS)))
        A('s_lshl_b32 %s, %s, 6' % (s(SXO), s(ST3)))
        A('s_add_u32 %s, %s, %s' % (s(SXO), s(SXO), s(ST2)))
        A('s_add_u32 %s, %s, %s' % (s(SXO), s(SXO), s(SX0)))
        A('s_lshl_b32 %s, %s, 10' % (s(SHN), s(ST3)))
        A('s_add_u32 %s, %s, %s' % (s(SHN), s(SHN), s(ST2)))
        A('s_add_u32 %s, %s, %s' % (s(SHN), s(SHN), s(SH0)))
    def vo_ops(buf):
        ops = []
        for q in range(4):
            for j in range(4):
                o = ['s_add_u32 m0, %s, %d' % (s(SVW), buf * 2 * ZT + q * 4096), 's_add_u32 s60, %s, %d' % (s(SZC), q * 4096)] if j == 0 else []
                ops.append(o + (['s_mov_b64 exec, 1'] if os.environ.get('XNOVO') else []) + ['buffer_load_dwordx4 %s, %s, s60 offen offset:%d sc1 lds' % (v(VL16), s(S_WS, 4), j * 1024), 's_mov_b64 exec, -1'])
        return ops
    def vo_ready():
        L = A.newlabel('Lv')
        A('s_add_u32 %s, %s, %s' % (s(SZC), s(SZ), s(SVW)))
        A('s_cmp_lt_u32 %s, %s' % (s(SNS), s(SOK)))
        A('s_cbranch_scc1 %s' % L)
        A('s_add_u32 %s, %s, 1' % (s(SOK), s(SNS)))
        poll4_ge(A, VCAN, s(SCAN), s(SOK), FT, sleep=16)
        A('s_add_u32 %s, %s, 8' % (s(ST1), s(SOK)))
        A('s_min_u32 %s, %s, %d' % (s(ST1), s(ST1), Cfg.nseg))
        A('v_cmp_gt_u32 vcc, %s, %s' % (s(ST1), v(FT)))
        A('s_cmp_eq_u64 vcc, 0')
        A('s_cselect_b32 %s, %s, %s' % (s(SOK), s(ST1), s(SOK)))
        A.label(L)
    def body(buf, more):
        A('s_mov_b32 %s, %s' % (s(SSEG), s(SNS)))
        A('s_add_u32 %s, %s, 1' % (s(ST1), s(SNS)))
        A('s_waitcnt vmcnt(0)')
        A('s_barrier')
        post_flag(A, VZ, VT, SFL, SJ, 1)
        Lw = A.newlabel('Lw')
        A('s_cmp_lg_u32 %s, 0' % s(SW))
        A('s_cbranch_scc1 %s' % Lw)
        A('v_cmp_gt_u32 vcc, %s, %s' % (s(ST1), v(FR)))
        A('s_cbranch_vccz %s' % Lw)
        poll_ge(A, S_WS, VFI, s(SFLIN), s(ST1), VT, sleep=XSLEEP)
        if XH:
            Lh = A.newlabel('Lh')
            A('s_add_u32 %s, %s, 3' % (s(ST1), s(SNS)))
            A('s_cmp_ge_u32 %s, %d' % (s(ST1), Cfg.nseg))
            A('s_cbranch_scc1 %s' % Lw)
            A('s_mov_b32 %s, 12' % s(SSPIN))
            A.label(Lh)
            A('buffer_load_dword %s, %s, %s, %s offen sc1' % (v(VT), v(VZ), s(S_WS, 4), s(39)))
            A('s_waitcnt vmcnt(0)')
            A('v_cmp_gt_u32 vcc, %s, %s' % (s(ST1), v(VT)))
            A('s_cbranch_vccz %s' % (Lh + 'd'))
            A('s_sub_u32 %s, %s, 1' % (s(SSPIN), s(SSPIN)))
            A('s_cbranch_scc0 %s' % Lh)
            A.label(Lh + 'd')
        if XDELAY: A('s_sleep %d' % XDELAY)
        A.label(Lw)
        A('s_barrier')
        mark(2)
        A('s_add_u32 m0, %s, %d' % (s(SUW), buf * 2 * ZT))
        A('s_add_u32 s60, %s, %s' % (s(SZ), s(SUW)))
        if os.environ.get('XNOU'): A('s_mov_b64 exec, 1')
        for j in range(4):
            A('buffer_load_dwordx4 %s, %s, s60 offen offset:%d sc1 lds' % (v(VL16), s(S_WS, 4), j * 1024))
        A('s_mov_b64 exec, -1')
        for t in range(2):
            A('buffer_load_dword %s, %s, %s, %s offen offset:%d' % (v(XR + t), v(VXR), s(S_X, 4), s(SXO), t * 32))
        A('s_mov_b64 exec, %s' % ('1' if os.environ.get('XNOPX') else s(SCM, 2)))
        for q in range(5):
            if q == 4: A('s_mov_b64 exec, -1')
            A('s_add_u32 s61, %s, %d' % (s(SPX), q * 4096))
            px_block(A, PR, q, 's61', 7)
        A('s_mov_b32 %s, %s' % (s(SH), s(SHN)))
        if more:
            decode(6)
            vo_ready()
        for i in range(0, 8, 2): A('v_pk_mov_b32 %s, 0, 0' % v(D + i, 2))
        mark(3)
        fo = vo_ops(1 - buf) if more else []
        lg = Lg(A)
        seq = [(t, i) for i in range(20) for t in range(2)]
        def rd(k):
            t, i = seq[k]
            for h in range(2):
                lg.issue('ds_read_b128 %s, %s offset:%d' % (v(BB + (k % 4) * 8 + 4 * h, 4), v(VRD[buf * 2 + t]), i * 2048 + h * 1024), k)
        rd(0); rd(1); rd(2)
        young = 0
        for k, (t, i) in enumerate(seq):
            if t == 0: A('s_waitcnt vmcnt(%d)' % (px_left(i) + young))
            lg.wait(k)
            A('v_smfmac_f32_16x16x64_bf16 %s, %s, %s, %s' % (v(D + 4 * t, 4), v(PR + 4 * i, 4), v(BB + (k % 4) * 8, 8), v(VIDX)))
            if k + 3 == 32: A('s_barrier')
            if k + 3 < 40: rd(k + 3)
            if fo and k % 2 == 1 and k >= XVO:
                for x in fo.pop(0): A(x)
                young += 1
        for o in fo:
            for x in o: A(x)
        if more: A('buffer_load_dword %s, %s, %s, %s offen sc1' % (v(FR), v(VFI), s(S_WS, 4), s(SFLIN)))
        for t in range(2):
            d = D + 4 * t; x = XR + t
            halves(A, d)
            pack(A, d)
            A('v_lshlrev_b32 %s, 16, %s' % (v(d + 1), v(d)))
            A('v_and_b32 %s, 0xffff0000, %s' % (v(d), v(d)))
            A('v_lshlrev_b32 %s, 16, %s' % (v(d + 2), v(x)))
            A('v_and_b32 %s, 0xffff0000, %s' % (v(d + 3), v(x)))
            A('v_add_f32 %s, %s, %s' % (v(d + 1), v(d + 1), v(d + 2)))
            A('v_add_f32 %s, %s, %s' % (v(d), v(d), v(d + 3)))
            A('v_cvt_pk_bf16_f32 %s, %s, %s' % (v(d), v(d + 1), v(d)))
            A('buffer_store_dword %s, %s, %s, %s offen offset:%d sc1' % (v(d), v(VHS), s(S_WS, 4), s(SH), t * 512))
        mark(4)
        A('s_add_u32 %s, %s, 6' % (s(SJ), s(SJ)))
    A('s_mov_b32 %s, %s' % (s(SJ), s(SIDX)))
    A('v_mov_b32 %s, 0' % v(FR))
    decode(0)
    A('s_mov_b64 exec, 1')
    A('s_add_u32 %s, %s, 0x%x' % (s(ST2), s(SSEL), NF_S))
    poll_ge(A, S_WS, VZ, s(ST2), '1', VT, sleep=16)
    A('s_mov_b64 exec, -1')
    vo_ready()
    for o in vo_ops(0):
        for x in o: A(x)
    A.label('L_loop_X2')
    for buf in range(2):
        A('s_cmp_ge_u32 %s, %d' % (s(SJ), NJ - 6))
        A('s_cbranch_scc1 L_X2_fin%d' % buf)
        body(buf, True)
    A('s_branch L_loop_X2')
    A.label('L_X2_fin0')
    body(0, False)
    A('s_branch L_X2_end')
    A.label('L_X2_fin1')
    body(1, False)
    A.label('L_X2_end')
    A('s_waitcnt vmcnt(0)')
    A('s_barrier')
    post_flag(A, VZ, VT, SFL, SJ, 1)
    if Cfg.trace:
        A('s_barrier')
        A('v_lshlrev_b32 v3, 2, %s' % v(VLANE)); A('v_add_u32 v4, s84, v3')
        for i in range(8): A('ds_write_b32 v4, %s offset:%d' % (v(TRV + i), i * 256))
        A('s_waitcnt lgkmcnt(0)')
    A('s_branch L_exit')

def role_F1(A):
    RB, RS = 128, 3072
    VZ, VT = 3, 4
    VDM, VTA, VTB, VG, VR, VQ = 6, 7, 8, 9, 10, 11
    VRD = (12, 13)
    VFI, VSW, VSR = 14, 15, 16
    VONE = 20
    VCS, VBI, ACC, SA = 24, 32, 40, 48
    BB = 56
    PR, MR, OUT, TM, FT = 72, 76, 80, 84, 100
    XB = 40960
    STATS = 2 * XB
    SB, SIN, SOUT, SFL, SFLIN, SV, SPRE, SP_ = 71, 72, 73, 62, 63, 64, 67, 68
    SM = 74
    A.label('L_role_F1')
    srd(A, S_WT, P_W1, 640 * 1536 * 2)
    A('s_lshr_b32 %s, %s, 1' % (s(SP_), s(SW)))
    A('s_lshl_b32 %s, %s, 7' % (s(SB), s(SIDX)))
    A('s_mul_i32 %s, %s, %d' % (s(ST0), s(SW), 32 * RS))
    A('s_add_u32 %s, %s, %s' % (s(SB), s(SB), s(ST0)))
    lane_parts(A, VG, VR, VQ)
    A('v_lshrrev_b32 %s, 3, %s' % (v(VDM), v(VLANE)))
    A('v_mul_u32_u24 %s, %d, %s' % (v(VDM), RS, v(VDM)))
    A('v_and_b32 %s, 7, %s' % (v(VT), v(VLANE)))
    A('v_lshl_add_u32 %s, %s, 4, %s' % (v(VDM), v(VT), v(VDM)))
    A('v_lshl_add_u32 %s, %s, 3, %s' % (v(VTA), v(VG), v(VR)))
    A('v_lshlrev_b32 %s, 7, %s' % (v(VTA), v(VTA)))
    A('v_lshl_add_u32 %s, %s, 3, %s' % (v(VTA), v(VQ), v(VTA)))
    A('s_lshl_b32 %s, %s, 6' % (s(ST0), s(SP_)))
    A('v_add_u32 %s, %s, %s' % (v(VTA), s(ST0), v(VTA)))
    chunks = []
    for ci in range(5):
        reads = [(a(((4 * ci + kk) * 2 + t) * 4 + 2 * p, 2), (32 * kk + 4 * p) * RB + t * 32) for kk in range(4) for t in range(2) for p in range(2)]
        chunks.append(dict(srd=S_WT, base=SB, dma=[(VDM, (128 * ci + 8 * j) * RS) for j in range(4)], taddr=VTA, reads=reads))
    load_weights(A, chunks, 16384, 6, VTB)
    for i in range(4): A('v_mov_b32 %s, 0x3f803f80' % v(VONE + i))
    for ks in range(20):
        for t in range(2):
            A('v_mfma_f32_16x16x32_bf16 %s, %s, %s, %s' % (v(VCS + 4 * t, 4), a((ks * 2 + t) * 4, 4), v(VONE, 4), '0' if ks == 0 else v(VCS + 4 * t, 4)))
    srd(A, S_MISC, P_B1, 1536 * 2)
    A('s_lshl_b32 %s, %s, 7' % (s(ST0), s(SIDX)))
    A('s_lshl_b32 %s, %s, 6' % (s(ST1), s(SP_)))
    A('s_add_u32 %s, %s, %s' % (s(ST0), s(ST0), s(ST1)))
    A('v_lshlrev_b32 %s, 3, %s' % (v(VT), v(VG)))
    for t in range(2):
        A('buffer_load_dwordx2 %s, %s, %s, %s offen offset:%d' % (v(TM + 2 * t, 2), v(VT), s(S_MISC, 4), s(ST0), 32 * t))
    A('s_waitcnt vmcnt(0)')
    for t in range(2):
        for h in range(2):
            A('v_lshlrev_b32 %s, 16, %s' % (v(VBI + 4 * t + 2 * h), v(TM + 2 * t + h)))
            A('v_and_b32 %s, 0xffff0000, %s' % (v(VBI + 4 * t + 2 * h + 1), v(TM + 2 * t + h)))
    stats_masks(A, SM, VT)
    A('s_and_b32 %s, %s, 1' % (s(ST2), s(SW)))
    A('s_mul_i32 %s, %s, 20480' % (s(ST0), s(ST2)))
    A('v_add_u32 %s, %s, %s' % (v(VRD[0]), s(ST0), v(VL16)))
    A('v_add_u32 %s, %d, %s' % (v(VRD[1]), XB, v(VRD[0])))
    A('v_and_b32 %s, 15, %s' % (v(VT), v(VLANE)))
    A('v_lshlrev_b32 %s, 3, %s' % (v(VT), v(VT)))
    A('s_lshl_b32 %s, %s, 7' % (s(ST0), s(ST2)))
    A('s_add_u32 %s, %s, %d' % (s(ST0), s(ST0), STATS))
    A('v_add_u32 %s, %s, %s' % (v(VSR), s(ST0), v(VT)))
    A('s_lshl_b32 %s, %s, 8' % (s(ST0), s(SP_)))
    A('v_add_u32 %s, %s, %s' % (v(VSW), s(ST0), v(VSR)))
    A('s_mul_i32 %s, %s, 10240' % (s(SV), s(SW)))
    A('s_mul_i32 %s, %s, %d' % (s(SIN), s(SREP), XB))
    A('s_add_u32 %s, %s, %s' % (s(SIN), s(SIN), s(SV)))
    A('s_add_u32 %s, %s, 0x%x' % (s(SIN), s(SIN), HF))
    A('s_lshl_b32 %s, %s, 1' % (s(SOUT), s(SIDX)))
    A('s_add_u32 %s, %s, %s' % (s(SOUT), s(SOUT), s(SP_)))
    A('s_lshl_b32 %s, %s, 10' % (s(SOUT), s(SOUT)))
    A('s_mul_i32 %s, %s, 49152' % (s(ST0), s(ST2)))
    A('s_add_u32 %s, %s, %s' % (s(SOUT), s(SOUT), s(ST0)))
    A('s_mul_i32 %s, %s, 98304' % (s(ST0), s(SREP)))
    A('s_add_u32 %s, %s, %s' % (s(SOUT), s(SOUT), s(ST0)))
    A('s_add_u32 %s, %s, 0x%x' % (s(SOUT), s(SOUT), ACT))
    A('s_mul_i32 %s, %s, 24' % (s(ST1), s(SREP)))
    A('s_add_u32 %s, %s, %s' % (s(ST1), s(ST1), s(SIDX)))
    line_addr(A, SFL, ST1, FL_A)
    wait_init(A, VZ, VT)
    A('s_add_u32 %s, %s, 0x%x' % (s(SFLIN), s(SSEL), NF_H))
    flag_voff(A, VFI, 24)
    VLK, VLR = 17, 18
    A('v_lshlrev_b32 %s, 2, v0' % v(VLK))
    A('v_add_u32 %s, %d, %s' % (v(VLK), STATS + 1024, v(VLK)))
    A('v_lshlrev_b32 %s, 2, %s' % (v(VLR), v(VLANE)))
    A('v_add_u32 %s, %d, %s' % (v(VLR), STATS + 1024, v(VLR)))
    def dma_in(buf):
        for i in range(10):
            if i % 4 == 0:
                A('s_add_u32 m0, %s, %d' % (s(SV), buf * XB + i * 1024))
                A('s_add_u32 s60, %s, %d' % (s(SIN), i * 1024))
            A('buffer_load_dwordx4 %s, %s, s60 offen offset:%d sc1 lds' % (v(VL16), s(S_WS, 4), (i % 4) * 1024))
        A('s_add_u32 %s, %s, %d' % (s(SIN), s(SIN), XB * NREP))
    A('s_mov_b32 %s, %s' % (s(SSEG), s(SREP)))
    A('v_mov_b32 %s, 0' % v(VZ))
    A('s_mov_b32 %s, 0' % s(SPRE))
    A.label('L_loop_F1')
    for buf in range(2):
        Lp = A.newlabel('Lq'); Lt = A.newlabel('Lt'); Ln = A.newlabel('Ln')
        A('s_cmp_eq_u32 %s, 1' % s(SPRE))
        A('s_cbranch_scc1 %s' % Lp)
        A('s_mul_i32 %s, %s, 5' % (s(ST1), s(SSEG)))
        A('s_add_u32 %s, %s, 5' % (s(ST1), s(ST1)))
        A('s_cmp_lt_u32 %s, %d' % (s(SSEG), Cfg.nseg - 2))
        A('s_cbranch_scc1 %s' % Lt)
        flag_voff(A, VFI, 40)
        A('s_add_u32 %s, %s, 0x%x' % (s(SFLIN), s(SSEL), NF_T))
        A('s_sub_u32 %s, %s, %d' % (s(ST1), s(SSEG), Cfg.nseg - 3))
        A.label(Lt)
        Lw0 = A.newlabel('Lw')
        A('s_cmp_lg_u32 %s, 0' % s(SW))
        A('s_cbranch_scc1 %s' % Lw0)
        poll_ge(A, S_WS, VFI, s(SFLIN), s(ST1), FT, sleep=FSLEEP)
        A.label(Lw0)
        A('s_barrier')
        dma_in(buf)
        A.label(Lp)
        A('buffer_load_dword %s, %s, %s, %s offen sc1' % (v(FT), v(VFI), s(S_WS, 4), s(SFLIN)))
        for i in range(0, 8, 2): A('v_pk_mov_b32 %s, 0, 0' % v(SA + i, 2))
        A('s_mul_i32 %s, %s, 5' % (s(ST1), s(SSEG)))
        A('s_add_u32 %s, %s, %d' % (s(ST1), s(ST1), 5 * NREP + 5))
        A('s_waitcnt vmcnt(0)')
        A('ds_write_b32 %s, %s' % (v(VLK), v(FT)))
        A('s_waitcnt lgkmcnt(0)')
        A('s_barrier')
        prof(A, 5)
        A('ds_read_b32 %s, %s' % (v(FT), v(VLR)))
        A('s_waitcnt lgkmcnt(0)')
        A('v_cmp_gt_u32 vcc, %s, %s' % (s(ST1), v(FT)))
        def rd(ks): A('ds_read_b128 %s, %s offset:%d' % (v(BB + (ks % 4) * 4, 4), v(VRD[buf]), ks * 1024))
        rd(0); rd(1); rd(2)
        A('s_mov_b32 %s, 0' % s(SPRE))
        A('s_cbranch_vccnz %s' % Ln)
        dma_in(1 - buf)
        A('s_mov_b32 %s, 1' % s(SPRE))
        A.label(Ln)
        for ks in range(20):
            A('s_waitcnt lgkmcnt(%d)' % min(2, 19 - ks))
            B = v(BB + (ks % 4) * 4, 4)
            for t in range(2):
                d = v(ACC + 4 * t, 4)
                A('v_mfma_f32_16x16x32_bf16 %s, %s, %s, %s' % (d, a((ks * 2 + t) * 4, 4), B, '0' if ks == 0 else d))
                if t == 0 and ks + 3 < 20: rd(ks + 3)
            Lw = A.newlabel('Lw')
            A.raw('    s_cmp_lg_u32 %s, %d' % (s(SP_), ks & 1))
            A.raw('    s_cbranch_scc1 %s' % Lw)
            A('v_mfma_f32_16x16x32_bf16 %s, %s, %s, %s' % (v(SA, 4), v(VONE, 4), B, v(SA, 4)))
            A('v_mfma_f32_16x16x32_bf16 %s, %s, %s, %s' % (v(SA + 4, 4), B, B, v(SA + 4, 4)))
            A.label(Lw)
        A._nop(8)
        g = SA + 4
        A('v_cndmask_b32 %s, %s, %s, %s' % (v(g), v(g), v(g + 1), s(SM + 2, 2)))
        A('v_cndmask_b32 %s, %s, %s, %s' % (v(g + 2), v(g + 2), v(g + 3), s(SM + 2, 2)))
        A('v_cndmask_b32 %s, %s, %s, %s' % (v(g), v(g), v(g + 2), s(SM + 4, 2)))
        A('s_mov_b64 exec, %s' % s(SM, 2))
        A('ds_write2_b32 %s, %s, %s offset0:0 offset1:1' % (v(VSW), v(SA), v(g)))
        A('s_mov_b64 exec, -1')
        A('s_waitcnt lgkmcnt(0)')
        A('s_barrier')
        for p in range(2):
            A('ds_read_b64 %s, %s offset:%d' % (v(PR + 2 * p, 2), v(VSR), p * 256))
        A('s_waitcnt lgkmcnt(0)')
        A('v_pk_add_f32 %s, %s, %s' % (v(PR, 2), v(PR, 2), v(PR + 2, 2)))
        ln_finalize(A, PR, PR + 1, MR, MR + 1)
        for i in range(0, 8, 2):
            A('v_pk_fma_f32 %s, %s, %s, %s op_sel_hi:[0,1,1] neg_lo:[1,0,0] neg_hi:[1,0,0]' % (v(ACC + i, 2), v(MR, 2), v(VCS + i, 2), v(ACC + i, 2)))
        for i in range(0, 8, 2):
            A('v_pk_fma_f32 %s, %s, %s, %s op_sel:[0,1,0] op_sel_hi:[1,1,1]' % (v(ACC + i, 2), v(ACC + i, 2), v(MR, 2), v(VBI + i, 2)))
        for i in range(8): A('v_mul_f32 %s, 0x3fb8aa3b, %s' % (v(TM + i), v(ACC + i)))
        for i in range(8): A('v_min_f32 %s, 0x42200000, %s' % (v(TM + i), v(TM + i)))
        for i in range(8): A('v_exp_f32 %s, %s' % (v(TM + i), v(TM + i)))
        for i in range(0, 8, 2): A('v_pk_add_f32 %s, %s, 2.0 op_sel_hi:[1,0]' % (v(TM + 8 + i, 2), v(TM + i, 2)))
        for i in range(0, 8, 2): A('v_pk_mul_f32 %s, %s, %s' % (v(TM + i, 2), v(TM + i, 2), v(TM + 8 + i, 2)))
        for i in range(0, 8, 2): A('v_pk_add_f32 %s, %s, 2.0 op_sel_hi:[1,0]' % (v(TM + 8 + i, 2), v(TM + i, 2)))
        for i in range(8): A('v_rcp_f32 %s, %s' % (v(TM + 8 + i), v(TM + 8 + i)))
        for i in range(0, 8, 2): A('v_pk_mul_f32 %s, %s, %s' % (v(TM + i, 2), v(TM + i, 2), v(TM + 8 + i, 2)))
        for i in range(0, 8, 2): A('v_pk_mul_f32 %s, %s, %s' % (v(ACC + i, 2), v(ACC + i, 2), v(TM + i, 2)))
        for i in range(4): A('v_cvt_pk_bf16_f32 %s, %s, %s' % (v(OUT + i), v(ACC + 2 * i), v(ACC + 2 * i + 1)))
        A('buffer_store_dwordx4 %s, %s, %s, %s offen sc1' % (v(OUT, 4), v(VL16), s(S_WS, 4), s(SOUT)))
        A('s_add_u32 %s, %s, %d' % (s(SOUT), s(SOUT), 98304 * NREP))
        A('s_add_u32 %s, %s, 1' % (s(SSEG), s(SSEG)))
        prof(A, 6, 1)
        A('s_waitcnt vmcnt(0)')
        A('s_barrier')
        post_flag(A, VZ, VT, SFL, SSEG, 1)
        prof(A, 7, 1)
        A('s_add_u32 %s, %s, %d' % (s(SSEG), s(SSEG), NREP - 1))
        A('s_cmp_ge_u32 %s, %d' % (s(SSEG), Cfg.nseg))
        A('s_cbranch_scc1 L_exit')
    A('s_branch L_loop_F1')

def role_F2(A):
    VZ, VT = 3, 4
    VTA, VTB, VG, VR, VQ = 7, 8, 9, 10, 11
    VFI, VRW, VRR, VHL, VOS = 12, 13, 14, 15, 16
    VDM = 17
    HR = 24
    ACC = 32
    AF = 64
    RD = 112
    RROW = 336
    RB_ = 4 * 16 * RROW
    SB, SIN, SH, SO, SFLIN, SCG, STT, SEM = 71, 72, 73, 62, 63, 64, 65, 66
    A.label('L_role_F2')
    srd(A, S_WT, P_W2, 1536 * 640 * 2)
    srd(A, S_MISC, P_OUT, 2048 * 640 * 2)
    lane_parts(A, VG, VR, VQ)
    A('s_lshr_b32 %s, %s, 1' % (s(SCG), s(SIDX)))
    A('s_and_b32 %s, %s, 1' % (s(STT), s(SIDX)))
    A('s_mul_i32 %s, %s, 160' % (s(SB), s(SCG)))
    A('s_mul_i32 %s, %s, %d' % (s(ST0), s(SW), 384 * 1280))
    A('s_add_u32 %s, %s, %s' % (s(SB), s(SB), s(ST0)))
    for j in range(5):
        A('v_add_u32 %s, %d, %s' % (v(VT), 64 * j, v(VLANE)))
        A('v_mul_u32_u24 %s, 6554, %s' % (v(VT + 1), v(VT)))
        A('v_lshrrev_b32 %s, 16, %s' % (v(VT + 1), v(VT + 1)))
        A('v_mul_u32_u24 %s, 10, %s' % (v(VDM + j), v(VT + 1)))
        A('v_sub_u32 %s, %s, %s' % (v(VT), v(VT), v(VDM + j)))
        A('v_lshlrev_b32 %s, 4, %s' % (v(VT), v(VT)))
        A('v_mul_u32_u24 %s, 1280, %s' % (v(VT + 1), v(VT + 1)))
        A('v_add_u32 %s, %s, %s' % (v(VDM + j), v(VT), v(VT + 1)))
    A('v_lshl_add_u32 %s, %s, 2, %s' % (v(VTA), v(VG), v(VR)))
    A('v_mul_u32_u24 %s, 160, %s' % (v(VTA), v(VTA)))
    A('v_lshl_add_u32 %s, %s, 3, %s' % (v(VTA), v(VQ), v(VTA)))
    A('s_mul_i32 %s, %s, 5120' % (s(ST0), s(SW)))
    A('v_add_u32 %s, %s, %s' % (v(VTA), s(ST0), v(VTA)))
    chunks = []
    for i in range(12):
        reads = [(a((i * 5 + ct) * 4 + 2 * p, 2), p * 2560 + ct * 32) for ct in range(5) for p in range(2)]
        chunks.append(dict(srd=S_WT, base=SB, dma=[(VDM + j, 32 * i * 1280) for j in range(5)], taddr=VTA, reads=reads))
    load_weights(A, chunks, 20480, 7, VTB)
    A('v_min_u32 %s, 5, %s' % (v(VFI), v(VLANE)))
    A('v_lshlrev_b32 %s, 7, %s' % (v(VFI), v(VFI)))
    A('s_mul_i32 %s, %s, %d' % (s(SFLIN), s(SREP), 24 * 128))
    A('s_mul_i32 %s, %s, %d' % (s(ST0), s(SW), 6 * 128))
    A('s_add_u32 %s, %s, %s' % (s(SFLIN), s(SFLIN), s(ST0)))
    A('s_add_u32 %s, %s, 0x%x' % (s(SFLIN), s(SFLIN), FLAGS + FL_A * 128))
    A('v_and_b32 %s, 15, %s' % (v(VT), v(VLANE)))
    A('v_mul_u32_u24 %s, %d, %s' % (v(VRW), RROW, v(VT)))
    A('v_lshl_add_u32 %s, %s, 4, %s' % (v(VRW), v(VG), v(VRW)))
    A('s_mul_i32 %s, %s, %d' % (s(ST0), s(SW), 16 * RROW))
    A('v_add_u32 %s, %s, %s' % (v(VRW), s(ST0), v(VRW)))
    TK, CG = 28, 29
    A('v_min_u32 %s, 39, %s' % (v(VT), v(VLANE)))
    A('v_mul_u32_u24 %s, 6554, %s' % (v(TK), v(VT)))
    A('v_lshrrev_b32 %s, 16, %s' % (v(TK), v(TK)))
    A('v_mul_u32_u24 %s, 10, %s' % (v(CG), v(TK)))
    A('v_sub_u32 %s, %s, %s' % (v(CG), v(VT), v(CG)))
    A('s_lshl_b32 %s, %s, 2' % (s(ST0), s(SW)))
    A('v_add_u32 %s, %s, %s' % (v(TK), s(ST0), v(TK)))
    A('v_mul_u32_u24 %s, %d, %s' % (v(VRR), RROW, v(TK)))
    A('v_lshl_add_u32 %s, %s, 5, %s' % (v(VRR), v(CG), v(VRR)))
    A('v_mul_u32_u24 %s, 1280, %s' % (v(VOS), v(TK)))
    A('v_lshl_add_u32 %s, %s, 4, %s' % (v(VOS), v(CG), v(VOS)))
    A('v_lshlrev_b32 %s, 8, %s' % (v(VHL), v(CG)))
    A('v_lshl_add_u32 %s, %s, 4, %s' % (v(VHL), v(TK), v(VHL)))
    A('s_mov_b32 %s, -1' % s(SEM)); A('s_mov_b32 %s, 0xff' % s(SEM + 1))
    A('s_mul_i32 %s, %s, 40960' % (s(ST0), s(SREP)))
    A('s_mul_i32 %s, %s, 20480' % (s(ST1), s(STT)))
    A('s_add_u32 %s, %s, %s' % (s(ST0), s(ST0), s(ST1)))
    A('s_mul_i32 %s, %s, 2560' % (s(SH), s(SCG)))
    A('s_add_u32 %s, %s, %s' % (s(SH), s(SH), s(ST0)))
    A('s_add_u32 %s, %s, 0x%x' % (s(SH), s(SH), HF))
    A('s_mul_i32 %s, %s, 160' % (s(SO), s(SCG)))
    A('s_add_u32 %s, %s, %s' % (s(SO), s(SO), s(ST0)))
    A('s_mul_i32 %s, %s, 12288' % (s(SIN), s(SW)))
    A('s_mul_i32 %s, %s, 98304' % (s(ST0), s(SREP)))
    A('s_add_u32 %s, %s, %s' % (s(SIN), s(SIN), s(ST0)))
    A('s_mul_i32 %s, %s, 49152' % (s(ST0), s(STT)))
    A('s_add_u32 %s, %s, %s' % (s(SIN), s(SIN), s(ST0)))
    A('s_add_u32 %s, %s, 0x%x' % (s(SIN), s(SIN), ACT))
    A('s_mov_b32 %s, %s' % (s(SSEG), s(SREP)))
    A.label('L_loop_F2')
    for buf in range(2):
        A('s_add_u32 %s, %s, 1' % (s(SSEG), s(SSEG)))
        poll_ge(A, S_WS, VFI, s(SFLIN), s(SSEG), VT, sleep=FSLEEP)
        prof(A, 5, 1)
        for q in range(3):
            A('s_add_u32 %s, %s, %d' % (s(ST0), s(SIN), q * 4096))
            for j in range(4):
                A('buffer_load_dwordx4 %s, %s, %s, %s offen offset:%d sc1' % (v(AF + (q * 4 + j) * 4, 4), v(VL16), s(S_WS, 4), s(ST0), j * 1024))
        A('buffer_load_dwordx4 %s, %s, %s, %s offen sc1' % (v(HR, 4), v(VHL), s(S_WS, 4), s(SH)))
        for i in range(12):
            A('s_waitcnt vmcnt(%d)' % (12 - i))
            for ct in range(5):
                d = v(ACC + ct * 4, 4)
                A('v_mfma_f32_16x16x32_bf16 %s, %s, %s, %s' % (d, a((i * 5 + ct) * 4, 4), v(AF + i * 4, 4), '0' if i == 0 else d))
        for ct in range(5):
            A('ds_write_b128 %s, %s offset:%d' % (v(VRW), v(ACC + ct * 4, 4), buf * RB_ + ct * 64))
        A('s_waitcnt lgkmcnt(0)')
        A('s_barrier')
        prof(A, 6, 1)
        for w in range(4):
            for h in range(2):
                A('ds_read_b128 %s, %s offset:%d' % (v(RD + w * 8 + 4 * h, 4), v(VRR), buf * RB_ + w * 16 * RROW + h * 16))
        A('s_waitcnt lgkmcnt(4)')
        for i in range(0, 8, 2): A('v_pk_add_f32 %s, %s, %s' % (v(RD + i, 2), v(RD + i, 2), v(RD + 8 + i, 2)))
        A('s_waitcnt vmcnt(0) lgkmcnt(0)')
        for i in range(0, 8, 2): A('v_pk_add_f32 %s, %s, %s' % (v(RD + 16 + i, 2), v(RD + 16 + i, 2), v(RD + 24 + i, 2)))
        for i in range(0, 8, 2): A('v_pk_add_f32 %s, %s, %s' % (v(RD + i, 2), v(RD + i, 2), v(RD + 16 + i, 2)))
        for i in range(4): A('v_cvt_pk_bf16_f32 %s, %s, %s' % (v(RD + 8 + i), v(RD + 2 * i), v(RD + 2 * i + 1)))
        for i in range(4):
            A('v_lshlrev_b32 %s, 16, %s' % (v(RD + 2 * i), v(RD + 8 + i)))
            A('v_and_b32 %s, 0xffff0000, %s' % (v(RD + 2 * i + 1), v(RD + 8 + i)))
            A('v_lshlrev_b32 %s, 16, %s' % (v(RD + 16 + 2 * i), v(HR + i)))
            A('v_and_b32 %s, 0xffff0000, %s' % (v(RD + 16 + 2 * i + 1), v(HR + i)))
        for i in range(0, 8, 2): A('v_pk_add_f32 %s, %s, %s' % (v(RD + i, 2), v(RD + i, 2), v(RD + 16 + i, 2)))
        for i in range(4): A('v_cvt_pk_bf16_f32 %s, %s, %s' % (v(RD + 8 + i), v(RD + 2 * i), v(RD + 2 * i + 1)))
        A('s_mov_b64 exec, %s' % s(SEM, 2))
        A('buffer_store_dwordx4 %s, %s, %s, %s offen%s' % (v(RD + 8, 4), v(VOS), s(S_MISC, 4), s(SO), os.environ.get('OUTMOD', '').replace('_', ' ')))
        A('s_mov_b64 exec, -1')
        A('s_add_u32 %s, %s, %d' % (s(SO), s(SO), 40960 * NREP))
        A('s_add_u32 %s, %s, %d' % (s(SH), s(SH), 40960 * NREP))
        A('s_add_u32 %s, %s, %d' % (s(SIN), s(SIN), 98304 * NREP))
        prof(A, 7, 1)
        A('s_add_u32 %s, %s, %d' % (s(SSEG), s(SSEG), NREP - 1))
        A('s_cmp_ge_u32 %s, %d' % (s(SSEG), Cfg.nseg))
        A('s_cbranch_scc1 L_exit')
    A('s_branch L_loop_F2')
```

```python
import sys, os
sys.path.insert(0, os.path.dirname(os.path.abspath(__file__)))
from asmlib import *

NAME = 'sequential_preLN__memory_aug_recurrent_mem_tr__dense_activation_mish__prompt'
MB = 1 << 20
URING = 0
CANB = 80 * 16384
CANA = 81 * 16384
NF_P = 82 * 16384
NF_H = NF_P + 32 * 128
NF_S = 83 * 16384
NF_T = 84 * 16384
PROBE = 92 * 16384
COMM = 96 * 16384
U_P = 0
U_PM = 16384
U_MEM = 20480
FLAGS = 6 * MB
FL_W, FL_A = 0, 128
STAT1 = 6 * MB + 65536
XF = 2 * MB
PX = 7 * MB
HF = 13 * MB
ACT = 16 * MB
QKV = 24 * MB
VO = 96 * MB
ZT = 40960
WS_BYTES = 256 * MB
NSEG = 64
SPIN = 1 << 20
NPROBE = int(os.environ.get('NPROBE', '4'))
FLAGPOS = int(os.environ.get('FLAGPOS', '9'))
def xp(u):
    return ((u >> 13) << 14) | (u & 8191)

SW = 3
S_WS, S_WT, S_X, S_DBG, S_MISC = 4, 8, 12, 16, 20
SIDX, SSEG, SSEL, SSPIN = 24, 25, 26, 27
ST0, ST1, ST2, ST3 = 28, 29, 30, 31
P_X, P_MEM0, P_WQ, P_WK, P_WV, P_WO = 32, 34, 36, 38, 40, 42
P_W1, P_B1, P_W2, P_OUT, P_DBG, P_WS = 48, 50, 52, 54, 56, 58
VLANE, VL16 = 1, 2
SREP = 81
NREP = 3

class Cfg:
    roles = {'G', 'O', 'QK', 'VO', 'S2', 'X2', 'F1', 'F2'}
    nseg = NSEG
    prof = False
    trace = False
    tregs = (4, 5)
PROF = 23 * MB
TRACE = 200 * MB

TRL = 155648
def prof_init(A):
    if Cfg.trace:
        A('s_lshl_b32 s84, %s, 11' % s(SW)); A('s_add_u32 s84, s84, %d' % TRL)
        A('s_mov_b32 %s, 0' % s(SSEG)); A('s_mov_b32 s100, 0')
        A('s_memrealtime s[86:87]'); A('s_memtime s[88:89]'); A('s_waitcnt lgkmcnt(0)')
        return
    if not Cfg.prof: return
    for i in range(86, 102): A('s_mov_b32 s%d, 0' % i)
    A('s_memtime s[82:83]'); A('s_waitcnt lgkmcnt(0)'); A('s_mov_b32 s84, s82')
def prof(A, i, back=0, keep=False):
    if Cfg.trace:
        if i > 7 or (os.environ.get('LIGHT') and i > 1 and not keep): return
        t0, t1 = Cfg.tregs
        A('%s s[82:83]' % ('s_memtime' if os.environ.get('CYC') else 's_memrealtime'))
        A('s_sub_u32 s85, %s, %d' % (s(SSEG), back)); A('s_and_b32 s85, s85, 63')
        A('s_lshl_b32 s85, s85, 2'); A('s_add_u32 s85, s85, s84')
        A('s_waitcnt lgkmcnt(0)')
        A('v_mov_b32 v%d, s85' % t0); A('v_mov_b32 v%d, s82' % t1)
        A('ds_write_b32 v%d, v%d offset:%d' % (t0, t1, i * 256))
        return
    if not Cfg.prof: return
    A('s_memtime s[82:83]'); A('s_waitcnt lgkmcnt(0)')
    A('s_sub_u32 s85, s82, s84'); A('s_add_u32 s%d, s%d, s85' % (86 + i, 86 + i)); A('s_mov_b32 s84, s82')
def prof_dump(A):
    if Cfg.trace:
        A('s_memrealtime s[82:83]'); A('s_memtime s[90:91]')
        A('s_lshl_b32 s85, s2, 2'); A('s_add_u32 s85, s85, %s' % s(SW)); A('s_lshl_b32 s85, s85, 12'); A('s_add_u32 s85, s85, 0x%x' % TRACE)
        A('v_lshlrev_b32 v3, 2, %s' % v(VLANE)); A('v_add_u32 v4, s84, v3')
        for i in range(8): A('ds_read_b32 v%d, v4 offset:%d' % (8 + i, i * 256))
        A('s_waitcnt lgkmcnt(0)')
        for i in range(8): A('buffer_store_dword v%d, v3, %s, s85 offen offset:%d' % (8 + i, s(S_WS, 4), i * 256))
        A('v_mov_b32 v8, s86'); A('v_mov_b32 v9, s82'); A('v_mov_b32 v10, s100')
        A('buffer_store_dword v8, v3, %s, s85 offen offset:2048' % s(S_WS, 4))
        A('buffer_store_dword v9, v3, %s, s85 offen offset:2304' % s(S_WS, 4))
        A('buffer_store_dword v10, v3, %s, s85 offen offset:2560' % s(S_WS, 4))
        A('s_sub_u32 s90, s90, s88'); A('v_mov_b32 v11, s90')
        A('buffer_store_dword v11, v3, %s, s85 offen offset:2816' % s(S_WS, 4))
        A('s_waitcnt vmcnt(0)')
        return
    if not Cfg.prof: return
    A('s_lshl_b32 s85, s2, 2'); A('s_add_u32 s85, s85, %s' % s(SW)); A('s_lshl_b32 s85, s85, 6'); A('s_add_u32 s85, s85, 0x%x' % PROF)
    A('s_mov_b64 exec, 1'); A('v_mov_b32 v3, 0')
    for i in range(16):
        A('v_mov_b32 v4, s%d' % (86 + i))
        A('buffer_store_dword v4, v3, %s, s85 offen offset:%d' % (s(S_WS, 4), 4 * i))
    A('s_waitcnt vmcnt(0)')

def srd(A, d, ptr, nbytes):
    A('s_mov_b32 %s, %s' % (s(d), s(ptr)))
    A('s_and_b32 %s, %s, 0xffff' % (s(d + 1), s(ptr + 1)))
    A('s_mov_b32 %s, 0x%x' % (s(d + 2), nbytes))
    A('s_mov_b32 %s, 0x20000' % s(d + 3))

def spin_dec(A):
    A('s_sub_u32 %s, %s, 1' % (s(SSPIN), s(SSPIN)))
    A('s_cbranch_scc1 L_abort')

def poll_ge(A, srdreg, voff, soff, want, vt, sleep=1, out_s=None):
    L = A.newlabel('Lp'); D = A.newlabel('Ld')
    A('s_mov_b32 %s, 0x%x' % (s(SSPIN), SPIN))
    A.label(L)
    A('buffer_load_dword %s, %s, %s, %s offen sc1' % (v(vt), v(voff), s(srdreg, 4), soff))
    A('s_waitcnt vmcnt(0)')
    A('v_cmp_gt_u32 vcc, %s, %s' % (want, v(vt)))
    A('s_cbranch_vccz %s' % D)
    spin_dec(A)
    if sleep: A('s_sleep %d' % sleep)
    A('s_branch %s' % L)
    A.label(D)
    if out_s is not None:
        A('v_readfirstlane_b32 %s, %s' % (s(out_s), v(vt)))

def wait_init(A, vz, vt, early=False):
    A('v_mov_b32 %s, 0' % v(vz))
    if early:
        A('s_mov_b32 %s, 132' % s(ST1))
        poll_ge(A, S_DBG, vz, s(ST1), '1', vt, sleep=6)
        return
    A('s_mov_b32 %s, 128' % s(ST1))
    poll_ge(A, S_DBG, vz, s(ST1), '1', vt, sleep=6, out_s=SSEL)
    A('s_and_b32 %s, %s, 0xffff' % (s(SSEL), s(SSEL)))
    A('s_cmp_gt_u32 %s, %d' % (s(SSEL), 128 * NPROBE))
    A('s_cselect_b32 %s, 8192, 0' % s(SSEL))

def post_flag(A, vz, vt, soff, val_s, wave):
    L = A.newlabel('Lf')
    A('s_cmp_lg_u32 %s, %d' % (s(SW), wave))
    A('s_cbranch_scc1 %s' % L)
    post_wflag(A, vz, vt, soff, val_s)
    A.label(L)

def near_line(A, dst, idx, base):
    A('s_lshl_b32 %s, %s, 7' % (s(dst), s(idx)))
    A('s_add_u32 %s, %s, %s' % (s(dst), s(dst), s(SSEL)))
    A('s_add_u32 %s, %s, 0x%x' % (s(dst), s(dst), base))

def line_addr(A, dst, idx, base_line):
    A('s_lshl_b32 %s, %s, 7' % (s(dst), s(idx)))
    A('s_add_u32 %s, %s, 0x%x' % (s(dst), s(dst), FLAGS + base_line * 128))

QLATE = int(os.environ.get('QLATE', '1')); FAST0 = int(os.environ.get('FAST0', '1'))
STW = ' nt' if os.environ.get('STW') else ''; STO = ' nt' if os.environ.get('STO') else ''
OFLAG = int(os.environ.get('OFLAG', '5'))
KDELAY = int(os.environ.get('KDELAY', '60')); OCAP = int(os.environ.get('OCAP', '3'))
RCAP = int(os.environ.get('RCAP', '99')); WCAP = int(os.environ.get('WCAP', '6'))
NT_W = ' nt' if os.environ.get('NTW') else ''
NT_R = ' nt' if os.environ.get('NTR') else ''
def flag_addr(A, dst, idx, base_line):
    A('s_lshl_b32 %s, %s, 7' % (s(dst), s(idx)))
    A('s_lshl_b32 %s, %s, 2' % (s(ST0), s(SW)))
    A('s_add_u32 %s, %s, %s' % (s(dst), s(dst), s(ST0)))
    A('s_add_u32 %s, %s, 0x%x' % (s(dst), s(dst), FLAGS + base_line * 128))

def flag_voff(A, r, n):
    A('v_cmp_gt_u32 vcc, %d, %s' % (n, v(VLANE)))
    A('v_lshlrev_b32 %s, 7, %s' % (v(r), v(VLANE)))
    A('v_cndmask_b32 %s, 0, %s, vcc' % (v(r), v(r)))

def post_wflag(A, vz, vt, soff, val_s):
    A('v_mov_b32 %s, %s' % (v(vt), s(val_s)))
    A('s_mov_b64 exec, 1')
    A('buffer_store_dword %s, %s, %s, %s offen sc1' % (v(vt), v(vz), s(S_WS, 4), s(soff)))
    A('s_mov_b64 exec, -1')

def poll4_ge(A, voff, soff, want, vt4, sleep=1, out_s=None):
    L = A.newlabel('Lp'); D = A.newlabel('Ld')
    A('s_mov_b32 %s, 0x%x' % (s(SSPIN), SPIN))
    A.label(L)
    A('buffer_load_dwordx4 %s, %s, %s, %s offen sc1' % (v(vt4, 4), v(voff), s(S_WS, 4), soff))
    A('s_waitcnt vmcnt(0)')
    A('v_min3_u32 %s, %s, %s, %s' % (v(vt4), v(vt4), v(vt4 + 1), v(vt4 + 2)))
    A('v_min_u32 %s, %s, %s' % (v(vt4), v(vt4), v(vt4 + 3)))
    A('v_cmp_gt_u32 vcc, %s, %s' % (want, v(vt4)))
    A('s_cbranch_vccz %s' % D)
    spin_dec(A)
    if sleep: A('s_sleep %d' % sleep)
    A('s_branch %s' % L)
    A.label(D)
    if out_s is not None:
        A('v_readfirstlane_b32 %s, %s' % (s(out_s), v(vt4)))

def load_weights(A, chunks, slot_bytes, nslots, vaddr_tmp, mod='', cap=99):
    nslots = min(nslots, cap)
    ns = sorted({len(c['dma']) for c in chunks})
    wl = {}
    for i, n in enumerate(ns):
        wl[n] = 61 + i
        A('s_mul_i32 %s, %s, %d' % (s(61 + i), s(SW), n * 1024))
    def issue(ci):
        c = chunks[ci]; n = len(c['dma']); slot = ci % nslots
        for j, (vo, k) in enumerate(c['dma']):
            A('s_add_u32 m0, %s, %d' % (s(wl[n]), slot * slot_bytes + j * 1024))
            A('s_add_u32 s60, %s, 0x%x' % (s(c['base']), k))
            A('buffer_load_dwordx4 %s, %s, s60 offen%s lds' % (v(vo), s(c['srd'], 4), mod))
    N = len(chunks)
    for ci in range(min(nslots - 1, N)):
        issue(ci)
    for ci in range(N):
        out = sum(len(chunks[k]['dma']) for k in range(ci + 1, min(ci + nslots - 1, N)))
        assert out <= 63
        A('s_waitcnt vmcnt(%d)' % out)
        A('s_barrier')
        if ci + nslots - 1 < N:
            issue(ci + nslots - 1)
        c = chunks[ci]; slot = ci % nslots
        A('v_add_u32 %s, 0x%x, %s' % (v(vaddr_tmp), slot * slot_bytes, v(c['taddr'])))
        for dst, imm in ([] if os.environ.get('NOTR') else c['reads']):
            A('ds_read_b64_tr_b16 %s, %s offset:%d' % (dst, v(vaddr_tmp), imm))
        A('s_waitcnt lgkmcnt(0)')
    A('s_barrier')
    if os.environ.get('WONLY'): A('s_branch L_exit')

def lane_parts(A, vg, vr, vq):
    A('v_lshrrev_b32 %s, 4, %s' % (v(vg), v(VLANE)))
    A('v_bfe_u32 %s, %s, 2, 2' % (v(vr), v(VLANE)))
    A('v_and_b32 %s, 3, %s' % (v(vq), v(VLANE)))

def dma_voffs_384(A, d, RS, t0, t1):
    for j in range(3):
        A('v_add_u32 %s, %d, %s' % (v(t0), 64 * j, v(VLANE)))
        A('v_mul_u32_u24 %s, 2731, %s' % (v(t1), v(t0)))
        A('v_lshrrev_b32 %s, 16, %s' % (v(t1), v(t1)))
        A('v_mul_u32_u24 %s, 24, %s' % (v(d + j), v(t1)))
        A('v_sub_u32 %s, %s, %s' % (v(t0), v(t0), v(d + j)))
        A('v_lshlrev_b32 %s, 4, %s' % (v(t0), v(t0)))
        A('v_mul_u32_u24 %s, %d, %s' % (v(t1), RS, v(t1)))
        A('v_add_u32 %s, %s, %s' % (v(d + j), v(t0), v(t1)))

def bf16_round(A, r):
    A('v_cvt_pk_bf16_f32 %s, %s, %s' % (v(r), v(r), v(r)))
    A('v_and_b32 %s, 0xffff0000, %s' % (v(r), v(r)))

def ln_finalize(A, s1, s2, m, r):
    A('v_mul_f32 %s, 0x3acccccd, %s' % (v(m), v(s1)))
    A('v_mul_f32 %s, 0x3acccccd, %s' % (v(r), v(s2)))
    A('v_fma_f32 %s, -%s, %s, %s' % (v(r), v(m), v(m), v(r)))
    A('v_max_f32 %s, 0, %s' % (v(r), v(r)))
    bf16_round(A, m); bf16_round(A, r)
    A('v_add_f32 %s, 0x3727c5ac, %s' % (v(r), v(r)))
    bf16_round(A, r)
    A('v_sqrt_f32 %s, %s' % (v(r), v(r)))
    bf16_round(A, r)
    A('v_rcp_f32 %s, %s' % (v(r), v(r)))

def stats_masks(A, sm, vt):
    A('v_bfe_u32 %s, %s, 2, 2' % (v(vt), v(VLANE)))
    A('v_lshrrev_b32 %s, 4, %s' % (v(vt + 1), v(VLANE)))
    A('v_cmp_eq_u32 %s, %s, %s' % (s(sm, 2), v(vt), v(vt + 1)))
    A('v_and_b32 %s, 1, %s' % (v(vt), v(VLANE)))
    A('v_cmp_eq_u32 %s, 1, %s' % (s(sm + 2, 2), v(vt)))
    A('v_and_b32 %s, 2, %s' % (v(vt), v(VLANE)))
    A('v_cmp_eq_u32 %s, 2, %s' % (s(sm + 4, 2), v(vt)))

def stats_exchange(A, SA, sm, VSW, VSR, PR, MEAN, RSTD):
    for tt in range(2):
        g = SA + tt * 8 + 4
        A('v_cndmask_b32 %s, %s, %s, %s' % (v(g), v(g), v(g + 1), s(sm + 2, 2)))
        A('v_cndmask_b32 %s, %s, %s, %s' % (v(g + 2), v(g + 2), v(g + 3), s(sm + 2, 2)))
        A('v_cndmask_b32 %s, %s, %s, %s' % (v(g), v(g), v(g + 2), s(sm + 4, 2)))
    A('s_mov_b64 exec, %s' % s(sm, 2))
    for tt in range(2):
        A('ds_write2_b32 %s, %s, %s offset0:%d offset1:%d' % (v(VSW), v(SA + tt * 8), v(SA + tt * 8 + 4), tt * 32, tt * 32 + 1))
    A('s_mov_b64 exec, -1')
    A('s_waitcnt lgkmcnt(0)')
    A('s_barrier')
    for tt in range(2):
        for w in range(4):
            A('ds_read_b64 %s, %s offset:%d' % (v(PR + (tt * 4 + w) * 2, 2), v(VSR), w * 256 + tt * 128))
    A('s_waitcnt lgkmcnt(0)')
    for tt in range(2):
        b = PR + tt * 8
        for k in range(2):
            A('v_add_f32 %s, %s, %s' % (v(b + k), v(b + k), v(b + 2 + k)))
            A('v_add_f32 %s, %s, %s' % (v(b + 4 + k), v(b + 4 + k), v(b + 6 + k)))
            A('v_add_f32 %s, %s, %s' % (v(b + k), v(b + k), v(b + 4 + k)))
        ln_finalize(A, b, b + 1, MEAN(tt), RSTD(tt))

def wo_pair(i):
    w, t = divmod(i, 3)
    return (w, t) if t < 2 else (4 + (w >> 1), w & 1)

def role_W(A):
    NT, RB, RS = 3, 384, 12288
    VZ, VT = 3, 4
    VDM = 6
    VTA, VTB = 10, 11
    VG, VR, VQ = 12, 13, 14
    VRD = (16, 17)
    VL8 = 18
    ACC = 24
    BB = 72
    OUT = 96
    XB = 40960
    SK = 70
    SB, SIN, SOUT, SFL, SV = 71, 72, 73, 62, 64
    A.label('L_role_G')
    A('s_cmp_eq_u32 %s, 1' % s(SK))
    A('s_cselect_b32 %s, %s, %s' % (s(ST0), s(P_WK), s(P_WQ)))
    A('s_cselect_b32 %s, %s, %s' % (s(ST1), s(P_WK + 1), s(P_WQ + 1)))
    A('s_cmp_eq_u32 %s, 2' % s(SK))
    A('s_cselect_b32 %s, %s, %s' % (s(ST0), s(P_WV), s(ST0)))
    A('s_cselect_b32 %s, %s, %s' % (s(ST1), s(P_WV + 1), s(ST1)))
    srd(A, S_WT, ST0, 640 * 6144 * 2)
    A('s_mul_i32 %s, %s, 384' % (s(SB), s(SIDX)))
    A('s_mul_i32 %s, %s, %d' % (s(ST0), s(SW), 16 * RS))
    A('s_add_u32 %s, %s, %s' % (s(SB), s(SB), s(ST0)))
    lane_parts(A, VG, VR, VQ)
    dma_voffs_384(A, VDM, RS, VT, VT + 1)
    dma = [(VDM + j % 3, 8 * (j // 3) * RS) for j in range(6)]
    A('v_lshl_add_u32 %s, %s, 3, %s' % (v(VTA), v(VG), v(VR)))
    A('v_mul_u32_u24 %s, %d, %s' % (v(VTA), RB, v(VTA)))
    A('v_lshl_add_u32 %s, %s, 3, %s' % (v(VTA), v(VQ), v(VTA)))
    A('s_mul_i32 %s, %s, %d' % (s(ST0), s(SW), NT * 32))
    A('v_add_u32 %s, %s, %s' % (v(VTA), s(ST0), v(VTA)))
    chunks = []
    for ci in range(10):
        reads = []
        for kk in range(2):
            ks = 2 * ci + kk
            for t in range(NT):
                for p in range(2):
                    reads.append((a((ks * NT + t) * 4 + 2 * p, 2), (32 * kk + 4 * p) * RB + t * 32))
        chunks.append(dict(srd=S_WT, base=SB, dma=[(vo, k + ci * 64 * RS) for vo, k in dma], taddr=VTA, reads=reads))
    if QLATE:
        Lq = A.newlabel('Lq')
        A('s_cmp_ge_u32 %s, %d' % (s(SK), QLATE))
        A('s_cbranch_scc1 %s' % Lq)
        wait_init(A, VZ, VT, True)
        A.label(Lq)
    if KDELAY:
        Lq = A.newlabel('Lq')
        A('s_cmp_lg_u32 %s, 1' % s(SK))
        A('s_cbranch_scc1 %s' % Lq)
        A('s_sleep %d' % KDELAY)
        A.label(Lq)
    load_weights(A, chunks, 64 * RB, 6, VTB, NT_W, WCAP)
    A('s_mul_i32 %s, %s, 10240' % (s(SV), s(SW)))
    A('s_add_u32 %s, %s, 0x%x' % (s(SIN), s(SV), XF))
    def dma_ops(buf):
        ops = []
        for i in range(10):
            o = []
            if i % 4 == 0:
                o = ['s_add_u32 m0, %s, %d' % (s(SV), buf * XB + i * 1024), 's_add_u32 s60, %s, %d' % (s(SIN), i * 1024)]
            ops.append(o + ['buffer_load_dwordx4 %s, %s, s60 offen offset:%d sc1 lds' % (v(VL16), s(S_WS, 4), (i % 4) * 1024)])
        ops[-1].append('s_add_u32 %s, %s, %d' % (s(SIN), s(SIN), XB))
        return ops
    A('v_mov_b32 %s, %s' % (v(VRD[0]), v(VL16)))
    A('v_add_u32 %s, %d, %s' % (v(VRD[1]), XB, v(VL16)))
    A('v_lshlrev_b32 %s, 3, %s' % (v(VL8), v(VLANE)))
    A('s_mul_i32 %s, %s, 0x%x' % (s(SOUT), s(SK), 24 * MB))
    A('s_mul_i32 %s, %s, 12288' % (s(ST0), s(SIDX)))
    A('s_add_u32 %s, %s, %s' % (s(SOUT), s(SOUT), s(ST0)))
    A('s_mul_i32 %s, %s, 3072' % (s(ST0), s(SW)))
    A('s_add_u32 %s, %s, %s' % (s(SOUT), s(SOUT), s(ST0)))
    A('s_add_u32 %s, %s, 0x%x' % (s(SOUT), s(SOUT), QKV))
    A('s_lshl_b32 %s, %s, 5' % (s(ST1), s(SK)))
    A('s_add_u32 %s, %s, %s' % (s(ST1), s(ST1), s(SIDX)))
    flag_addr(A, SFL, ST1, FL_W)
    prof(A, 0)
    wait_init(A, VZ, VT, True)
    prof(A, 1)
    for o in dma_ops(0):
        for x in o: A(x)
    A('s_mov_b32 %s, 0' % s(SSEG))
    def epi(buf):
        va = []; st = []
        for tt in range(2):
            for t in range(NT):
                d = ACC + buf * 24 + (tt * NT + t) * 4; o = OUT + tt * 6 + t * 2
                va.append('v_cvt_pk_bf16_f32 %s, %s, %s' % (v(o), v(d), v(d + 1)))
                va.append('v_cvt_pk_bf16_f32 %s, %s, %s' % (v(o + 1), v(d + 2), v(d + 3)))
            st.append('buffer_store_dwordx4 %s, %s, %s, %s offen offset:%d sc1%s' % (v(OUT + tt * 6, 4), v(VL16), s(S_WS, 4), s(SOUT), tt * 1536, STW))
            st.append('buffer_store_dwordx2 %s, %s, %s, %s offen offset:%d sc1%s' % (v(OUT + tt * 6 + 4, 2), v(VL8), s(S_WS, 4), s(SOUT), tt * 1536 + 1024, STW))
        st.append('s_add_u32 %s, %s, %d' % (s(SOUT), s(SOUT), 32 * 12288))
        return va, st
    def body(buf, first, keep=0):
        A('s_waitcnt vmcnt(%d)' % (keep if first else (1 if FLAGPOS >= 9 else 0)))
        A('s_barrier')
        prof(A, 2)
        dops = dma_ops(1 - buf)
        va, st = ([], []) if first else epi(1 - buf)
        def rd(ks):
            for tt in range(2):
                A('ds_read_b128 %s, %s offset:%d' % (v(BB + (ks % 3) * 8 + tt * 4, 4), v(VRD[buf]), tt * 20480 + ks * 1024))
        rd(0); rd(1)
        young = 0
        for ks in range(20):
            if ks + 2 < 20:
                rd(ks + 2)
                A('s_waitcnt lgkmcnt(4)')
            else:
                A('s_waitcnt lgkmcnt(%d)' % (2 if ks + 1 < 20 else 0))
            k = 0
            for t in range(NT):
                for tt in range(2):
                    d = ACC + buf * 24 + (tt * NT + t) * 4
                    A('v_mfma_f32_16x16x32_bf16 %s, %s, %s, %s' % (v(d, 4), a((ks * NT + t) * 4, 4), v(BB + (ks % 3) * 8 + tt * 4, 4), '0' if ks == 0 else v(d, 4)))
                    if k == 0 and dops:
                        for x in dops.pop(0): A(x)
                        young += 1
                    elif k < 5 and va:
                        A(va.pop(0))
                    elif k < 5 and st:
                        x = st.pop(0); A(x)
                        if x.startswith('buffer'): young = 0
                    elif k == 2 and ks == FLAGPOS:
                        A('v_mov_b32 %s, %s' % (v(VT), s(SSEG)))
                    elif k == 3 and ks == FLAGPOS:
                        if not first: A('s_waitcnt vmcnt(%d)' % young)
                        A('s_mov_b64 exec, 1')
                        A('buffer_store_dword %s, %s, %s, %s offen sc1' % (v(VT), v(VZ), s(S_WS, 4), s(SFL)))
                        A('s_mov_b64 exec, -1')
                    k += 1
        assert not dops and not va and not st
        prof(A, 3)
        A('s_add_u32 %s, %s, 1' % (s(SSEG), s(SSEG)))
    body(0, True)
    if FAST0:
        va, st = epi(0)
        for x in va + st: A(x)
        A('s_waitcnt vmcnt(0)')
        post_wflag(A, VZ, VT, SFL, SSEG)
        body(1, True, 1)
        A('s_branch L_G_in')
    A.label('L_loop_G')
    body(1, False)
    A('s_cmp_ge_u32 %s, %d' % (s(SSEG), Cfg.nseg))
    A('s_cbranch_scc1 L_G_fin')
    A.label('L_G_in')
    body(0, False)
    A('s_branch L_loop_G')
    A.label('L_G_fin')
    va, st = epi(1)
    for x in va + st: A(x)
    A('s_waitcnt vmcnt(0)')
    post_wflag(A, VZ, VT, SFL, SSEG)
    A('s_branch L_phase2')

def role_O(A):
    VZ, VT = 3, 4
    VTA, VTB = 10, 11
    VG, VR, VQ = 12, 13, 14
    VL8 = 15
    VA = 16
    ACC = 112
    OUT = 128
    FT = 140
    SB, SIN, SOUT, SFL, SFLIN, SPRE = 71, 72, 73, 74, 75, 77
    A.label('L_role_O')
    srd(A, S_WT, P_WO, 6144 * 640 * 2)
    A('s_mul_i32 %s, %s, %d' % (s(SB), s(SIDX), 192 * 1280))
    A('s_mul_i32 %s, %s, 5120' % (s(ST0), s(SW)))
    A('s_add_u32 %s, %s, %s' % (s(SB), s(SB), s(ST0)))
    lane_parts(A, VG, VR, VQ)
    A('v_lshl_add_u32 %s, %s, 2, %s' % (v(VTA), v(VG), v(VR)))
    A('v_mul_u32_u24 %s, 1280, %s' % (v(VTA), v(VTA)))
    A('v_lshl_add_u32 %s, %s, 3, %s' % (v(VTA), v(VQ), v(VTA)))
    A('s_mul_i32 %s, %s, 320' % (s(ST0), s(SW)))
    A('v_add_u32 %s, %s, %s' % (v(VTA), s(ST0), v(VTA)))
    chunks = []
    for i in range(12):
        f, p = wo_pair(i)
        reads = [(a((ct * 6 + f) * 4 + 2 * p, 2), ct * 32) for ct in range(10)]
        chunks.append(dict(srd=S_WT, base=SB, dma=[(VL16, i * 20480 + j * 1024) for j in range(5)], taddr=VTA, reads=reads))
    load_weights(A, chunks, 20480, 7, VTB, NT_W, OCAP)
    A('v_lshlrev_b32 %s, 3, %s' % (v(VL8), v(VLANE)))
    A('s_mul_i32 %s, %s, 12288' % (s(SIN), s(SIDX)))
    A('s_add_u32 %s, %s, 0x%x' % (s(SIN), s(SIN), QKV + 2 * 24 * MB))
    A('s_mul_i32 %s, %s, %d' % (s(SOUT), s(SW), 10 * ZT))
    A('s_lshl_b32 %s, %s, 10' % (s(ST0), s(SIDX)))
    A('s_add_u32 %s, %s, %s' % (s(SOUT), s(SOUT), s(ST0)))
    A('s_add_u32 %s, %s, 0x%x' % (s(SOUT), s(SOUT), VO))
    A('s_lshl_b32 %s, %s, 7' % (s(ST0), s(SIDX)))
    A('s_add_u32 %s, %s, 0x%x' % (s(SFLIN), s(ST0), FLAGS + (FL_W + 64) * 128))
    flag_addr(A, SFL, SIDX, FL_W + 96)
    def vgrp(buf, w):
        N = VA + buf * 48
        o = ['s_add_u32 s61, %s, %d' % (s(SIN), w * 3072)]
        for tt in range(2):
            o.append('buffer_load_dwordx4 %s, %s, %s, s61 offen offset:%d sc1' % (v(N + (tt * 6 + w) * 4, 4), v(VL16), s(S_WS, 4), tt * 1536))
            o.append('buffer_load_dwordx2 %s, %s, %s, s61 offen offset:%d sc1' % (v(N + (tt * 6 + 4 + (w >> 1)) * 4 + 2 * (w & 1), 2), v(VL8), s(S_WS, 4), tt * 1536 + 1024))
        if w == 3: o.append('s_add_u32 %s, %s, %d' % (s(SIN), s(SIN), 32 * 12288))
        return o
    prof(A, 0)
    wait_init(A, VZ, VT, True)
    prof(A, 1)
    A('s_mov_b32 %s, 0' % s(SSEG))
    A('s_mov_b32 %s, 0' % s(SPRE))
    for i in range(4): A('v_mov_b32 %s, 0' % v(FT + i))
    def epi(ct):
        d = ACC + (ct & 1) * 8; o = OUT + (ct & 1) * 4
        return ['v_cvt_pk_bf16_f32 %s, %s, %s' % (v(o), v(d), v(d + 1)),
                'v_cvt_pk_bf16_f32 %s, %s, %s' % (v(o + 1), v(d + 4), v(d + 5)),
                'v_cvt_pk_bf16_f32 %s, %s, %s' % (v(o + 2), v(d + 2), v(d + 3)),
                'v_cvt_pk_bf16_f32 %s, %s, %s' % (v(o + 3), v(d + 6), v(d + 7)),
                's_add_u32 s60, %s, %d\nbuffer_store_dwordx4 %s, %s, %s, s60 offen sc1%s' % (s(SOUT), ct * ZT, v(o, 4), v(VL16), s(S_WS, 4), STO)]
    A.label('L_loop_O')
    for buf in range(2):
        Lp = A.newlabel('Lq'); Lg_ = A.newlabel('Lq')
        A('s_cmp_eq_u32 %s, 1' % s(SPRE))
        A('s_cbranch_scc1 %s' % Lp)
        Lh = A.newlabel('Lq'); Lk = A.newlabel('Lq')
        A('s_add_u32 %s, %s, 1' % (s(ST1), s(SSEG)))
        A('s_waitcnt vmcnt(4)')
        A('v_min3_u32 %s, %s, %s, %s' % (v(FT), v(FT), v(FT + 1), v(FT + 2)))
        A('v_min_u32 %s, %s, %s' % (v(FT), v(FT), v(FT + 3)))
        A('v_cmp_gt_u32 vcc, %s, %s' % (s(ST1), v(FT)))
        A('s_cbranch_vccz %s' % Lh)
        A('s_waitcnt vmcnt(0)')
        post_wflag(A, VZ, VT, SFL, SSEG)
        poll4_ge(A, VZ, s(SFLIN), s(ST1), FT)
        A.label(Lh)
        for w in range(4):
            for x in vgrp(buf, w): A(x)
        A('buffer_load_dwordx4 %s, %s, %s, %s offen sc1' % (v(FT, 4), v(VZ), s(S_WS, 4), s(SFLIN)))
        A('s_waitcnt vmcnt(17)')
        post_wflag(A, VZ, VT, SFL, SSEG)
        A('s_waitcnt vmcnt(1)')
        A('s_branch %s' % Lg_)
        A.label(Lp)
        A('s_waitcnt vmcnt(4)')
        A.label(Lg_)
        prof(A, 2)
        A('s_add_u32 %s, %s, 2' % (s(ST1), s(SSEG)))
        A('v_min3_u32 %s, %s, %s, %s' % (v(FT), v(FT), v(FT + 1), v(FT + 2)))
        A('v_min_u32 %s, %s, %s' % (v(FT), v(FT), v(FT + 3)))
        A('v_cmp_gt_u32 vcc, %s, %s' % (s(ST1), v(FT)))
        A('v_mov_b32 %s, %s' % (v(VT), s(SSEG)))
        A('s_cmp_eq_u64 vcc, 0')
        A('s_cselect_b32 %s, 1, 0' % s(SPRE))
        pend = []
        for ct in range(10):
            k = 0
            for f in range(6):
                for tt in range(2):
                    d = ACC + (ct & 1) * 8 + tt * 4
                    A('v_mfma_f32_16x16x32_bf16 %s, %s, %s, %s' % (v(d, 4), v(VA + buf * 48 + (tt * 6 + f) * 4, 4), a((ct * 6 + f) * 4, 4), '0' if f == 0 else v(d, 4)))
                    k += 1
                    if k == 1 and ct < 4:
                        Ls = A.newlabel('Ls')
                        A.raw('    s_cmp_eq_u32 %s, 0' % s(SPRE))
                        A.raw('    s_cbranch_scc1 %s' % Ls)
                        for x in vgrp(1 - buf, ct): A.raw('    ' + x)
                        A.label(Ls)
                    if k == 2 and ct == OFLAG:
                        L1 = A.newlabel('Ls'); L2 = A.newlabel('Ls')
                        A.raw('    s_cmp_eq_u32 %s, 0' % s(SPRE))
                        A.raw('    s_cbranch_scc1 %s' % L1)
                        A.raw('    s_waitcnt vmcnt(%d)' % (16 + OFLAG - 1))
                        A.raw('    s_branch %s' % L2)
                        A.label(L1)
                        A.raw('    s_waitcnt vmcnt(%d)' % (OFLAG - 1))
                        A.label(L2)
                        A('s_mov_b64 exec, 1')
                        A('buffer_store_dword %s, %s, %s, %s offen sc1' % (v(VT), v(VZ), s(S_WS, 4), s(SFL)))
                        A('s_mov_b64 exec, -1')
                    if k == 2 and ct == 7:
                        A('buffer_load_dwordx4 %s, %s, %s, %s offen sc1' % (v(FT, 4), v(VZ), s(S_WS, 4), s(SFLIN)))
                    if k >= 8 and pend: A(pend.pop(0))
            assert not pend
            pend = epi(ct)
        for x in pend: A(x)
        A('s_add_u32 %s, %s, %d' % (s(SOUT), s(SOUT), 40 * ZT))
        prof(A, 4)
        A('s_add_u32 %s, %s, 1' % (s(SSEG), s(SSEG)))
    A('s_cmp_lt_u32 %s, %d' % (s(SSEG), Cfg.nseg))
    A('s_cbranch_scc1 L_loop_O')
    A('s_waitcnt vmcnt(0)')
    post_wflag(A, VZ, VT, SFL, SSEG)
    A('s_branch L_phase2')

def do_init(A):
    SI = 70
    VS, VO_, VZ4, VT = 4, 8, 12, 16
    XF_, SA, PR, MR, VONE, VSW, VSR, VX = 64, 104, 120, 136, 140, 144, 145, 146
    for i in range(4):
        A('v_mov_b32 %s, -1' % v(VS + i))
        A('v_mov_b32 %s, 0' % v(VZ4 + i))
        A('v_mov_b32 %s, 0x3f803f80' % v(VONE + i))
    A('v_lshlrev_b32 %s, 4, v0' % v(VO_))
    A('v_and_b32 %s, 15, %s' % (v(VT), v(VLANE)))
    A('v_mul_u32_u24 %s, 1280, %s' % (v(VX), v(VT)))
    A('v_lshrrev_b32 %s, 4, %s' % (v(VT + 1), v(VLANE)))
    A('v_lshl_add_u32 %s, %s, 4, %s' % (v(VX), v(VT + 1), v(VX)))
    A('v_lshlrev_b32 %s, 3, %s' % (v(VSR), v(VT)))
    A('s_lshl_b32 %s, %s, 8' % (s(ST0), s(SW)))
    A('v_add_u32 %s, %s, %s' % (v(VSW), s(ST0), v(VSR)))
    A('s_mul_i32 %s, %s, 40960' % (s(ST0), s(SI)))
    A('s_mul_i32 %s, %s, 320' % (s(ST1), s(SW)))
    A('s_add_u32 %s, %s, %s' % (s(ST0), s(ST0), s(ST1)))
    A('s_add_u32 %s, %s, 20480' % (s(ST1), s(ST0)))
    for tt in range(2):
        for i in range(5):
            A('buffer_load_dwordx4 %s, %s, %s, %s offen offset:%d' % (v(XF_ + (tt * 5 + i) * 4, 4), v(VX), s(S_X, 4), s((ST0, ST1)[tt]), i * 64))
    stats_masks(A, 74, VT)
    A('s_waitcnt vmcnt(0)')
    L1 = A.newlabel('Li')
    A('s_sub_u32 %s, %s, 1' % (s(ST1), s(SI)))
    A('s_cmp_ge_u32 %s, 28' % s(ST1))
    A('s_cbranch_scc1 %s' % L1)
    A('s_lshl_b32 %s, %s, 12' % (s(ST0), s(ST1)))
    A('s_cmp_lt_u32 %s, 8' % s(ST1))
    A('s_cselect_b32 %s, 0x%x, %s' % (s(ST2), FLAGS, s(ST2)))
    A('s_cselect_b32 %s, %s, 0x%x' % (s(ST2), s(ST2), CANB - 8 * 4096))
    A('s_add_u32 s60, %s, %s' % (s(ST0), s(ST2)))
    A('buffer_store_dwordx4 %s, %s, %s, s60 offen sc1' % (v(VZ4, 4), v(VO_), s(S_WS, 4)))
    A.label(L1)
    for i in range(5):
        for tt in range(2):
            B = v(XF_ + (tt * 5 + i) * 4, 4)
            A('v_mfma_f32_16x16x32_bf16 %s, %s, %s, %s' % (v(SA + tt * 8, 4), v(VONE, 4), B, '0' if i == 0 else v(SA + tt * 8, 4)))
            A('v_mfma_f32_16x16x32_bf16 %s, %s, %s, %s' % (v(SA + tt * 8 + 4, 4), B, B, '0' if i == 0 else v(SA + tt * 8 + 4, 4)))
    stats_exchange(A, SA, 74, VSW, VSR, PR, lambda tt: MR + 2 * tt, lambda tt: MR + 2 * tt + 1)
    A('s_mul_i32 %s, %s, 40960' % (s(ST0), s(SI)))
    A('s_mul_i32 %s, %s, 5120' % (s(ST1), s(SW)))
    A('s_add_u32 %s, %s, %s' % (s(ST0), s(ST0), s(ST1)))
    N0 = 20
    for tt in range(2):
        m, r = MR + 2 * tt, MR + 2 * tt + 1
        for i in range(5):
            x = XF_ + (tt * 5 + i) * 4
            for j in range(4):
                A('v_lshlrev_b32 %s, 16, %s' % (v(N0 + 2 * j), v(x + j)))
                A('v_and_b32 %s, 0xffff0000, %s' % (v(N0 + 2 * j + 1), v(x + j)))
            for j in range(4):
                A('v_pk_add_f32 %s, %s, %s op_sel_hi:[1,0] neg_lo:[0,1] neg_hi:[0,1]' % (v(N0 + 2 * j, 2), v(N0 + 2 * j, 2), v(m, 2)))
            for j in range(4):
                A('v_cvt_pk_bf16_f32 %s, %s, %s' % (v(x + j), v(N0 + 2 * j), v(N0 + 2 * j + 1)))
            for j in range(4):
                A('v_lshlrev_b32 %s, 16, %s' % (v(N0 + 2 * j), v(x + j)))
                A('v_and_b32 %s, 0xffff0000, %s' % (v(N0 + 2 * j + 1), v(x + j)))
            for j in range(4):
                A('v_pk_mul_f32 %s, %s, %s op_sel:[0,1] op_sel_hi:[1,1]' % (v(N0 + 2 * j, 2), v(N0 + 2 * j, 2), v(m, 2)))
            for j in range(4):
                A('v_cvt_pk_bf16_f32 %s, %s, %s' % (v(x + j), v(N0 + 2 * j), v(N0 + 2 * j + 1)))
            A('s_add_u32 s60, %s, 0x%x' % (s(ST0), XF + tt * 20480 + i * 1024))
            if not os.environ.get('NOXF'): A('buffer_store_dwordx4 %s, %s, %s, s60 offen sc1' % (v(x, 4), v(VL16), s(S_WS, 4)))
    def arrive(off, add_reg, go_val):
        L = A.newlabel('La')
        A('buffer_atomic_add %s, %s, %s, 0 offen offset:%d sc0 sc1' % (v(add_reg), v(VZ4), s(S_DBG, 4), off))
        A('s_waitcnt vmcnt(0)')
        A('v_readfirstlane_b32 s72, %s' % v(add_reg))
        A('s_lshr_b32 s73, s72, 16')
        A('s_cmp_lg_u32 s73, 63')
        A('s_cbranch_scc1 %s' % L)
        go_val()
        A('buffer_store_dword %s, %s, %s, 0 offen offset:%d sc1' % (v(add_reg), v(VZ4), s(S_DBG, 4), 128 + off))
        A.label(L)
    A('s_waitcnt vmcnt(0)')
    A('s_barrier')
    LA = A.newlabel('Li')
    A('s_cmp_lg_u32 %s, 0' % s(SW))
    A('s_cbranch_scc1 %s' % LA)
    A('s_mov_b64 exec, 1')
    A('v_mov_b32 v20, 0x10000')
    arrive(4, 20, lambda: A('v_mov_b32 v20, 1'))
    A('s_mov_b64 exec, -1')
    A.label(LA)
    def fill(base, per, nbytes, data):
        A('s_mul_i32 %s, %s, %d' % (s(ST0), s(SI), per))
        for k in range(0, 0 if os.environ.get('NOFILL') else nbytes, 4096):
            A('s_add_u32 s60, %s, 0x%x' % (s(ST0), base + k))
            A('buffer_store_dwordx4 %s, %s, %s, s60 offen sc1' % (v(data, 4), v(VO_), s(S_WS, 4)))
    fill(URING, 20480, 20480, VS)
    fill(PX + (Cfg.nseg - 2) * 81920, 4096, 4096, VS)
    L0 = A.newlabel('Li')
    A('s_mov_b32 s72, 0xfa00'); A('s_mov_b32 s73, 0')
    A('s_bitcmp1_b64 s[72:73], %s' % s(SI))
    A('s_cbranch_scc1 %s' % L0)
    fill(COMM, 4096, 4096, VS)
    A.label(L0)
    L2 = A.newlabel('Li')
    A('s_add_u32 %s, %s, %s' % (s(ST0), s(SI), s(SW)))
    A('s_cmp_lg_u32 %s, 0' % s(ST0))
    A('s_cbranch_scc1 %s' % L2)
    srd(A, S_MISC, P_MEM0, 8 * 640 * 2)
    A('v_bfe_u32 %s, %s, 2, 2' % (v(VT), v(VLANE)))
    A('v_and_b32 %s, 1, %s' % (v(VT + 1), v(VLANE)))
    A('v_lshl_add_u32 %s, %s, 1, %s' % (v(VT), v(VT), v(VT + 1)))
    A('v_mul_u32_u24 %s, 1280, %s' % (v(VT), v(VT)))
    A('v_lshrrev_b32 %s, 4, %s' % (v(VT + 1), v(VLANE)))
    A('v_lshl_add_u32 %s, %s, 5, %s' % (v(VT), v(VT + 1), v(VT)))
    A('v_and_b32 %s, 2, %s' % (v(VT + 1), v(VLANE)))
    A('v_lshl_add_u32 %s, %s, 3, %s' % (v(VT), v(VT + 1), v(VT)))
    for ks in range(10):
        A('buffer_load_dwordx4 %s, %s, %s, 0 offen offset:%d' % (v(20 + 4 * ks, 4), v(VT), s(S_MISC, 4), ks * 128))
    A('s_waitcnt vmcnt(0)')
    for i in range(40):
        A('v_min_u32 %s, 0xfffffffe, %s' % (v(20 + i), v(20 + i)))
    for ks in range(10):
        for half in range(2):
            A('s_mov_b32 s60, 0x%x' % (COMM + xp(U_MEM + ks * 1024) + half * 8192))
            A('buffer_store_dwordx4 %s, %s, %s, s60 offen sc1' % (v(20 + 4 * ks, 4), v(VL16), s(S_WS, 4)))
    A.label(L2)
    A('s_mov_b64 exec, 1')
    A('s_lshl_b32 s72, %s, 14' % s(SW))
    A('s_lshl_b32 s73, %s, 7' % s(SI))
    A('s_add_u32 s72, s72, s73')
    A('s_add_u32 s72, s72, 0x%x' % PROBE)
    A('s_and_b32 s73, %s, 1' % s(SW))
    A('s_lshl_b32 s73, s73, 13')
    A('s_add_u32 s72, s72, s73')
    A('s_xor_b32 s73, s72, 8192')
    A('s_mov_b32 s74, 0')
    for rep in range(0 if os.environ.get('NOPROBE') else NPROBE):
        A('buffer_store_dword %s, %s, %s, s72 offen sc1' % (v(VS), v(VZ4), s(S_WS, 4)))
        A('buffer_store_dword %s, %s, %s, s73 offen sc1' % (v(VS), v(VZ4), s(S_WS, 4)))
        A('s_waitcnt vmcnt(0)')
        A('s_memtime s[76:77]')
        A('s_waitcnt lgkmcnt(0)')
        A('buffer_load_dword %s, %s, %s, s72 offen sc1' % (v(VT), v(VZ4), s(S_WS, 4)))
        A('s_waitcnt vmcnt(0)')
        A('s_memtime s[78:79]')
        A('s_waitcnt lgkmcnt(0)')
        A('buffer_load_dword %s, %s, %s, s73 offen sc1' % (v(VT), v(VZ4), s(S_WS, 4)))
        A('s_sub_u32 s75, s78, s76')
        A('s_waitcnt vmcnt(0)')
        A('s_memtime s[76:77]')
        A('s_waitcnt lgkmcnt(0)')
        A('s_sub_u32 s76, s76, s78')
        A('s_cmp_lt_u32 s76, s75')
        A('s_cselect_b32 s75, 1, 0')
        A('s_and_b32 s76, %s, 1' % s(SW))
        A('s_xor_b32 s75, s75, s76')
        A('s_add_u32 s74, s74, s75')
    A('s_lshl_b32 s72, %s, 2' % s(SW))
    A('v_mov_b32 %s, s72' % v(VT)); A('v_mov_b32 %s, s74' % v(VT + 1))
    A('ds_write_b32 %s, %s offset:2048' % (v(VT), v(VT + 1)))
    A('s_mov_b64 exec, -1')
    A('s_waitcnt vmcnt(0) lgkmcnt(0)')
    A('s_barrier')
    L3 = A.newlabel('Li')
    A('s_cmp_lg_u32 %s, 0' % s(SW))
    A('s_cbranch_scc1 %s' % L3)
    A('s_mov_b64 exec, 1')
    A('ds_read_b128 %s, %s offset:2048' % (v(20, 4), v(VZ4)))
    A('s_waitcnt lgkmcnt(0)')
    A('v_add3_u32 v20, v20, v21, v22')
    A('v_add_u32 v23, 0x10000, v23')
    A('v_add_u32 v20, v20, v23')
    A('v_readfirstlane_b32 s74, v20')
    def go():
        A('s_add_u32 s72, s72, s74')
        A('v_mov_b32 v20, s72')
    arrive(0, 20, go)
    A('s_mov_b64 exec, -1')
    A.label(L3)

def build():
    A = Asm()
    hdr = open(os.path.join(os.path.dirname(os.path.abspath(__file__)), '..', 'cdna_kernels', NAME + '.s.ref')).read().split('\n')
    for l in hdr:
        if l.startswith('; @launch'): break
        A.raw(l)
    A.raw('; @launch grid=(256,1,1) block=(256,1,1) lds=163840')
    A.raw('.amdgcn_target "amdgcn-amd-amdhsa--gfx950"')
    A.raw('.text')
    A.raw('.globl %s_kernel' % NAME)
    A.raw('.p2align 8')
    A.raw('.type %s_kernel,@function' % NAME)
    A.raw('%s_kernel:' % NAME)
    A('s_cmp_ge_u32 s2, 256')
    A('s_cbranch_scc1 L_exit0')
    A('s_load_dwordx16 s[32:47], s[0:1], 0')
    A('s_load_dwordx8 s[48:55], s[0:1], 64')
    A('s_load_dwordx4 s[56:59], s[0:1], 96')
    A('v_and_b32 %s, 63, v0' % v(VLANE))
    A('v_lshlrev_b32 %s, 4, %s' % (v(VL16), v(VLANE)))
    A('v_lshrrev_b32 v3, 6, v0')
    A('v_readfirstlane_b32 %s, v3' % s(SW))
    A('s_waitcnt lgkmcnt(0)')
    srd(A, S_WS, P_WS, WS_BYTES)
    srd(A, S_X, P_X, 2048 * 640 * 2)
    srd(A, S_DBG, P_DBG, 256)
    prof_init(A)
    A('s_and_b32 %s, s2, 7' % s(ST0))
    A('s_lshr_b32 %s, s2, 3' % s(ST1))
    A('s_cmp_ge_u32 %s, 4' % s(ST0))
    A('s_cbranch_scc1 L_workers')
    def go(role):
        return ('L_role_' + role) if role in Cfg.roles else 'L_exit'
    A('s_lshl_b32 %s, %s, 3' % (s(SIDX), s(ST0)))
    A('s_and_b32 %s, %s, 7' % (s(ST2), s(ST1)))
    A('s_add_u32 %s, %s, %s' % (s(SIDX), s(SIDX), s(ST2)))
    A('s_cmp_lt_u32 %s, 8' % s(ST1))
    A('s_cbranch_scc1 %s' % go('QK'))
    A('s_cmp_lt_u32 %s, 16' % s(ST1))
    A('s_cbranch_scc1 %s' % go('VO'))
    A('s_lshl_b32 s70, %s, 4' % s(ST0))
    A('s_add_u32 s70, s70, %s' % s(ST1))
    A('s_sub_u32 s70, s70, 16')
    A('s_mov_b32 s80, %s' % s(ST0))
    A('s_mov_b32 s81, %s' % s(ST1))
    if not os.environ.get('NOINIT'): do_init(A)
    A('s_mul_i32 %s, s80, 10' % s(SIDX))
    A('s_add_u32 %s, %s, s81' % (s(SIDX), s(SIDX)))
    A('s_sub_u32 %s, %s, 16' % (s(SIDX), s(SIDX)))
    A('s_cmp_lt_u32 s81, 26')
    A('s_cbranch_scc1 %s' % go('S2'))
    A('s_sub_u32 %s, s81, 26' % s(SIDX))
    A('s_branch %s' % go('X2'))
    A.label('L_exit')
    prof(A, 15)
    prof_dump(A)
    A.label('L_exit0')
    A('s_endpgm')
    A.label('L_abort')
    A('s_mov_b64 exec, 1')
    A('v_mov_b32 v3, 0')
    A('v_mov_b32 v4, s2')
    A('v_or_b32 v4, 0x10000, v4')
    A('buffer_store_dword v4, v3, %s, 0 offen offset:8 sc1' % s(S_DBG, 4))
    A('s_endpgm')
    A.label('L_workers')
    A('s_sub_u32 %s, %s, 4' % (s(ST0), s(ST0)))
    A('s_lshl_b32 %s, %s, 3' % (s(SIDX), s(ST0)))
    A('s_lshr_b32 %s, %s, 2' % (s(ST2), s(ST1)))
    A('s_add_u32 %s, %s, %s' % (s(SIDX), s(SIDX), s(ST2)))
    A('s_and_b32 s70, %s, 3' % s(ST1))
    A('s_cmp_eq_u32 s70, 3')
    A('s_cbranch_scc1 %s' % go('O'))
    A('s_branch %s' % go('G'))
    A.label('L_phase2')
    A('s_and_b32 %s, s2, 3' % s(ST0))
    A('s_lshl_b32 %s, %s, 3' % (s(ST0), s(ST0)))
    A('s_lshr_b32 %s, s2, 5' % s(ST1))
    A('s_add_u32 %s, %s, %s' % (s(ST0), s(ST0), s(ST1)))
    A('s_bfe_u32 %s, s2, 0x20003' % s(ST1))
    A('s_waitcnt vmcnt(0) lgkmcnt(0)')
    A('s_barrier')
    A('s_cmp_eq_u32 %s, 3' % s(ST1))
    A('s_cbranch_scc1 L_phase2o')
    A('s_mov_b32 %s, %s' % (s(SREP), s(ST1)))
    A('s_mov_b32 %s, %s' % (s(SIDX), s(ST0)))
    A('s_cmp_lt_u32 %s, 24' % s(SIDX))
    A('s_cbranch_scc1 %s' % go('F1'))
    A('s_sub_u32 %s, %s, 24' % (s(SIDX), s(SIDX)))
    A('s_branch %s' % go('F2'))
    A.label('L_phase2o')
    A('s_lshr_b32 %s, %s, 3' % (s(SREP), s(ST0)))
    A('s_and_b32 %s, %s, 7' % (s(SIDX), s(ST0)))
    A('s_add_u32 %s, %s, 8' % (s(SIDX), s(SIDX)))
    A('s_cmp_lt_u32 %s, 3' % s(SREP))
    A('s_cbranch_scc1 %s' % go('F2'))
    A('s_branch L_exit')
    import roles2
    if 'G' in Cfg.roles: role_W(A)
    if 'O' in Cfg.roles: role_O(A)
    if 'F1' in Cfg.roles: roles2.role_F1(A)
    if 'QK' in Cfg.roles: roles2.role_QK(A)
    if 'VO' in Cfg.roles: roles2.role_VO(A)
    if 'S2' in Cfg.roles: roles2.role_S2(A)
    if 'X2' in Cfg.roles: roles2.role_X2(A)
    if 'F2' in Cfg.roles: roles2.role_F2(A)
    A.raw('.section .rodata,"a"')
    A.raw('.p2align 6')
    A.raw('.amdhsa_kernel %s_kernel' % NAME)
    A.raw('  .amdhsa_next_free_vgpr 512')
    A.raw('  .amdhsa_next_free_sgpr 102')
    A.raw('  .amdhsa_accum_offset 256')
    A.raw('  .amdhsa_group_segment_fixed_size 0')
    A.raw('  .amdhsa_kernarg_size 112')
    A.raw('  .amdhsa_user_sgpr_count 2')
    A.raw('  .amdhsa_user_sgpr_kernarg_segment_ptr 1')
    A.raw('  .amdhsa_system_sgpr_workgroup_id_x 1')
    A.raw('.end_amdhsa_kernel')
    return A

if __name__ == '__main__':
    sys.modules['gen'] = sys.modules['__main__']
    out = sys.argv[1] if len(sys.argv) > 1 else os.path.join(os.path.dirname(os.path.abspath(__file__)), '..', 'cdna_kernels', NAME + '.s')
    if len(sys.argv) > 2:
        Cfg.roles = set(sys.argv[2].split(','))
    if os.environ.get('ROLES'): Cfg.roles = set(os.environ['ROLES'].split(','))
    if os.environ.get('PROF'): Cfg.prof = True
    if os.environ.get('TRACE'): Cfg.trace = True
    A = build()
    open(out, 'w').write(A.text())
    print('wrote', out, 'instructions', A.ninstr)
```
